```python
import torch

def _softmax(x, axis=-1):
    return torch.softmax(x, dim=axis)
def _gelu(x):
    return torch.nn.functional.gelu(x, approximate="tanh")
def _silu(x):
    return torch.nn.functional.silu(x)
def _sigmoid(x):
    return torch.sigmoid(x)
def _layernorm(x, axis=-1, eps=1e-5):
    m = x.mean(dim=axis, keepdim=True)
    v = x.var(dim=axis, keepdim=True, unbiased=False)
    return (x - m) / torch.sqrt(v + eps)
def _scatter_add(tgt, idx, src, axis=0):
    return tgt.clone().index_add_(axis, idx, src)
def _segment_sum(src, seg, n):
    out = torch.zeros((n,) + src.shape[1:], dtype=src.dtype)
    return out.index_add_(0, seg, src)
def _pad(x, pw):
    flat = tuple(v for pair in reversed(pw) for v in pair)
    return torch.nn.functional.pad(x, flat)

kernel_name = 'gated_mix__gqa_block_cached__compressed_kv_cla__decode'

def setup_inputs():

    _w = (lambda a: (lambda t: t.to(torch.bfloat16) if t.is_floating_point() else t)(torch.as_tensor(a)))
    def _A_setup():
        B, Sq, D = 2, 1, 576
        Hq, Hkv, Sk, Dh = 32, 16, 8192, 128
        assert Hq % Hkv == 0, (Hq, Hkv)
        return {
            "x": _w((lambda *s: torch.randn(*s, dtype=torch.bfloat16) * 0.05)(B, Sq, D)),
            "k_cache": _w((lambda *s: torch.randn(*s, dtype=torch.bfloat16) * 6.4)(B, Hkv, Sk, Dh)),
            "v_cache": _w((lambda *s: torch.randn(*s, dtype=torch.bfloat16) * 0.8)(B, Hkv, Sk, Dh)),
            "wq": _w((lambda *s: torch.randn(*s, dtype=torch.bfloat16) * 6.4)(D, Hq * Dh) * (D ** -0.5)),
            "wo": _w((lambda *s: torch.randn(*s, dtype=torch.bfloat16) * 0.8)(Hq * Dh, D) * ((Hq * Dh) ** -0.5)),
        }
    _A_in = _A_setup()

    def _B_setup():
        B, H, Sq, Sk, D, M = 2, 32, 1, 8192, 128, 576
        Dc = 4 * D
        return {
            "x": _w((lambda *s: torch.randn(*s, dtype=torch.bfloat16) * 0.05)(B, Sq, M)),
            "c_kv": _w((lambda *s: torch.randn(*s, dtype=torch.bfloat16) * 1.6)(B, Sk, Dc)),
            "w_q": _w((lambda *s: torch.randn(*s, dtype=torch.bfloat16) * 3.2)(M, H, D) * (M ** -0.5)),
            "w_uk": _w((lambda *s: torch.randn(*s, dtype=torch.bfloat16) * 3.2)(Dc, H, D) * (Dc ** -0.5)),
            "w_uv": _w((lambda *s: torch.randn(*s, dtype=torch.bfloat16) * 1.6)(Dc, H, D) * (Dc ** -0.5)),
            "w_o": _w((lambda *s: torch.randn(*s, dtype=torch.bfloat16) * 1.6)(H, D, M) * ((H * D) ** -0.5)),
        }
    _B_in = _B_setup()

    return {
        "A_x": _A_in["x"],
        "A_k_cache": _A_in["k_cache"],
        "A_v_cache": _A_in["v_cache"],
        "A_wq": _A_in["wq"],
        "A_wo": _A_in["wo"],
        "B_x": _B_in["x"],
        "B_c_kv": _B_in["c_kv"],
        "B_w_q": _B_in["w_q"],
        "B_w_uk": _B_in["w_uk"],
        "B_w_uv": _B_in["w_uv"],
        "B_w_o": _B_in["w_o"],
        "gate_w": _w((lambda *s: torch.randn(*s, dtype=torch.bfloat16) * 0.05)(576) * 16.0),
    }

def reference(A_x, A_k_cache, A_v_cache, A_wq, A_wo, B_x, B_c_kv, B_w_q, B_w_uk, B_w_uv, B_w_o, gate_w):
    def _A_ref(x, k_cache, v_cache, wq, wo):
        B, Sq, D = x.shape
        Hq, Dh = 32, 128
        Hkv = k_cache.shape[1]
        rep = Hq // Hkv
        q = (lambda x, *d: x.permute(*d))((x @ wq).reshape(B, Sq, Hq, Dh), 0, 2, 1, 3)
        k = (lambda x, n, axis: torch.repeat_interleave(x, n, dim=axis))(k_cache, rep, axis=1)
        v = (lambda x, n, axis: torch.repeat_interleave(x, n, dim=axis))(v_cache, rep, axis=1)
        scores = torch.einsum("bhqd,bhkd->bhqk", q, k) * (Dh ** -0.5)
        p = _softmax(scores, axis=-1)
        o = torch.einsum("bhqk,bhkd->bhqd", p, v)
        return (lambda x, *d: x.permute(*d))(o, 0, 2, 1, 3).reshape(B, Sq, Hq * Dh) @ wo

    def _B_ref(x, c_kv, w_q, w_uk, w_uv, w_o):
        B, Sq, M = x.shape[0], x.shape[1], x.shape[2]
        Sk = c_kv.shape[1]
        H, D = w_q.shape[1], w_q.shape[2]
        q = torch.einsum("bqm,mhd->bhqd", x, w_q)
        k = torch.einsum("bkc,chd->bhkd", c_kv, w_uk)
        v = torch.einsum("bkc,chd->bhkd", c_kv, w_uv)
        scores = torch.einsum("bhqd,bhkd->bhqk", q, k) * (D ** -0.5)
        off = Sk - Sq
        qi = torch.arange(Sq)[:, None]
        kj = torch.arange(Sk)[None, :]
        cmask = kj <= (qi + off)
        scores = torch.where(cmask[None, None], scores, -1e9)
        p = _softmax(scores, axis=-1)
        ctx = torch.einsum("bhqk,bhkd->bhqd", p, v)
        return torch.einsum("bhqd,hdm->bqm", ctx, w_o)

    x = A_x
    g = _sigmoid((x * gate_w).sum(-1, keepdims=True))
    a = _A_ref(x, A_k_cache, A_v_cache, A_wq, A_wo)
    b = _B_ref(x, B_c_kv, B_w_q, B_w_uk, B_w_uv, B_w_o)
    return g * a + (1 - g) * b
```

```python
import re
REG = re.compile(r'^(-|abs\(|\|)?([vsa])(?:(\d+)|\[(\d+):(\d+)\])\)?\|?$')
TRANS = ("v_exp_f32","v_log_f32","v_rcp_f32","v_rsq_f32","v_sqrt_f32","v_sin_f32","v_cos_f32","v_rcp_iflag_f32")
def regs(tok):
    tok = tok.strip()
    if tok in ("vcc",): return {("s",106),("s",107)}
    if tok == "vcc_lo": return {("s",106)}
    if tok == "m0": return {("s",124)}
    if tok == "exec": return {("s",126),("s",127)}
    m = REG.match(tok)
    if not m: return set()
    f = m.group(2)
    if m.group(3) is not None: return {(f,int(m.group(3)))}
    return {(f,i) for i in range(int(m.group(4)), int(m.group(5))+1)}
class I:
    def __init__(s, text):
        s.text = text
        t = text.split(";")[0].strip()
        s.label = t.endswith(":")
        s.directive = t.startswith(".")
        parts = t.split(None,1)
        s.op = parts[0] if parts else ""
        ops = []
        if len(parts) > 1:
            for o in parts[1].split(","):
                ops.append(o.strip())
            last = ops[-1].split()
            s.mods = " ".join(last[1:]); ops[-1] = last[0]
        else: s.mods = ""
        s.ops = ops
        op = s.op
        s.valu = op.startswith("v_") and not op.startswith("v_mfma")
        s.mfma = op.startswith("v_mfma")
        s.vmem = op.startswith(("buffer_","global_"))
        s.ds = op.startswith("ds_")
        s.salu = op.startswith("s_")
        s.dpp = "_dpp" in op or "row_" in s.mods or "quad_perm" in s.mods
        s.perml = op.startswith("v_permlane")
        s.rdl = op.startswith(("v_readlane","v_readfirstlane"))
        s.trans = any(op.startswith(x) for x in TRANS)
        s.w = set(); s.r = set(); s.C = set(); s.AB = set(); s.storedata = set()
        R = [regs(o) for o in ops]
        if s.mfma:
            s.w = R[0]; s.AB = R[1]|R[2]; s.C = R[3]; s.r = s.AB|s.C
            s.passes = 8 if "32x32" in op else 4
        elif s.valu:
            if s.perml: s.w = R[0]|R[1]; s.r = R[0]|R[1]
            elif op.startswith("v_cmp"):
                s.w = R[0]; s.r = set().union(*R[1:])
            elif op.startswith(("v_add_co","v_sub_co","v_addc_co","v_subb_co")):
                s.w = R[0]|R[1]; s.r = set().union(*R[2:])
            else:
                s.w = R[0]; s.r = set().union(*R[1:]) if len(R)>1 else set()
                if op.startswith(("v_fmac","v_dot2c","v_writelane","v_pk_fmac")) or s.dpp: s.r |= R[0]
        elif s.vmem:
            allr = set().union(*R) if R else set()
            if "load" in op and " lds" not in (" "+s.mods):
                s.w = R[0]; s.r = set().union(*R[1:])
            elif "load" in op:
                s.r = allr | {("s",124)}
            else:
                s.r = allr
                if op.endswith(("x4","x3")):
                    s.storedata = R[0] if op.startswith("buffer_") else R[1]
        elif s.ds:
            if op.startswith(("ds_read","ds_bpermute","ds_permute","ds_swizzle")): s.w = R[0]; s.r = set().union(*R[1:])
            else: s.r = set().union(*R)
        elif s.salu:
            if op.startswith(("s_cmp","s_waitcnt","s_nop","s_barrier","s_branch","s_cbranch","s_sleep","s_setprio","s_endpgm")):
                s.r = set().union(*R) if R else set()
            else:
                s.w = R[0] if R else set(); s.r = set().union(*R[1:]) if len(R)>1 else set()
    def slots(s):
        if s.label or s.directive or not s.op: return 0
        if s.op == "s_nop": return int(s.ops[0],0)+1
        return 1
def isv(x): return x[0] in "va"
def need(p, c):
    n = 0
    pv = {x for x in p.w if isv(x)}; ps = {x for x in p.w if x[0]=="s"}
    if p.valu:
        if c.mfma and pv & c.r: n = max(n,2)
        if c.valu and c.dpp and pv & c.r: n = max(n,2)
        if c.perml and pv & c.r: n = max(n,2)
        if c.rdl and pv & c.r: n = max(n,1)
        if p.trans and (c.valu or c.mfma or c.vmem or c.ds) and not c.trans and pv & c.r: n = max(n,1)
        if p.trans and c.trans and pv & c.r: n = max(n,1)
        if ps:
            if c.valu and ps & c.r: n = max(n,2)
            if c.valu and c.op.startswith("v_cndmask") and len(c.ops)==4 and ps & regs(c.ops[3]): n = max(n,2)
            if c.vmem and ps & c.r: n = max(n,5)
            if c.salu and ps & c.r: n = max(n,2)
            if c.op.startswith("s_cbranch_vcc") and (("s",106) in ps): n = max(n,2)
    if p.op.startswith('v_dot') and (c.valu or c.mfma or c.vmem or c.ds) and pv & (c.r|c.w):
        if not (c.op == p.op and not (pv & (regs(c.ops[1])|regs(c.ops[2])))): n = max(n,3)
    if p.mfma:
        big = 12 if p.passes == 8 else 8
        if c.mfma:
            if p.w & c.AB: n = max(n,big)
            if p.w & c.C and not (p.w == c.C and p.passes == c.passes): n = max(n, 10 if p.passes==8 else 6)
            if p.w & c.w and not (p.w == c.C and p.passes == c.passes): n = max(n, 10 if p.passes==8 else 6)
        elif (c.valu or c.vmem or c.ds) and p.w & (c.r|c.w): n = max(n,big)
        if c.valu and p.C & c.w: n = max(n, 7 if p.passes==8 else 3)
    if p.salu and ("s",124) in p.w and c.vmem and ("s",124) in c.r: n = max(n,1)
    if p.storedata and (c.valu or c.mfma) and p.storedata & c.w: n = max(n,2)
    if p.storedata and (c.ds or c.vmem) and p.storedata & c.w: n = max(n,1)
    return n
def fix(lines, report=False):
    ins = [I(t) for t in lines]
    added = 0
    def build():
        lab = {}
        for k, c in enumerate(ins):
            if c.label: lab[c.text.split(";")[0].strip()[:-1]] = k
        brs = {}
        for k, c in enumerate(ins):
            if c.op.startswith(("s_branch","s_cbranch")):
                brs.setdefault(lab[c.ops[0]], []).append(k)
            if c.op == "s_call_b64":
                brs.setdefault(lab[c.ops[1]], []).append(k)
        return brs
    brs = build()
    k = 0
    while k < len(ins):
        c = ins[k]
        if c.op and not c.label and not c.directive:
            req = 0
            best = {}
            stack = [(k, 0)]
            while stack:
                j, d = stack.pop()
                preds = []
                if j > 0 and ins[j-1].op not in ("s_branch","s_endpgm","s_setpc_b64"): preds.append(j-1)
                if ins[j].label: preds += brs.get(j, [])
                for p in preds:
                    if best.get(p, 99) <= d: continue
                    best[p] = d
                    q = ins[p]
                    if q.op and not q.label and not q.directive:
                        n = need(q, c)
                        if n > d: req = max(req, n - d)
                    nd = d + q.slots()
                    if nd < 20: stack.append((p, nd))
            if req > 0:
                ins.insert(k, I(f"s_nop {req-1}")); added += req
                brs = build(); k += 1
        k += 1
    if report: print("wait states added:", added)
    return [c.text for c in ins]
```

```python
import sys, json, math, struct
from asmlib import *
from hazard import fix

def f2u(f): return struct.unpack("<I", struct.pack("<f", f))[0]

WS_E, WS_FLAG, WS_QA, WS_QB, WS_QABS, WS_BST, WS_AP, WS_OP, WS_BP, WS_STAMP = \
    0x0, 0x1000, 0x10000, 0x50000, 0x60000, 0x70000, 0x80000, 0xC0000, 0x200000, 0x400000
OOB = 0x40000000
X = 131072
L_PQ, L_QOP, L_GT = X, X + 6144, X + 6656
L_OC, L_MS = X + 8192, X + 16384
L_QS = X + 28672
R1 = 65536
L_PB = X + 16384; L_MX = L_PB + 4608; L_LS = L_PB + 5120
L_OS = 98304
L_WT = X + 16384; L_OCB = L_WT + 1024; L_CP = L_WT + 4096; L_CTX = L_WT + 12544
L_WO = 73728
LDS_BYTES = 163840

class G:
    def __init__(s, W=6, WS=12, stamp=False, hop1="full", mimic=False, rot=0, spin=1 << 17, sleep=1, pf=True):
        s.L = []; s.W = W; s.WS = WS; s.stamp = stamp; s.hop1 = hop1; s.mimic = mimic; s.rot = rot
        s.spin = spin; s.sleep = sleep; s.nlab = 0; s.pf = pf
    def e(s, t):
        for x in t.split("\n"):
            x = x.strip()
            if x: s.L.append(x)
    def lab(s, p="L"):
        s.nlab += 1; return f"{p}_{s.nlab}"
    def st(s, k):
        if s.stamp: s.e(f"s_memrealtime s[{76+2*k}:{77+2*k}]")
    sX, sWS = "s[4:7]", "s[8:11]"
    sW, sLO, sHI, sC, sCnt = "s44", "s45", "s46", "s47", "s48"
    def q(s, r, n=4): return f"v[{r}:{r+n-1}]"

    def spin_init(s): s.e(f"s_mov_b32 {s.sCnt}, {s.spin}")
    def spin_retry(s, label, sleep=None):
        ok = s.lab("L_ok")
        s.e(f"s_cbranch_vccz {ok}")
        s.e(f"s_sub_u32 {s.sCnt}, {s.sCnt}, 1")
        s.e("s_cbranch_scc1 L_end")
        sl = s.sleep if sleep is None else sleep
        if sl: s.e(f"s_sleep {sl}")
        s.e(f"s_branch {label}")
        s.e(f"{ok}:")
    def sentinel_check(s, rs, t):
        rs = list(rs)
        if len(rs) == 1:
            s.e(f"v_cmp_eq_u32 vcc, -1, v{rs[0]}"); return
        if len(rs) == 2: s.e(f"v_max_u32 v{t}, v{rs[0]}, v{rs[1]}"); rs = []
        else: s.e(f"v_max3_u32 v{t}, v{rs[0]}, v{rs[1]}, v{rs[2]}"); rs = rs[3:]
        while len(rs) >= 2: s.e(f"v_max3_u32 v{t}, v{t}, v{rs[0]}, v{rs[1]}"); rs = rs[2:]
        if rs: s.e(f"v_max_u32 v{t}, v{t}, v{rs[0]}")
        s.e(f"v_cmp_eq_u32 vcc, -1, v{t}")
    def xreduce(s, op, v, t, which=(32, 16)):
        for k in which:
            s.e(f"v_mov_b32 v{t}, v{v}")
            s.e(f"v_permlane{k}_swap_b32 v{t}, v{v}")
            s.e(f"{op} v{v}, v{t}, v{v}")
    def dppreduce(s, op, v, rors):
        for r in rors: s.e(f"{op}_dpp v{v}, v{v}, v{v} row_ror:{r} row_mask:0xf bank_mask:0xf")
    def vlike(s, acc, A, rows, T, init):
        nd = len(rows) // 2
        mf = "v_mfma_f32_16x16x32_bf16" if nd == 4 else "v_mfma_f32_16x16x16_bf16"
        def perms(e_):
            sel = s.sHI if e_ & 1 else s.sLO
            for t in range(nd):
                s.e(f"v_perm_b32 v{T[e_&1]+t}, v{rows[2*t+1]+(e_>>1)}, v{rows[2*t]+(e_>>1)}, {sel}")
        perms(0)
        for e_ in range(8):
            if e_ < 7: perms(e_ + 1)
            c = "0" if init else s.q(acc + 4 * e_)
            s.e(f"{mf} {s.q(acc+4*e_)}, {s.q(A, nd)}, {s.q(T[e_&1], nd)}, {c}")
    def gather0(s, acc, dst):
        for e_ in range(8): s.e(f"v_mov_b32 v{dst+e_}, v{acc+4*e_}")
    def srd(s, base, slot, size):
        s.e(f"s_load_dwordx2 s[{base}:{base+1}], s[0:1], {slot*8}")
        s.post.append(f"s_mov_b32 s{base+2}, {size}"); s.post.append(f"s_mov_b32 s{base+3}, 0x20000")
    def consts(s):
        s.e(f"s_mov_b32 {s.sLO}, 0x05040100\ns_mov_b32 {s.sHI}, 0x07060302")
        s.e(f"s_mov_b32 {s.sC}, {hex(f2u(128**-0.5*math.log2(math.e)))}")
    def code_prefetch(s, vt, vd):
        if not s.pf: return 0
        s.e("s_getpc_b64 s[70:71]\nL_pc_%d:" % s.nlab); l = "L_pc_%d" % s.nlab; s.nlab += 1
        s.e(f"s_lshr_b32 s72, s2, 3\ns_and_b32 s72, s72, 7\ns_mul_i32 s72, s72, {s.pfn*1024}")
        s.e(f"s_sub_u32 s70, s70, {l}-{KNAME}\ns_subb_u32 s71, s71, 0")
        s.e(f"v_lshl_add_u32 v{vt}, v1, 4, s72")
        n = s.pfn
        for k in range(n):
            s.e(f"v_min_u32 v{vd+4}, L_codeend-{KNAME}-16, v{vt}")
            s.e(f"global_load_dwordx4 {s.q(vd)}, v{vd+4}, s[70:71]")
            if k + 1 < n: s.e(f"v_add_u32 v{vt}, 1024, v{vt}")
        return n
    pfn = 3
    def stamps_out(s, n):
        if not s.stamp: return
        s.e("s_waitcnt lgkmcnt(0)")
        s.e("s_getreg_b32 s74, hwreg(HW_REG_XCC_ID)")
        s.e(f"v_mov_b32 v2, 0")
        for k in range(12): s.e(f"v_writelane_b32 v2, s{76+2*k}, {k}")
        s.e("v_writelane_b32 v2, s74, 12")
        s.e(f"s_lshl_b32 s74, s2, 3\ns_add_u32 s74, s74, {s.sW}\ns_lshl_b32 s74, s74, 6\ns_add_u32 s74, s74, {WS_STAMP}")
        s.e("v_lshlrev_b32 v3, 2, v1\ns_mov_b64 exec, 0xffff")
        s.e(f"buffer_store_dword v2, v3, {s.sWS}, s74 offen\ns_waitcnt vmcnt(0)")

    def entry(s):
        e = s.e
        e("s_cmp_ge_u32 s2, 256\ns_cbranch_scc1 L_end")
        s.post = []
        s.srd(4, 0, 2304); s.srd(8, 14, 0x10000000)
        s.common_post = list(s.post)
        if s.stamp:
            for k in range(12): e(f"s_mov_b32 s{76+2*k}, 0")
        s.st(0)
        e("s_cmp_lt_u32 s2, 64\ns_cbranch_scc1 L_B")

    def lane_common(s):
        s.e(f"v_lshrrev_b32 v2, 6, v0\nv_and_b32 v1, 63, v0\nv_readfirstlane_b32 {s.sW}, v2")
        s.e("v_lshrrev_b32 v2, 4, v1\nv_and_b32 v3, 15, v1")

    def roleA(s):
        e = s.e; W = s.W
        sWQ, sK, sV = "s[12:15]", "s[16:19]", "s[20:23]"
        s.post = list(s.common_post)
        s.srd(12, 3, 4718592); s.srd(16, 1, 0x4000000); s.srd(20, 2, 0x4000000)
        for p in s.post: e(p)
        s.lane_common(); s.consts()
        sHkv, sB, sS, sMM, sKb, sLb, sH6, sT0, sT1, sT2, sTag = "s57","s58","s59","s60","s61","s62","s63","s49","s50","s51","s64"
        e(f"""s_sub_u32 {sT0}, s2, 64
        s_and_b32 {sHkv}, {sT0}, 7
        s_lshr_b32 {sMM}, {sT0}, 3
        s_lshl_b32 {sHkv}, {sHkv}, 1
        s_cmp_ge_u32 {sMM}, 12
        s_cselect_b32 {sT1}, 1, 0
        s_cselect_b32 {sT2}, 12, 0
        s_add_u32 {sHkv}, {sHkv}, {sT1}
        s_sub_u32 {sMM}, {sMM}, {sT2}
        s_cmp_ge_u32 {sMM}, 6
        s_cselect_b32 {sB}, 1, 0
        s_cselect_b32 {sT2}, 6, 0
        s_sub_u32 {sS}, {sMM}, {sT2}
        s_mul_i32 {sT0}, {sS}, 43
        s_cmp_eq_u32 {sS}, 5
        s_cselect_b32 {sT1}, 1, 0
        s_sub_u32 {sT0}, {sT0}, {sT1}
        s_add_u32 {sT0}, {sT0}, {s.sW}
        s_lshl_b32 {sT0}, {sT0}, 13
        s_lshl_b32 {sKb}, {sB}, 4
        s_add_u32 {sKb}, {sKb}, {sHkv}
        s_lshl_b32 {sKb}, {sKb}, 21
        s_add_u32 {sKb}, {sKb}, {sT0}
        s_cmp_lt_u32 {sS}, 4
        s_cselect_b32 {sT0}, 3, 2
        s_cmp_lt_u32 {s.sW}, {sT0}
        s_cselect_b32 {sH6}, 1, 0
        s_lshl_b32 {sLb}, {s.sW}, 14""")
        vKoff, vVoff, vKrd = 4, 8, 12
        vM, vL, vAl, vNm, vA2, vt, vu = 9, 10, 11, 16, 17, 18, 19
        vQ, vS, vP, vT0, vT1 = 20, 36, 44, 48, 52
        vKa, vAcc, vV = 56, 88, 120
        vWoff, vXoff, vXa = 16, 17, 44
        e(f"""v_lshlrev_b32 v{vVoff}, 4, v1
        v_lshlrev_b32 v{vt}, 2, v2
        v_xor_b32 v{vt}, v{vt}, v3
        v_lshlrev_b32 v{vt}, 4, v{vt}
        v_lshl_or_b32 v{vKoff}, v2, 8, v{vt}
        v_xor_b32 v{vKoff+1}, 16, v{vKoff}
        v_xor_b32 v{vKoff+2}, 32, v{vKoff}
        v_xor_b32 v{vKoff+3}, 48, v{vKoff}
        v_lshlrev_b32 v{vWoff}, 4, v3
        v_lshl_or_b32 v{vWoff}, v2, 15, v{vWoff}
        v_bfe_u32 v{vXoff}, v1, 2, 1
        v_mul_u32_u24 v{vXoff}, 1152, v{vXoff}
        v_lshl_add_u32 v{vXoff}, v2, 3, v{vXoff}""")
        def kload(i, j, w=None):
            if j % 4 == 0:
                e(f"s_add_u32 {sT0}, {sKb}, {i*65536 + (j>>2)*4096}\ns_add_u32 m0, {sLb}, {(i&1)*8192 + (j>>2)*4096}")
            if w is not None: e(f"s_waitcnt vmcnt({w-1})")
            e(f"buffer_load_dwordx4 v{vKoff+(j&3)}, {sK}, {sT0} offen offset:{(j&3)*1024} nt lds")
        def vload(i, j, w=None):
            if j % 4 == 0: e(f"s_add_u32 {sT1}, {sKb}, {i*65536 + (j>>2)*4096}")
            if w is not None: e(f"s_waitcnt vmcnt({w-1})")
            e(f"buffer_load_dwordx4 {s.q(vV+(i&1)*32+4*j)}, v{vVoff}, {sV}, {sT1} offen offset:{(j&3)*1024} nt")
        NPRE = min(W, 8)
        e(f"s_cmp_ge_u32 {s.sW}, 6\ns_cbranch_scc1 L_A_w67")
        e(f"""s_mul_i32 {sT0}, {sS}, 96
        s_lshl_b32 {sT1}, {s.sW}, 4
        s_add_u32 {sT0}, {sT0}, {sT1}
        s_lshl_b32 {sT1}, {sT0}, 1
        s_lshl_b32 {sT0}, {sT0}, 13
        s_lshl_b32 {sT2}, {sHkv}, 1
        s_add_u32 {sT2}, {sT2}, {sB}
        s_lshl_b32 {sT2}, {sT2}, 8
        s_add_u32 {sT2}, {sT2}, {sT0}
        s_waitcnt lgkmcnt(0)""")
        for jj in range(4):
            e(f"buffer_load_dwordx4 {s.q(vKa+4*jj)}, v{vWoff}, {sWQ}, {sT2} offen nt")
            if jj < 3: e(f"s_add_u32 {sT2}, {sT2}, 8192")
        e(f"buffer_load_dwordx2 {s.q(vXa,2)}, v{vXoff}, {s.sX}, {sT1} offen")
        for j in range(NPRE): kload(0, j)
        s.st(1)
        e(f"v_bfe_u32 v{vt}, v1, 4, 1\nv_lshlrev_b32 v{vt}, 9, v{vt}\nv_lshl_add_u32 v{vt}, v3, 5, v{vt}")
        e(f"s_lshl_b32 {sT2}, {s.sW}, 10\ns_add_u32 {sT2}, {sT2}, {L_PQ}\nv_add_u32 v{vt}, {sT2}, v{vt}")
        e(f"s_waitcnt vmcnt({NPRE})")
        s.vlike(vAcc, vXa, [vKa+4*j for j in range(4)], (vT0, vT1), True)
        s.gather0(vAcc, vS)
        e(f"ds_write_b128 v{vt}, {s.q(vS)}\nds_write_b128 v{vt}, {s.q(vS+4)} offset:16\ns_waitcnt lgkmcnt(0)")
        e("s_branch L_A_b1")
        e("L_A_w67:")
        e(f"s_waitcnt lgkmcnt(0)\ns_cmp_eq_u32 {s.sW}, 7\ns_cbranch_scc1 L_A_svc")
        s.code_prefetch(vt, vKa)
        for j in range(NPRE): kload(0, j)
        e("L_A_b1:")
        s.st(2)
        e("s_barrier")
        for j in range(NPRE, 8): kload(0, j, W)
        for j in range(8): vload(0, j, W)
        for j in range(8): kload(1, j, W)
        for j in range(8): vload(1, j, W)
        e("s_branch L_A_b2")
        e("L_A_svc:")
        vE, vZ, vSn = vKa, vKa+1, vKa+4
        sQA, sAP = "s65", "s66"
        e(f"""v_mov_b32 v{vZ}, 0
        buffer_load_dword v{vE}, v{vZ}, {s.sWS}, 0 offen sc1
        v_mov_b32 v{vSn}, -1
        v_mov_b32 v{vSn+1}, -1
        v_mov_b32 v{vSn+2}, -1
        v_mov_b32 v{vSn+3}, -1
        s_mul_i32 {sT0}, {sHkv}, 12
        s_add_u32 {sT1}, {sT0}, {sMM}
        s_lshl_b32 {sQA}, {sT1}, 10
        s_add_u32 {sQA}, {sQA}, {WS_QA}
        buffer_store_dwordx4 {s.q(vSn)}, v{vVoff}, {s.sWS}, {sQA} offen sc1
        v_lshlrev_b32 v{vt}, 12, v2
        v_lshl_add_u32 v{vu}, v3, 4, v{vt}
        s_lshl_b32 {sAP}, {sHkv}, 14
        s_add_u32 {sAP}, {sAP}, {WS_AP}
        s_lshl_b32 {sT2}, {sS}, 1
        s_add_u32 {sT2}, {sT2}, {sB}
        s_lshl_b32 s67, {sT2}, 8
        s_add_u32 s67, s67, {sAP}
        buffer_store_dwordx4 {s.q(vSn)}, v{vu}, {s.sWS}, s67 offen sc1
        s_lshl_b32 s67, {sT2}, 2
        s_add_u32 s67, s67, {sAP}
        buffer_store_dword v{vSn}, v{vt}, {s.sWS}, s67 offen offset:3072 sc1
        s_add_u32 {sT1}, {sT1}, 64
        s_lshl_b32 {sT1}, {sT1}, 7
        s_add_u32 {sT1}, {sT1}, {WS_FLAG}
        s_mov_b32 s67, 0x9e3779b1
        s_waitcnt vmcnt(0)
        v_mul_lo_u32 v{vE}, v{vE}, s67
        v_add_u32 v{vE}, 0x7f4a7c15, v{vE}
        s_mov_b64 exec, 1
        buffer_store_dword v{vE}, v{vZ}, {s.sWS}, {sT1} offen sc1
        s_mov_b64 exec, -1""")
        s.st(1)
        e("s_barrier")
        s.st(2)
        vR = vV
        e(f"v_add_u32 v{vt}, {L_PQ}, v{vVoff}")
        for t in range(6): e(f"ds_read_b128 {s.q(vR+4*t)}, v{vt} offset:{t*1024}")
        e("s_waitcnt lgkmcnt(0)")
        def sum6():
            for k in range(4):
                e(f"v_add_f32 v{vR+k}, v{vR+k}, v{vR+4+k}\nv_add_f32 v{vR+8+k}, v{vR+8+k}, v{vR+12+k}\nv_add_f32 v{vR+16+k}, v{vR+16+k}, v{vR+20+k}")
            for k in range(4):
                e(f"v_add_f32 v{vR+k}, v{vR+k}, v{vR+8+k}\nv_add_f32 v{vR+k}, v{vR+k}, v{vR+16+k}")
        sum6()
        for k in range(4): e(f"v_min_u32 v{vR+k}, -2, v{vR+k}")
        e(f"buffer_store_dwordx4 {s.q(vR)}, v{vVoff}, {s.sWS}, {sQA} offen sc1")
        e(f"""v_min_u32 v{vt}, 11, v1
        v_lshlrev_b32 v{vt}, 7, v{vt}
        s_add_u32 {sT1}, {sT0}, 64
        s_lshl_b32 {sT1}, {sT1}, 7
        s_add_u32 {sT1}, {sT1}, {WS_FLAG}""")
        s.spin_init()
        e(f"L_A_vf:\nbuffer_load_dword v{vu}, v{vt}, {s.sWS}, {sT1} offen sc1\ns_waitcnt vmcnt(0)\nv_cmp_ne_u32 vcc, v{vu}, v{vE}")
        s.spin_retry("L_A_vf")
        s.st(3)
        e(f"""v_lshrrev_b32 v{vt}, 5, v1
        v_mul_u32_u24 v{vt}, 6144, v{vt}
        v_and_b32 v{vu}, 31, v1
        v_lshl_add_u32 v{vt}, v{vu}, 4, v{vt}
        s_lshl_b32 {sT1}, {sT0}, 10
        s_lshl_b32 {sT2}, {sB}, 9
        s_add_u32 {sT1}, {sT1}, {sT2}
        s_add_u32 {sT1}, {sT1}, {WS_QA}
        s_add_u32 {sT2}, {sT1}, 4096""")
        e("L_A_pq:")
        for t in range(6): e(f"buffer_load_dwordx4 {s.q(vR+4*t)}, v{vt}, {s.sWS}, {sT1 if t<4 else sT2} offen offset:{(t&3)*1024} sc1")
        e("s_waitcnt vmcnt(0)")
        s.sentinel_check(range(vR, vR+24), vu)
        s.spin_retry("L_A_pq")
        s.st(4)
        sum6()
        e(f"""v_cvt_pk_bf16_f32 v{vR}, v{vR}, v{vR+1}
        v_cvt_pk_bf16_f32 v{vR+1}, v{vR+2}, v{vR+3}
        v_lshlrev_b32 v{vt}, 3, v1
        v_add_u32 v{vt}, {L_QOP}, v{vt}
        ds_write_b64 v{vt}, {s.q(vR,2)}
        s_waitcnt lgkmcnt(0)""")
        n = 0
        for fn, i in ((kload,0),(vload,0),(kload,1),(vload,1)):
            for j in range(8):
                fn(i, j, s.WS if n >= s.WS else None); n += 1
        e("L_A_b2:")
        e(f"""v_xor_b32 v{vt}, v2, v3
        v_lshlrev_b32 v{vt}, 4, v{vt}
        v_and_b32 v{vu}, 3, v3
        v_lshl_or_b32 v{vt}, v{vu}, 10, v{vt}
        v_lshrrev_b32 v{vu}, 2, v3
        v_lshl_or_b32 v{vt}, v{vu}, 8, v{vt}
        v_add_u32 v{vKrd}, {sLb}, v{vt}
        v_xor_b32 v{vKrd+1}, 64, v{vKrd}
        v_xor_b32 v{vKrd+2}, 0x80, v{vKrd}
        v_xor_b32 v{vKrd+3}, 0xc0, v{vKrd}
        v_and_b32 v{vu}, 1, v{vu}
        v_lshlrev_b32 v{vu}, 8, v{vu}
        v_lshl_add_u32 v{vu}, v2, 4, v{vu}
        v_add_u32 v{vu}, {L_QOP}, v{vu}""")
        s.st(5)
        e("s_barrier")
        s.st(6)
        for kk in range(4): e(f"ds_read_b128 {s.q(vQ+4*kk)}, v{vu} offset:{kk*64}")
        def cond_wait(n_if_not6):
            l = s.lab("L_cw")
            e(f"s_cmp_lg_u32 {sH6}, 0\ns_cbranch_scc1 {l}\ns_waitcnt vmcnt({n_if_not6})\n{l}:")
        for i in range(6):
            if i == 5: e(f"s_cmp_eq_u32 {sH6}, 0\ns_cbranch_scc1 L_A_fin")
            e(f"s_waitcnt vmcnt({24 if i < 5 else 8})")
            if i == 4: cond_wait(8)
            for blk in range(2):
                for kk in range(4):
                    e(f"ds_read_b128 {s.q(vKa+16*blk+4*kk)}, v{vKrd+kk} offset:{(i&1)*8192+blk*4096}")
            e("s_waitcnt lgkmcnt(0)")
            for kk in range(4):
                for blk in range(2):
                    c = "0" if kk == 0 else s.q(vS+4*blk)
                    e(f"v_mfma_f32_16x16x32_bf16 {s.q(vS+4*blk)}, {s.q(vKa+16*blk+4*kk)}, {s.q(vQ+4*kk)}, {c}")
            if i + 2 < 5:
                for j in range(8): kload(i+2, j, W)
            elif i + 2 == 5:
                l = s.lab("L_k5"); e(f"s_cmp_eq_u32 {sH6}, 0\ns_cbranch_scc1 {l}")
                for j in range(8): kload(5, j)
                e(f"{l}:")
            if s.mimic:
                for k in range(4): e(f"v_cvt_pk_bf16_f32 v{vP+k}, v{vS+2*k}, v{vS+2*k+1}")
                for k in range(4): e(f"v_lshlrev_b32 v{vS+2*k}, 16, v{vP+k}\nv_and_b32 v{vS+2*k+1}, 0xffff0000, v{vP+k}")
                for k in range(8): e(f"v_mul_f32 v{vS+k}, {hex(f2u(128**-0.5))}, v{vS+k}")
                for k in range(4): e(f"v_cvt_pk_bf16_f32 v{vP+k}, v{vS+2*k}, v{vS+2*k+1}")
                for k in range(4): e(f"v_lshlrev_b32 v{vS+2*k}, 16, v{vP+k}\nv_and_b32 v{vS+2*k+1}, 0xffff0000, v{vP+k}")
            sC = s.sC if not s.mimic else "s68"
            if s.mimic and i == 0: e(f"s_mov_b32 s68, {hex(f2u(math.log2(math.e)))}")
            e(f"v_max3_f32 v{vt}, v{vS}, v{vS+1}, v{vS+2}\nv_max3_f32 v{vt}, v{vt}, v{vS+3}, v{vS+4}\nv_max3_f32 v{vt}, v{vt}, v{vS+5}, v{vS+6}")
            if i == 0: e(f"v_max_f32 v{vt}, v{vt}, v{vS+7}")
            else: e(f"v_max3_f32 v{vt}, v{vt}, v{vS+7}, v{vM}")
            s.xreduce("v_max_f32", vt, vu)
            e(f"v_mul_f32 v{vNm}, {sC}, v{vt}")
            if i > 0: e(f"v_fma_f32 v{vAl}, v{vM}, {sC}, -v{vNm}\nv_exp_f32 v{vAl}, v{vAl}")
            e(f"v_mov_b32 v{vM}, v{vt}")
            for k in range(8): e(f"v_fma_f32 v{vS+k}, v{vS+k}, {sC}, -v{vNm}")
            if i > 0:
                e(f"v_mov_b32_dpp v{vA2}, v{vAl} row_newbcast:0 row_mask:0x5 bank_mask:0xf\nv_mov_b32_dpp v{vA2}, v{vAl} row_newbcast:4 row_mask:0xa bank_mask:0xf")
            for k in range(8): e(f"v_exp_f32 v{vS+k}, v{vS+k}")
            if i > 0:
                for k in range(8): e(f"v_mul_f32 v{vAcc+4*k}, v{vA2}, v{vAcc+4*k}")
            for k in range(4): e(f"v_cvt_pk_bf16_f32 v{vP+k}, v{vS+2*k}, v{vS+2*k+1}")
            e(f"v_add_f32 v{vS}, v{vS}, v{vS+1}\nv_add_f32 v{vS+2}, v{vS+2}, v{vS+3}\nv_add_f32 v{vS+4}, v{vS+4}, v{vS+5}\nv_add_f32 v{vS+6}, v{vS+6}, v{vS+7}")
            e(f"v_add_f32 v{vS}, v{vS}, v{vS+2}\nv_add_f32 v{vS+4}, v{vS+4}, v{vS+6}\nv_add_f32 v{vS}, v{vS}, v{vS+4}")
            if i == 0: e(f"v_mov_b32 v{vL}, v{vS}")
            else: e(f"v_fma_f32 v{vL}, v{vL}, v{vAl}, v{vS}")
            e(f"s_waitcnt vmcnt({[24,24,24,16,16,0][i]})")
            if i == 4: cond_wait(0)
            s.vlike(vAcc, vP, [vV+(i&1)*32+4*j for j in range(8)], (vT0, vT1), i == 0)
            if i + 2 < 5:
                for j in range(8): vload(i+2, j, W)
            elif i + 2 == 5:
                l = s.lab("L_v5"); e(f"s_cmp_eq_u32 {sH6}, 0\ns_cbranch_scc1 {l}")
                for j in range(8): vload(5, j)
                e(f"{l}:")
            if i == 0: s.st(7)
        e("L_A_fin:")
        s.st(8)
        sCm = s.sC if not s.mimic else "s68"
        s.xreduce("v_add_f32", vL, vu)
        e(f"""v_mul_f32 v{vM}, {sCm}, v{vM}
        v_bfe_u32 v{vt}, v1, 4, 1
        v_lshlrev_b32 v{vt}, 9, v{vt}
        v_lshl_add_u32 v{vt}, v3, 5, v{vt}
        s_lshl_b32 {sT2}, {s.sW}, 10
        s_add_u32 {sT2}, {sT2}, {L_OC}
        v_add_u32 v{vt}, {sT2}, v{vt}
        v_bfe_u32 v{vu}, v1, 2, 1
        v_lshlrev_b32 v{vu}, 5, v{vu}
        s_lshl_b32 {sT2}, {s.sW}, 2
        s_add_u32 {sT2}, {sT2}, {L_MS}
        v_add_u32 v{vu}, {sT2}, v{vu}
        ds_write2_b32 v{vu}, v{vM}, v{vL} offset0:0 offset1:16""")
        s.gather0(vAcc, vS)
        e(f"ds_write_b128 v{vt}, {s.q(vS)}\nds_write_b128 v{vt}, {s.q(vS+4)} offset:16")
        e(f"""s_lshl_b32 {sT2}, {s.sW}, 8
        s_add_u32 {sT2}, {sT2}, {L_OC}
        v_lshl_add_u32 v{vt}, v1, 2, {sT2}
        s_lshr_b32 {sT2}, {s.sW}, 1
        s_lshl_b32 {sT2}, {sT2}, 5
        s_add_u32 {sT2}, {sT2}, {L_MS}
        v_and_b32 v{vu}, 7, v1
        v_lshl_add_u32 v{vu}, v{vu}, 2, {sT2}
        s_lshl_b32 {sT0}, {sHkv}, 2
        s_add_u32 {sT0}, {sT0}, {s.sW}
        s_lshl_b32 {sT0}, {sT0}, 12
        s_add_u32 {sT0}, {sT0}, {WS_AP}
        s_lshl_b32 {sT2}, {sS}, 1
        s_add_u32 {sT2}, {sT2}, {sB}
        s_lshl_b32 {sT1}, {sT2}, 2
        s_add_u32 {sT1}, {sT1}, {sT0}
        s_lshl_b32 {sT2}, {sT2}, 8
        s_add_u32 {sT0}, {sT0}, {sT2}
        s_waitcnt lgkmcnt(0)
        s_barrier""")
        s.st(9)
        e(f"s_cmp_ge_u32 {s.sW}, 4\ns_cbranch_scc1 L_A_done")
        e(f"ds_read2_b32 {s.q(vP,2)}, v{vu} offset0:0 offset1:16")
        for k in range(8): e(f"ds_read_b32 v{vS+k}, v{vt} offset:{k*1024}")
        e("s_waitcnt lgkmcnt(8)")
        D = "row_mask:0xf bank_mask:0xf"
        e(f"""v_max_f32_dpp v{vM}, v{vP}, v{vP} quad_perm:[1,0,3,2] {D}
        v_max_f32_dpp v{vM}, v{vM}, v{vM} quad_perm:[2,3,0,1] {D}
        v_max_f32_dpp v{vM}, v{vM}, v{vM} row_half_mirror {D}
        v_sub_f32 v{vP}, v{vP}, v{vM}
        v_exp_f32 v{vP}, v{vP}
        v_mul_f32 v{vL}, v{vP}, v{vP+1}
        v_add_f32_dpp v{vL}, v{vL}, v{vL} quad_perm:[1,0,3,2] {D}
        v_add_f32_dpp v{vL}, v{vL}, v{vL} quad_perm:[2,3,0,1] {D}
        v_add_f32_dpp v{vL}, v{vL}, v{vL} row_half_mirror {D}
        v_rcp_f32 v{vAl}, v{vL}
        v_log_f32 v{vL}, v{vL}
        v_lshlrev_b32 v{vt}, 2, v1
        v_mul_f32 v{vP}, v{vP}, v{vAl}
        v_add_f32 v{vL}, v{vL}, v{vM}
        s_waitcnt lgkmcnt(0)
        v_mul_f32_dpp v{vA2}, v{vP}, v{vS} row_newbcast:0 {D}""")
        for k in range(1, 8): e(f"v_fmac_f32_dpp v{vA2}, v{vP}, v{vS+k} row_newbcast:{k} {D}")
        e(f"""v_min_u32 v{vL}, -2, v{vL}
        v_min_u32 v{vA2}, -2, v{vA2}
        buffer_store_dword v{vA2}, v{vt}, {s.sWS}, {sT0} offen sc1
        s_mov_b64 exec, 1
        buffer_store_dword v{vL}, v{vt}, {s.sWS}, {sT1} offen offset:3072 sc1
        s_mov_b64 exec, -1""")
        e("L_A_done:")
        s.st(10)
        s.stamps_out(11)
        e("s_endpgm")

    def roleB(s):
        e = s.e
        sWQ, sUK, sCK, sUV, sWO2, sWO, sG, sOUT = "s[12:15]","s[16:19]","s[20:23]","s[24:27]","s[28:31]","s[32:35]","s[36:39]","s[40:43]"
        e("L_B:")
        s.post = list(s.common_post)
        s.srd(12, 7, 4718592); s.srd(16, 8, 4194304); s.srd(20, 6, 16777216); s.srd(24, 9, 4194304)
        s.srd(28, 10, 4718592); s.srd(32, 4, 4718592); s.srd(36, 11, 1152); s.srd(40, 12, 2304)
        for p in s.post: e(p)
        s.lane_common(); s.consts()
        sH, sHalf, sJ, sAb, sSp, sCb, sT0, sT1, sT2, sT3, sHo, sTl = "s57","s58","s59","s60","s61","s62","s49","s50","s51","s52","s63","s64"
        e(f"""s_and_b32 {sT0}, s2, 7
        s_lshr_b32 {sT1}, s2, 3
        s_lshr_b32 {sH}, {sT1}, 1
        s_lshl_b32 {sT2}, {sT0}, 2
        s_add_u32 {sH}, {sH}, {sT2}
        s_and_b32 {sHalf}, {sT1}, 1
        s_lshl_b32 {sJ}, {sH}, 1
        s_add_u32 {sJ}, {sJ}, {sHalf}
        s_and_b32 {sAb}, {sT0}, 1
        s_lshr_b32 {sSp}, {sT0}, 1
        s_lshl_b32 {sSp}, {sSp}, 3
        s_add_u32 {sSp}, {sSp}, {sT1}
        s_lshl_b32 {sCb}, {sAb}, 23
        s_lshl_b32 {sT2}, {sSp}, 18
        s_add_u32 {sCb}, {sCb}, {sT2}
        s_lshl_b32 {sT2}, {s.sW}, 13
        s_add_u32 {sCb}, {sCb}, {sT2}
        s_lshl_b32 {sHo}, {sH}, 8""")
        vL16, vt, vu, vD, vUo = 4, 5, 6, 7, 8
        vG0, vG1, vTag = 12, 13, 14
        vCrd, vTr = 16, 20
        vMq, vLq, vMp, vAq, vAp, vNm, vPw, vPr, vXw, vXq, vXp = 24,25,26,27,28,29,30,31,9,10,11
        vS, vT0, vT1 = 32, 36, 40
        vP = 44
        vCa = 60
        vO = 92
        vUV = 124
        vQ = 156
        vWq, vXa = 156, 44
        e(f"""v_lshlrev_b32 v{vL16}, 4, v1
        s_and_b32 {sT2}, {s.sW}, 1
        s_mul_i32 {sT2}, {sT2}, 48
        v_xor_b32 v{vD}, {sT2}, v{vL16}
        v_xor_b32 v{vt}, v2, v3
        v_lshlrev_b32 v{vt}, 4, v{vt}
        v_lshl_or_b32 v{vUo}, v2, 13, v{vt}
        v_lshrrev_b32 v{vt}, 5, v1
        v_lshlrev_b32 v{vt}, 15, v{vt}
        v_and_b32 v{vu}, 31, v1
        v_lshl_add_u32 v{vXw}, v{vu}, 4, v{vt}""")
        def uk_dma():
            e(f"""s_lshl_b32 {sT0}, {sHalf}, 8
            s_lshl_b32 {sT1}, {s.sW}, 5
            s_add_u32 {sT0}, {sT0}, {sT1}
            s_lshl_b32 {sT0}, {sT0}, 13
            s_add_u32 {sT0}, {sT0}, {sHo}
            s_lshl_b32 {sT1}, {s.sW}, 13
            s_add_u32 {sT1}, {sT1}, {R1}""")
            for j in range(8):
                e(f"s_add_u32 m0, {sT1}, {j*1024}\nv_xor_b32 v{vu}, {(j&3)<<6}, v{vUo}")
                e(f"buffer_load_dwordx4 v{vu}, {sUK}, {sT0} offen nt lds")
                if j < 7: e(f"s_add_u32 {sT0}, {sT0}, 32768")
        def tile_dma(soff, slot_s):
            for j in range(8):
                if j == 0: e(f"s_mov_b32 m0, {slot_s}")
                if j == 4: e(f"s_add_u32 m0, {slot_s}, 4096\ns_add_u32 {sT3}, {soff}, 4096")
                e(f"v_xor_b32 v{vu}, {(4*(j&3)+2*(j>>2))<<4}, v{vD}")
                e(f"buffer_load_dwordx4 v{vu}, {sCK}, {soff if j<4 else sT3} offen offset:{(j&3)*1024} nt lds")
        e(f"s_cmp_ge_u32 {s.sW}, 6\ns_cbranch_scc1 L_B_w67")
        e(f"""v_lshlrev_b32 v{vt}, 4, v3
        v_lshl_or_b32 v{vt}, v2, 15, v{vt}
        v_bfe_u32 v{vu}, v1, 2, 1
        v_mul_u32_u24 v{vu}, 1152, v{vu}
        v_lshl_add_u32 v{vu}, v2, 3, v{vu}
        s_mul_i32 {sT0}, {sHalf}, 288
        s_mul_i32 {sT1}, {s.sW}, 48
        s_add_u32 {sT0}, {sT0}, {sT1}
        s_lshl_b32 {sT1}, {sT0}, 1
        s_lshl_b32 {sT0}, {sT0}, 13
        s_add_u32 {sT0}, {sT0}, {sHo}
        s_setprio 3
        s_waitcnt lgkmcnt(0)""")
        for st_ in range(3): e(f"buffer_load_dwordx2 {s.q(vXa+2*st_,2)}, v{vu}, {s.sX}, {sT1} offen offset:{st_*32}")
        for k in range(12):
            e(f"buffer_load_dwordx4 {s.q(vWq+4*k)}, v{vt}, {sWQ}, {sT0} offen nt")
            if k % 4 < 3: e(f"s_add_u32 {sT0}, {sT0}, 8192")
            elif k < 11: e(f"s_add_u32 {sT0}, {sT0}, {13*8192}")
        e("s_setprio 2")
        uk_dma()
        e("s_setprio 0")
        s.st(1)
        e(f"v_bfe_u32 v{vt}, v1, 4, 1\nv_lshlrev_b32 v{vt}, 9, v{vt}\nv_lshl_add_u32 v{vt}, v3, 5, v{vt}")
        e(f"s_lshl_b32 {sT2}, {s.sW}, 10\ns_add_u32 {sT2}, {sT2}, {L_PQ}\nv_add_u32 v{vt}, {sT2}, v{vt}")
        for st_ in range(3):
            e(f"s_waitcnt vmcnt({8 + 4*(2-st_)})")
            s.vlike(vO, vXa+2*st_, [vWq+16*st_+4*j for j in range(4)], (vT0, vT1), st_ == 0)
        s.gather0(vO, vP)
        e(f"ds_write_b128 v{vt}, {s.q(vP)}\nds_write_b128 v{vt}, {s.q(vP+4)} offset:16\ns_waitcnt lgkmcnt(0)")
        e("s_branch L_B_b1")
        e("L_B_w67:")
        e(f"s_waitcnt lgkmcnt(0)\ns_cmp_eq_u32 {s.sW}, 7\ns_cbranch_scc1 L_B_svc")
        npf = s.code_prefetch(vt, vCa)
        e(f"""v_and_b32 v{vt}, 31, v1
        v_mul_u32_u24 v{vt}, 36, v{vt}
        v_lshrrev_b32 v{vu}, 5, v1
        v_mul_u32_u24 v{vu}, 1152, v{vu}
        v_add_u32 v{vu}, v{vu}, v{vt}
        buffer_load_dwordx4 {s.q(vQ)}, v{vu}, {s.sX}, 0 offen
        buffer_load_dwordx4 {s.q(vQ+4)}, v{vu}, {s.sX}, 0 offen offset:16
        buffer_load_dword v{vQ+8}, v{vu}, {s.sX}, 0 offen offset:32
        buffer_load_dwordx4 {s.q(vQ+12)}, v{vt}, {sG}, 0 offen
        buffer_load_dwordx4 {s.q(vQ+16)}, v{vt}, {sG}, 0 offen offset:16
        buffer_load_dword v{vQ+20}, v{vt}, {sG}, 0 offen offset:32
        s_setprio 2""")
        uk_dma()
        e(f"s_setprio 0\nv_mov_b32 v{vS}, 0\ns_waitcnt vmcnt(8)")
        for k in range(9): e(f"v_dot2c_f32_bf16 v{vS}, v{vQ+k}, v{vQ+12+k}")
        s.dppreduce("v_add_f32", vS, (8, 4, 2, 1))
        s.xreduce("v_add_f32", vS, vt, (16,))
        e(f"""v_mul_f32 v{vS}, {hex(f2u(-math.log2(math.e)))}, v{vS}
        v_exp_f32 v{vS}, v{vS}
        v_lshrrev_b32 v{vt}, 5, v1
        v_add_f32 v{vS}, 1.0, v{vS}
        v_rcp_f32 v{vS}, v{vS}
        v_lshlrev_b32 v{vt}, 2, v{vt}
        v_add_u32 v{vt}, {L_GT}, v{vt}
        ds_write_b32 v{vt}, v{vS}
        s_waitcnt lgkmcnt(0)""")
        e("L_B_b1:")
        s.st(2)
        e("s_barrier")
        e(f"s_lshl_b32 {sT2}, {s.sW}, 13")
        tile_dma(sCb, sT2)
        e(f"v_mov_b32 v{vt}, {L_GT}\nds_read_b128 {s.q(vG0)}, v{vt}\ns_waitcnt lgkmcnt(0)")
        e("s_branch L_B_b2")
        e("L_B_svc:")
        vE, vZ, vSn, vR = vCa, vCa+1, vCa+4, vQ
        sQB, sQS = "s65", "s66"
        e(f"""v_mov_b32 v{vZ}, 0
        buffer_load_dword v{vE}, v{vZ}, {s.sWS}, 0 offen sc1
        v_mov_b32 v{vSn}, -1
        v_mov_b32 v{vSn+1}, -1
        v_mov_b32 v{vSn+2}, -1
        v_mov_b32 v{vSn+3}, -1
        s_lshl_b32 {sQB}, {sJ}, 10
        s_add_u32 {sQB}, {sQB}, {WS_QB}
        buffer_store_dwordx4 {s.q(vSn)}, v{vL16}, {s.sWS}, {sQB} offen sc1
        v_and_b32 v{vu}, 31, v1
        s_lshl_b32 {sQS}, {sJ}, 9
        s_add_u32 {sQS}, {sQS}, {WS_QABS}
        buffer_store_dwordx4 {s.q(vSn)}, v{vXw}, {s.sWS}, {sQS} offen sc1
        v_lshlrev_b32 v{vu}, 8, v{vu}
        s_lshl_b32 {sT0}, {sAb}, 5
        s_add_u32 {sT0}, {sT0}, {sSp}
        s_lshl_b32 {sT0}, {sT0}, 2
        s_add_u32 {sT0}, {sT0}, {WS_BST}
        buffer_store_dword v{vSn}, v{vu}, {s.sWS}, {sT0} offen sc1
        v_lshrrev_b32 v{vt}, 2, v1
        v_lshlrev_b32 v{vt}, 12, v{vt}
        v_and_b32 v{vu}, 3, v1
        v_lshl_add_u32 v{vt}, v{vu}, 4, v{vt}
        s_lshl_b32 {sT0}, {sJ}, 6
        s_add_u32 {sT0}, {sT0}, {WS_OP}""")
        for i in range(5):
            if i == 4: e("s_mov_b32 exec_hi, 0")
            e(f"buffer_store_dwordx4 {s.q(vSn)}, v{vt}, {s.sWS}, {sT0} offen sc1")
            if i < 4: e(f"s_add_u32 {sT0}, {sT0}, 65536")
        e(f"""s_mov_b64 exec, -1
        s_lshl_b32 {sT1}, {sJ}, 7
        s_add_u32 {sT1}, {sT1}, {WS_FLAG}
        s_mov_b32 {sT2}, 0x9e3779b1
        s_waitcnt vmcnt(0)
        v_mul_lo_u32 v{vTag}, v{vE}, {sT2}
        v_add_u32 v{vTag}, 0x7f4a7c15, v{vTag}
        v_mov_b32 v{vt}, {L_GT+8}
        s_mov_b64 exec, 1
        buffer_store_dword v{vTag}, v{vZ}, {s.sWS}, {sT1} offen sc1
        ds_write_b32 v{vt}, v{vTag}
        s_mov_b64 exec, -1
        s_setprio 2""")
        uk_dma()
        e("s_setprio 3\ns_waitcnt lgkmcnt(0)")
        s.st(1)
        e("s_barrier")
        s.st(2)
        e(f"v_add_u32 v{vt}, {L_PQ}, v{vL16}")
        for t in range(6): e(f"ds_read_b128 {s.q(vR+4*t)}, v{vt} offset:{t*1024}")
        e("s_waitcnt lgkmcnt(0)")
        for k in range(4):
            e(f"v_add_f32 v{vR+k}, v{vR+k}, v{vR+4+k}\nv_add_f32 v{vR+8+k}, v{vR+8+k}, v{vR+12+k}\nv_add_f32 v{vR+16+k}, v{vR+16+k}, v{vR+20+k}")
        for k in range(4):
            e(f"v_add_f32 v{vR+k}, v{vR+k}, v{vR+8+k}\nv_add_f32 v{vR+k}, v{vR+k}, v{vR+16+k}\nv_min_u32 v{vR+k}, -2, v{vR+k}")
        e(f"buffer_store_dwordx4 {s.q(vR)}, v{vL16}, {s.sWS}, {sQB} offen sc1")
        e(f"v_lshlrev_b32 v{vt}, 7, v1\ns_mov_b32 {sT1}, {WS_FLAG}\ns_xor_b32 {sT0}, {sQB}, 1024")
        s.spin_init()
        e(f"L_B_vf:\nbuffer_load_dword v{vu}, v{vt}, {s.sWS}, {sT1} offen sc1\ns_waitcnt vmcnt(0)\nv_cmp_ne_u32 vcc, v{vu}, v{vTag}")
        s.spin_retry("L_B_vf")
        s.st(3)
        e(f"L_B_pq:\nbuffer_load_dwordx4 {s.q(vR+4)}, v{vL16}, {s.sWS}, {sT0} offen sc1\ns_waitcnt vmcnt(0)")
        s.sentinel_check(range(vR+4, vR+8), vu)
        s.spin_retry("L_B_pq")
        for k in range(4): e(f"v_add_f32 v{vR+k}, v{vR+k}, v{vR+4+k}")
        e(f"""v_cvt_pk_bf16_f32 v{vR}, v{vR}, v{vR+1}
        v_cvt_pk_bf16_f32 v{vR+1}, v{vR+2}, v{vR+3}
        v_lshlrev_b32 v{vt}, 3, v1
        v_add_u32 v{vt}, {L_QOP}, v{vt}
        ds_write_b64 v{vt}, {s.q(vR,2)}
        s_lshl_b32 {sT2}, {s.sW}, 13""")
        tile_dma(sCb, sT2)
        e("s_setprio 0\ns_waitcnt lgkmcnt(0)")
        e("L_B_b2:")
        e(f"""v_bfe_u32 v{vu}, v1, 2, 1
        v_lshlrev_b32 v{vXq}, 9, v{vu}
        v_lshlrev_b32 v{vu}, 8, v{vu}
        v_lshl_add_u32 v{vu}, v2, 4, v{vu}
        v_add_u32 v{vu}, {L_QOP}, v{vu}
        v_xor_b32 v{vt}, v2, v3
        v_lshlrev_b32 v{vt}, 4, v{vt}
        v_lshl_or_b32 v{vt}, v3, 8, v{vt}
        s_lshl_b32 {sT2}, {s.sW}, 13
        s_add_u32 {sT2}, {sT2}, {R1}
        v_add_u32 v{vCrd}, {sT2}, v{vt}
        v_xor_b32 v{vCrd+1}, 64, v{vCrd}
        v_xor_b32 v{vCrd+2}, 0x80, v{vCrd}
        v_xor_b32 v{vCrd+3}, 0xc0, v{vCrd}
        v_lshl_add_u32 v{vXq}, v2, 3, v{vXq}
        s_lshl_b32 {sT2}, {s.sW}, 6
        s_add_u32 {sT2}, {sT2}, {L_QS}
        v_add_u32 v{vXq}, {sT2}, v{vXq}""")
        s.st(4)
        e("s_barrier")
        for kk in range(4): e(f"ds_read_b128 {s.q(vP+4*kk)}, v{vu} offset:{kk*64}")
        e("s_waitcnt vmcnt(8)")
        for blk in range(2):
            for kk in range(4): e(f"ds_read_b128 {s.q(vCa+16*blk+4*kk)}, v{vCrd+kk} offset:{blk*4096}")
        e("s_waitcnt lgkmcnt(0)")
        for kk in range(4):
            for blk in range(2):
                c = "0" if kk == 0 else s.q(vS+4*blk)
                e(f"v_mfma_f32_16x16x32_bf16 {s.q(vS+4*blk)}, {s.q(vCa+16*blk+4*kk)}, {s.q(vP+4*kk)}, {c}")
        for k in range(4): e(f"v_cvt_pk_bf16_f32 v{vT1+k}, v{vS+2*k}, v{vS+2*k+1}")
        e(f"ds_write_b64 v{vXq}, {s.q(vT1,2)}\nds_write_b64 v{vXq}, {s.q(vT1+2,2)} offset:32\ns_waitcnt lgkmcnt(0)\ns_barrier")
        l = s.lab("L_nq")
        e(f"s_cmp_lg_u32 {s.sW}, 7\ns_cbranch_scc1 {l}")
        e(f"v_add_u32 v{vt}, {L_QS}, v{vL16}\nds_read_b128 {s.q(vT0)}, v{vt}\ns_waitcnt lgkmcnt(0)")
        for k in range(4): e(f"v_min_u32 v{vT0+k}, -2, v{vT0+k}")
        e(f"buffer_store_dwordx4 {s.q(vT0)}, v{vXw}, {s.sWS}, {sQS} offen sc1\n{l}:")
        s.st(5)
        e(f"s_add_u32 {sT0}, {sCb}, 65536\ns_lshl_b32 {sT2}, {s.sW}, 13\ns_add_u32 {sT2}, {sT2}, {R1}")
        tile_dma(sT0, sT2)
        e(f"""s_lshl_b32 {sT0}, {sAb}, 15
        s_lshl_b32 {sT1}, {s.sW}, 12
        s_add_u32 {sT0}, {sT0}, {sT1}
        s_add_u32 {sT0}, {sT0}, {WS_QABS}""")
        def qpoll():
            for q_ in range(4): e(f"buffer_load_dwordx4 {s.q(vCa+4*q_)}, v{vL16}, {s.sWS}, {sT0} offen offset:{q_*1024} sc1")
        qpoll()
        e(f"""v_lshrrev_b32 v{vt}, 3, v1
        v_lshlrev_b32 v{vt}, 16, v{vt}
        v_and_b32 v{vu}, 7, v1
        v_lshl_add_u32 v{vt}, v{vu}, 4, v{vt}
        s_lshl_b32 {sT2}, {s.sW}, 19
        s_add_u32 {sT2}, {sT2}, {sHo}
        s_lshl_b32 {sT3}, {sHalf}, 7
        s_add_u32 {sT2}, {sT2}, {sT3}""")
        for j in range(8):
            e(f"buffer_load_dwordx4 {s.q(vUV+4*j)}, v{vt}, {sUV}, {sT2} offen nt")
            if j < 7: e(f"s_add_u32 {sT2}, {sT2}, 8192")
        e(f"""s_lshl_b32 {sT2}, {s.sW}, 6
        s_and_b32 {sT2}, {sT2}, 0xff
        v_xor_b32 v{vt}, {sT2}, v{vL16}
        s_add_u32 {sT1}, {sT1}, {X}
        v_add_u32 v{vt}, {sT1}, v{vt}""")
        s.spin_init()
        e("s_waitcnt vmcnt(8)\ns_branch L_B_qc\nL_B_qp:")
        qpoll()
        e("s_waitcnt vmcnt(0)\nL_B_qc:")
        s.sentinel_check(range(vCa, vCa+16), vu)
        s.spin_retry("L_B_qp")
        for q_ in range(4):
            if q_: e(f"v_xor_b32 v{vu}, {q_<<4}, v{vt}")
            e(f"ds_write_b128 v{vu if q_ else vt}, {s.q(vCa+4*q_)} offset:{q_*1024}")
        e(f"""s_lshr_b32 {sT0}, {s.sW}, 2
        s_and_b32 {sT1}, {s.sW}, 3
        v_xor_b32 v{vt}, v2, v3
        v_lshlrev_b32 v{vt}, 4, v{vt}
        v_lshl_or_b32 v{vt}, v3, 10, v{vt}
        s_lshl_b32 {sT2}, {sT0}, 14
        s_add_u32 {sT2}, {sT2}, {X}
        v_add_u32 v{vTr}, {sT2}, v{vt}
        v_xor_b32 v{vTr+1}, 64, v{vTr}
        v_xor_b32 v{vTr+2}, 0x80, v{vTr}
        v_xor_b32 v{vTr+3}, 0xc0, v{vTr}
        s_waitcnt lgkmcnt(0)""")
        s.st(6)
        e("s_barrier")
        for kk in range(16): e(f"ds_read_b128 {s.q(vQ+4*kk)}, v{vTr+(kk&3)} offset:{(kk>>2)*256}")
        e(f"""s_mov_b32 {sT3}, 0x78
        v_lshrrev_b32 v{vt}, 2, v3
        v_lshlrev_b32 v{vt}, 1, v{vt}
        v_bfe_u32 v{vt}, {sT3}, v{vt}, 2
        v_and_b32 v{vu}, 3, v3
        v_lshl_or_b32 v{vt}, v{vu}, 2, v{vt}
        v_xor_b32 v{vt}, v{vt}, v2
        v_lshlrev_b32 v{vt}, 4, v{vt}
        v_lshl_or_b32 v{vt}, v3, 10, v{vt}
        s_lshl_b32 {sT2}, {sT1}, 14
        v_add_u32 v{vCrd}, {sT2}, v{vt}
        v_xor_b32 v{vCrd+1}, 64, v{vCrd}
        v_xor_b32 v{vCrd+2}, 0x80, v{vCrd}
        v_xor_b32 v{vCrd+3}, 0xc0, v{vCrd}
        s_lshl_b32 {sT2}, {sT0}, 4
        v_add_u32 v{vt}, {sT2}, v3
        v_mul_u32_u24 v{vPw}, 144, v{vt}
        v_lshl_add_u32 v{vPw}, v2, 3, v{vPw}
        s_lshl_b32 {sT2}, {sT1}, 5
        s_add_u32 {sT2}, {sT2}, {L_PB}
        v_add_u32 v{vPw}, {sT2}, v{vPw}
        v_lshlrev_b32 v{vXq}, 4, v{vt}
        v_add_u32 v{vXq}, {L_MX}, v{vXq}
        s_lshl_b32 {sT2}, {sT1}, 2
        v_add_u32 v{vXw}, {sT2}, v{vXq}
        v_and_b32 v{vt}, 31, v1
        v_lshlrev_b32 v{vXp}, 4, v{vt}
        v_add_u32 v{vXp}, {L_MX}, v{vXp}
        v_mul_u32_u24 v{vPr}, 144, v{vt}
        v_lshrrev_b32 v{vu}, 5, v1
        v_lshl_add_u32 v{vPr}, v{vu}, 4, v{vPr}
        v_add_u32 v{vPr}, {L_PB}, v{vPr}
        s_waitcnt lgkmcnt(0)""")
        e(f"""v_bfe_u32 v{vt}, v1, 2, 2
        v_lshl_add_u32 v{vTr+1}, v{vu}, 3, v{vt}
        v_lshlrev_b32 v{vTr+1}, 10, v{vTr+1}
        v_lshlrev_b32 v{vt}, 2, v{vt}
        v_mad_u32_u24 v{vt}, v{vu}, 3, v{vt}
        v_bfe_u32 v{vu}, v1, 4, 1
        v_lshlrev_b32 v{vu}, 1, v{vu}
        v_bfe_u32 v{vTr+2}, v1, 1, 1
        v_add_u32 v{vu}, v{vu}, v{vTr+2}
        s_lshl_b32 {sT2}, {s.sW}, 3
        v_add_u32 v{vu}, {sT2}, v{vu}
        v_xor_b32 v{vu}, v{vu}, v{vt}
        v_lshl_or_b32 v{vTr}, v{vu}, 4, v{vTr+1}
        v_and_b32 v{vu}, 1, v1
        v_lshl_or_b32 v{vTr}, v{vu}, 3, v{vTr}
        v_xor_b32 v{vTr+1}, 64, v{vTr}
        v_xor_b32 v{vTr+2}, 32, v{vTr}
        v_xor_b32 v{vTr+3}, 0x60, v{vTr}
        v_mov_b32 v{vMq}, 0xff800000
        v_mov_b32 v{vMp}, 0xff800000
        v_mov_b32 v{vLq}, 0""")
        for k in range(32): e(f"v_mov_b32 v{vO+k}, 0")
        e(f"s_mov_b32 {sTl}, 0")
        e("L_B_tile:")
        l2, l3 = s.lab("L_t2"), s.lab("L_t3")
        e(f"s_cmp_lt_u32 {sTl}, 2\ns_cbranch_scc1 {l3}\ns_waitcnt vmcnt(8)\ns_cmp_eq_u32 {sTl}, 2\ns_cbranch_scc1 {l3}\ns_waitcnt vmcnt(0)\n{l3}:")
        e("s_barrier")
        def crd(kk): e(f"ds_read_b128 {s.q(vCa+4*(kk&7))}, v{vCrd+(kk&3)} offset:{(kk>>2)*256}")
        for kk in range(8): crd(kk)
        for h4 in range(4):
            e(f"s_waitcnt lgkmcnt({4 if h4 < 3 else 0})")
            for kk in range(4*h4, 4*h4+4):
                c = "0" if kk == 0 else s.q(vS)
                e(f"v_mfma_f32_16x16x32_bf16 {s.q(vS)}, {s.q(vCa+4*(kk&7))}, {s.q(vQ+4*kk)}, {c}")
            if h4 < 2:
                for kk in range(4*h4+8, 4*h4+12): crd(kk)
        e(f"v_max3_f32 v{vt}, v{vS}, v{vS+1}, v{vS+2}\nv_max_f32 v{vt}, v{vt}, v{vS+3}")
        s.xreduce("v_max_f32", vt, vu)
        e(f"ds_write_b32 v{vXw}, v{vt}\ns_waitcnt lgkmcnt(0)\ns_barrier")
        e(f"ds_read_b128 {s.q(vT0)}, v{vXq}\nds_read_b128 {s.q(vT1)}, v{vXp}\ns_waitcnt lgkmcnt(1)")
        e(f"""v_max3_f32 v{vt}, v{vT0}, v{vT0+1}, v{vT0+2}
        v_max3_f32 v{vt}, v{vt}, v{vT0+3}, v{vMq}
        v_mul_f32 v{vNm}, {s.sC}, v{vt}
        v_fma_f32 v{vAq}, v{vMq}, {s.sC}, -v{vNm}
        v_mov_b32 v{vMq}, v{vt}
        v_exp_f32 v{vAq}, v{vAq}""")
        for k in range(4): e(f"v_fma_f32 v{vS+k}, v{vS+k}, {s.sC}, -v{vNm}")
        for k in range(4): e(f"v_exp_f32 v{vS+k}, v{vS+k}")
        e(f"""s_waitcnt lgkmcnt(0)
        v_max3_f32 v{vt}, v{vT1}, v{vT1+1}, v{vT1+2}
        v_cvt_pk_bf16_f32 v{vT0}, v{vS}, v{vS+1}
        v_cvt_pk_bf16_f32 v{vT0+1}, v{vS+2}, v{vS+3}
        v_max3_f32 v{vt}, v{vt}, v{vT1+3}, v{vMp}
        ds_write_b64 v{vPw}, {s.q(vT0,2)}
        v_add_f32 v{vS}, v{vS}, v{vS+1}
        v_add_f32 v{vS+2}, v{vS+2}, v{vS+3}
        v_sub_f32 v{vAp}, v{vMp}, v{vt}
        v_add_f32 v{vS}, v{vS}, v{vS+2}
        v_mul_f32 v{vAp}, {s.sC}, v{vAp}
        v_fma_f32 v{vLq}, v{vLq}, v{vAq}, v{vS}
        v_exp_f32 v{vAp}, v{vAp}
        v_mov_b32 v{vMp}, v{vt}""")
        l = s.lab("L_ls")
        e(f"s_cmp_lg_u32 {sTl}, 3\ns_cbranch_scc1 {l}")
        s.xreduce("v_add_f32", vLq, vu)
        e(f"ds_write_b32 v{vXw}, v{vLq} offset:512\n{l}:")
        for k in range(32): e(f"v_mul_f32 v{vO+k}, v{vAp}, v{vO+k}")
        e("s_waitcnt lgkmcnt(0)\ns_barrier")
        for ks in range(4):
            e(f"ds_read_b128 {s.q(vP+4*ks)}, v{vPr} offset:{ks*32}")
            for mb in range(2):
                for t in range(2):
                    e(f"ds_read_b64_tr_b16 {s.q(vCa+8*ks+4*mb+2*t,2)}, v{vTr+2*t+mb} offset:{ks*16384+t*4096}")
        for ks in range(4):
            e(f"s_waitcnt lgkmcnt({min(15, 5*(3-ks))})")
            for mb in range(2):
                e(f"v_mfma_f32_32x32x16_bf16 {s.q(vO+16*mb,16)}, {s.q(vCa+8*ks+4*mb)}, {s.q(vP+4*ks)}, {s.q(vO+16*mb,16)}")
        e("s_barrier")
        l = s.lab("L_nd")
        e(f"""s_cmp_ge_u32 {sTl}, 2
        s_cbranch_scc1 {l}
        s_add_u32 {sT0}, {sTl}, 2
        s_lshl_b32 {sT0}, {sT0}, 16
        s_add_u32 {sT0}, {sT0}, {sCb}
        s_lshl_b32 {sT2}, {sTl}, 16
        s_lshl_b32 {sT1}, {s.sW}, 13
        s_add_u32 {sT2}, {sT2}, {sT1}""")
        tile_dma(sT0, sT2)
        e(f"{l}:")
        for k in range(4): e(f"v_xor_b32 v{vCrd+k}, 0x10000, v{vCrd+k}\nv_xor_b32 v{vTr+k}, 0x10000, v{vTr+k}")
        e(f"s_add_u32 {sTl}, {sTl}, 1\ns_cmp_lt_u32 {sTl}, 4\ns_cbranch_scc1 L_B_tile")
        s.st(7)
        e(f"""ds_read_b128 {s.q(vT0)}, v{vXp} offset:512
        v_and_b32 v{vt}, 31, v1
        v_mul_u32_u24 v{vt}, 1040, v{vt}
        v_lshrrev_b32 v{vu}, 5, v1
        v_lshl_add_u32 v{vt}, v{vu}, 3, v{vt}
        s_lshl_b32 {sT2}, {s.sW}, 7
        s_add_u32 {sT2}, {sT2}, {L_OS}
        v_add_u32 v{vt}, {sT2}, v{vt}
        s_waitcnt lgkmcnt(0)
        v_add_f32 v{vT0}, v{vT0}, v{vT0+1}
        v_add_f32 v{vT0+2}, v{vT0+2}, v{vT0+3}
        v_add_f32 v{vT0}, v{vT0}, v{vT0+2}
        v_rcp_f32 v{vAp}, v{vT0}
        v_log_f32 v{vLq}, v{vT0}
        v_fma_f32 v{vLq}, v{vMp}, {s.sC}, v{vLq}
        v_min_u32 v{vLq}, -2, v{vLq}""")
        for k in range(32): e(f"v_mul_f32 v{vO+k}, v{vAp}, v{vO+k}")
        for k in range(16): e(f"v_cvt_pk_bf16_f32 v{vCa+k}, v{vO+2*k}, v{vO+2*k+1}")
        for mb in range(2):
            for q4 in range(4): e(f"ds_write_b64 v{vt}, {s.q(vCa+8*mb+2*q4,2)} offset:{mb*64+q4*16}")
        e(f"""s_mul_i32 {sT2}, {s.sW}, 4160
        s_add_u32 {sT2}, {sT2}, {L_OS}
        v_add_u32 v{vt}, {sT2}, v{vL16}
        s_lshl_b32 {sT0}, {s.sW}, 18
        s_lshl_b32 {sT1}, {sAb}, 15
        s_add_u32 {sT0}, {sT0}, {sT1}
        s_lshl_b32 {sT1}, {sSp}, 10
        s_add_u32 {sT0}, {sT0}, {sT1}
        s_add_u32 {sT0}, {sT0}, {WS_BP}
        s_waitcnt lgkmcnt(0)
        s_barrier""")
        for q_ in range(4): e(f"ds_read_b128 {s.q(vCa+4*q_)}, v{vt} offset:{q_*1040}")
        for q_ in range(4):
            e(f"s_waitcnt lgkmcnt({3-q_})\nbuffer_store_dwordx4 {s.q(vCa+4*q_)}, v{vL16}, {s.sWS}, {sT0} offen sc1")
            if q_ < 3: e(f"s_add_u32 {sT0}, {sT0}, 65536")
        def w_dma(srd, ldsbase):
            e(f"""s_mul_i32 {sT0}, {sJ}, 73728
            s_mul_i32 {sT1}, {s.sW}, 9216
            s_add_u32 {sT0}, {sT0}, {sT1}""")
            for j in range(9):
                if j % 4 == 0:
                    e(f"s_add_u32 m0, {sT1}, {ldsbase + j*1024}")
                    if j: e(f"s_add_u32 {sT0}, {sT0}, 4096")
                e(f"buffer_load_dwordx4 v{vL16}, {srd}, {sT0} offen offset:{(j&3)*1024} nt lds")
        w_dma(sWO2, 0)
        e("s_waitcnt vmcnt(9)\ns_barrier")
        l = s.lab("L_ns")
        e(f"""s_cmp_lg_u32 {s.sW}, 7
        s_cbranch_scc1 {l}
        v_and_b32 v{vu}, 31, v1
        v_lshlrev_b32 v{vu}, 8, v{vu}
        s_lshl_b32 {sT0}, {sAb}, 5
        s_add_u32 {sT0}, {sT0}, {sSp}
        s_lshl_b32 {sT0}, {sT0}, 2
        s_add_u32 {sT0}, {sT0}, {WS_BST}
        buffer_store_dword v{vLq}, v{vu}, {s.sWS}, {sT0} offen sc1
        {l}:""")
        s.st(8)
        e(f"v_lshlrev_b32 v{vt}, 2, v1\ns_add_u32 {sT0}, {sHo}, {WS_BST}")
        s.spin_init()
        e(f"L_B_ps:\nbuffer_load_dword v{vS}, v{vt}, {s.sWS}, {sT0} offen sc1\ns_waitcnt vmcnt(0)")
        s.sentinel_check([vS], vu)
        s.spin_retry("L_B_ps", 4)
        e(f"""v_lshlrev_b32 v{vu}, 4, v3
        v_lshl_or_b32 v{vu}, v2, 13, v{vu}
        s_lshl_b32 {sT0}, {sH}, 16
        s_lshr_b32 {sT1}, {s.sW}, 2
        s_lshl_b32 {sT2}, {sT1}, 15
        s_add_u32 {sT0}, {sT0}, {sT2}
        s_and_b32 {sT2}, {s.sW}, 3
        s_lshl_b32 {sT2}, {sT2}, 8
        s_add_u32 {sT0}, {sT0}, {sT2}
        s_add_u32 {sT0}, {sT0}, {WS_BP}
        s_add_u32 {sT3}, {sT0}, 4096""")
        for j in range(8): e(f"buffer_load_dwordx4 {s.q(vCa+4*j)}, v{vu}, {s.sWS}, {sT0 if j<4 else sT3} offen offset:{(j&3)*1024} sc1")
        e(f"""s_lshl_b32 {sT3}, {s.sW}, 7
        s_add_u32 {sT3}, {sT3}, {L_WT}
        v_lshl_add_u32 v{vXw}, v1, 1, {sT3}
        s_lshl_b32 {sTl}, {sT1}, 6
        s_add_u32 {sT3}, {sT3}, {sTl}
        v_lshl_add_u32 v{vXq}, v2, 4, {sT3}
        s_lshl_b32 {sT1}, {sT1}, 10
        s_add_u32 {sT1}, {sT1}, {sT2}
        s_add_u32 {sT1}, {sT1}, {L_OCB}
        v_lshl_add_u32 v{vXp}, v3, 4, {sT1}""")
        w_dma(sWO, L_WO)
        e(f"v_mov_b32 v{vt}, v{vS}")
        s.dppreduce("v_max_f32", vt, (8, 4, 2, 1)); s.xreduce("v_max_f32", vt, vu, (16,))
        e(f"v_sub_f32 v{vS}, v{vS}, v{vt}\nv_exp_f32 v{vS}, v{vS}\nv_mov_b32 v{vt}, v{vS}")
        s.dppreduce("v_add_f32", vt, (8, 4, 2, 1)); s.xreduce("v_add_f32", vt, vu, (16,))
        e(f"""v_rcp_f32 v{vt}, v{vt}
        v_mul_f32 v{vS}, v{vS}, v{vt}
        v_cvt_pk_bf16_f32 v{vS}, v{vS}, v{vS}
        ds_write_b16 v{vXw}, v{vS}
        s_waitcnt lgkmcnt(0)
        ds_read_b128 {s.q(vP)}, v{vXq}
        s_waitcnt vmcnt(9) lgkmcnt(0)""")
        s.vlike(vO, vP, [vCa+4*j for j in range(8)], (vT0, vT1), True)
        for k in range(4): e(f"v_cvt_pk_bf16_f32 v{vP+k}, v{vO+8*k}, v{vO+8*k+4}")
        e(f"ds_write_b128 v{vXp}, {s.q(vP)}")
        e(f"""v_bfe_u32 v{vt}, v1, 2, 1
        v_lshlrev_b32 v{vt}, 10, v{vt}
        v_lshl_add_u32 v{vt}, v2, 5, v{vt}
        v_bfe_u32 v{vu}, v1, 3, 1
        v_lshl_add_u32 v{vt}, v{vu}, 4, v{vt}
        s_lshl_b32 {sT0}, {s.sW}, 7
        s_add_u32 {sT0}, {sT0}, {L_OCB}
        v_add_u32 v{vt}, {sT0}, v{vt}
        v_lshrrev_b32 v{vXq}, 5, v1
        v_cmp_eq_u32 vcc, v{vXq}, v{vu}
        v_lshlrev_b32 v{vXq}, 8, v2
        v_and_b32 v{vu}, 7, v1
        v_lshl_add_u32 v{vXq}, v{vu}, 5, v{vXq}
        s_lshl_b32 {sT0}, {s.sW}, 10
        v_add_u32 v{vXq}, {sT0}, v{vXq}
        v_mov_b32 v{vu}, 8192
        v_cndmask_b32 v{vXq}, v{vu}, v{vXq}, vcc
        v_add_u32 v{vXq}, {L_CP}, v{vXq}
        s_waitcnt lgkmcnt(0)
        s_barrier
        ds_read_b128 {s.q(vP)}, v{vt}
        s_waitcnt lgkmcnt(0)""")
        s.vlike(vO, vP, [vUV+4*j for j in range(8)], (vT0, vT1), True)
        s.gather0(vO, vP)
        e(f"ds_write_b128 v{vXq}, {s.q(vP)}\nds_write_b128 v{vXq}, {s.q(vP+4)} offset:16\ns_waitcnt lgkmcnt(0)\ns_barrier")
        l = s.lab("L_nc")
        e(f"""s_cmp_lg_u32 {s.sW}, 0
        s_cbranch_scc1 {l}
        v_lshrrev_b32 v{vu}, 5, v1
        v_and_b32 v{vt}, 31, v1
        v_lshlrev_b32 v{vt}, 4, v{vt}
        v_lshl_add_u32 v{vt}, v{vu}, 12, v{vt}
        v_add_u32 v{vt}, {L_CP}, v{vt}""")
        for p in range(8): e(f"ds_read_b128 {s.q(vCa+4*p)}, v{vt} offset:{p*512}")
        e(f"""v_bfe_u32 v{vu}, v1, 4, 1
        v_cmp_eq_u32 vcc, 0, v{vu}
        v_cndmask_b32 v{vS}, v{vG1}, v{vG0}, vcc
        v_sub_f32 v{vS}, 1.0, v{vS}
        v_cmp_gt_u32 vcc, 32, v1
        v_cndmask_b32 v{vS}, 0, v{vS}, vcc
        v_lshlrev_b32 v{vt}, 3, v1
        v_add_u32 v{vt}, {L_CTX}, v{vt}
        s_waitcnt lgkmcnt(0)""")
        for k in range(4):
            for p in range(4): e(f"v_add_f32 v{vCa+8*p+k}, v{vCa+8*p+k}, v{vCa+8*p+4+k}")
            e(f"v_add_f32 v{vCa+k}, v{vCa+k}, v{vCa+8+k}\nv_add_f32 v{vCa+16+k}, v{vCa+16+k}, v{vCa+24+k}\nv_add_f32 v{vCa+k}, v{vCa+k}, v{vCa+16+k}")
        for k in range(4): s.xreduce("v_add_f32", vCa+k, vu, (32,))
        for k in range(4): e(f"v_mul_f32 v{vCa+k}, v{vS}, v{vCa+k}")
        e(f"""v_cvt_pk_bf16_f32 v{vCa}, v{vCa}, v{vCa+1}
        v_cvt_pk_bf16_f32 v{vCa+1}, v{vCa+2}, v{vCa+3}
        v_cndmask_b32 v{vCa}, 0, v{vCa}, vcc
        v_cndmask_b32 v{vCa+1}, 0, v{vCa+1}, vcc
        ds_write_b64 v{vt}, {s.q(vCa,2)}
        {l}:
        s_waitcnt vmcnt(0) lgkmcnt(0)
        s_barrier""")
        s.st(9)
        e(f"s_cmp_ge_u32 {s.sW}, 6\ns_cbranch_scc1 L_B_red")
        vD6, vWb, vA8, vPl = vO, vQ, vP, vCa
        e(f"""v_min_u32 v{vt}, 2, v3
        v_lshlrev_b32 v{vt}, 7, v{vt}
        v_lshl_add_u32 v{vt}, v2, 3, v{vt}
        v_add_u32 v{vt}, {L_CTX}, v{vt}
        v_lshrrev_b32 v{vu}, 2, v1
        v_mul_u32_u24 v{vu}, 1152, v{vu}
        v_and_b32 v{vXq}, 3, v1
        v_lshl_add_u32 v{vu}, v{vXq}, 3, v{vu}
        s_mul_i32 {sT0}, {s.sW}, 192
        v_add_u32 v{vu}, {sT0}, v{vu}""")
        for q_ in range(4): e(f"ds_read_b64 {s.q(vA8+2*q_,2)}, v{vt} offset:{q_*32}")
        def wtr():
            for ti in range(6):
                for q_ in range(4): e(f"ds_read_b64_tr_b16 {s.q(vWb+8*ti+2*q_,2)}, v{vu} offset:{q_*18432+ti*32}")
        def wmf(init):
            for ks in range(2):
                for ti in range(6):
                    c = "0" if (init and ks == 0) else s.q(vD6+4*ti)
                    e(f"v_mfma_f32_16x16x32_bf16 {s.q(vD6+4*ti)}, {s.q(vA8+4*ks)}, {s.q(vWb+8*ti+4*ks)}, {c}")
        wtr()
        e(f"v_add_u32 v{vu}, {L_WO}, v{vu}\ns_waitcnt lgkmcnt(0)")
        wmf(True)
        wtr()
        e(f"""v_min_u32 v{vt}, 11, v1
        v_lshlrev_b32 v{vt}, 7, v{vt}
        s_lshr_b32 {sT0}, {sH}, 1
        s_mul_i32 {sT0}, {sT0}, 12
        s_add_u32 {sT0}, {sT0}, 64
        s_lshl_b32 {sT0}, {sT0}, 7
        s_add_u32 {sT0}, {sT0}, {WS_FLAG}""")
        s.spin_init()
        e(f"L_B_va:\nbuffer_load_dword v{vu}, v{vt}, {s.sWS}, {sT0} offen sc1\ns_waitcnt vmcnt(0)\nv_cmp_ne_u32 vcc, v{vu}, v{vTag}")
        s.spin_retry("L_B_va")
        vPo, vPs, vGs, vOo = vXq, vXp, vXw, vPw
        e(f"""v_lshlrev_b32 v{vPo}, 8, v3
        v_lshl_add_u32 v{vPo}, v2, 4, v{vPo}
        v_lshlrev_b32 v{vPs}, 2, v3
        v_mov_b32 v{vt}, {OOB}
        v_cmp_gt_u32 s[54:55], 12, v3
        v_cndmask_b32 v{vPo}, v{vt}, v{vPo}, s[54:55]
        v_cndmask_b32 v{vPs}, v{vt}, v{vPs}, s[54:55]
        v_and_b32 v{vt}, 1, v1
        v_cmp_eq_u32 vcc, 0, v{vt}
        v_cndmask_b32 v{vGs}, v{vG1}, v{vG0}, vcc
        v_and_b32 v{vt}, 1, v2
        v_mul_u32_u24 v{vt}, 36, v{vt}
        v_lshrrev_b32 v{vu}, 1, v2
        v_add_u32 v{vt}, v{vt}, v{vu}
        v_lshlrev_b32 v{vt}, 12, v{vt}
        v_lshl_add_u32 v{vOo}, v3, 2, v{vt}
        v_mov_b32 v{vNm}, 0xff800000
        s_lshl_b32 {sT0}, {sJ}, 12
        s_add_u32 {sT0}, {sT0}, {WS_AP}
        s_mul_i32 {sT1}, {s.sW}, {6*4096}
        s_lshl_b32 {sT2}, {sJ}, 6
        s_add_u32 {sT1}, {sT1}, {sT2}
        s_add_u32 {sT1}, {sT1}, {WS_OP}
        s_add_u32 {sT2}, {sT1}, 8192
        s_add_u32 {sT3}, {sT1}, 16384
        s_waitcnt lgkmcnt(0)""")
        s.spin_init()
        if s.hop1 in ("two", "any"):
            e(f"L_B_h0:\nbuffer_load_dword v{vS}, v{vPs}, {s.sWS}, {sT0} offen offset:3072 sc1\ns_waitcnt vmcnt(0)")
            if s.hop1 == "two":
                e(f"v_cmp_eq_u32 vcc, -1, v{vS}")
            else:
                e(f"v_cmp_eq_u32 vcc, -1, v{vS}\ns_cmp_eq_u64 vcc, s[54:55]\ns_cselect_b64 vcc, vcc, 0")
            s.spin_retry("L_B_h0", 2)
        e("L_B_h1:")
        e(f"buffer_load_dword v{vS}, v{vPs}, {s.sWS}, {sT0} offen offset:3072 sc1")
        for q_ in range(4): e(f"buffer_load_dwordx4 {s.q(vPl+4*q_)}, v{vPo}, {s.sWS}, {sT0} offen offset:{q_*64} sc1")
        e("s_waitcnt vmcnt(0)")
        s.sentinel_check([vS] + list(range(vPl, vPl+16)), vu)
        s.spin_retry("L_B_h1", 0)
        s.st(10)
        e(f"v_cndmask_b32 v{vS}, v{vNm}, v{vS}, s[54:55]")
        e(f"v_max_f32_dpp v{vt}, v{vS}, v{vS} row_ror:2 row_mask:0xf bank_mask:0xf")
        s.dppreduce("v_max_f32", vt, (4, 8))
        e(f"v_sub_f32 v{vS}, v{vS}, v{vt}\nv_exp_f32 v{vS}, v{vS}")
        e(f"v_add_f32_dpp v{vt}, v{vS}, v{vS} row_ror:2 row_mask:0xf bank_mask:0xf")
        s.dppreduce("v_add_f32", vt, (4, 8))
        e(f"v_rcp_f32 v{vt}, v{vt}\nv_mul_f32 v{vS}, v{vS}, v{vGs}\nv_mul_f32 v{vS}, v{vS}, v{vt}")
        for k in range(16): e(f"v_mul_f32 v{vPl+k}, v{vS}, v{vPl+k}")
        for k in range(8): e(f"v_cvt_pk_bf16_f32 v{vA8+k}, v{vPl+2*k}, v{vPl+2*k+1}")
        wmf(False)
        for ti in range(6): e(f"v_add_f32 v{vD6+4*ti}, v{vD6+4*ti}, v{vD6+4*ti+2}\nv_add_f32 v{vD6+4*ti+1}, v{vD6+4*ti+1}, v{vD6+4*ti+3}")
        for u in range(3):
            a = vD6 + 8*u
            e(f"v_permlane32_swap_b32 v{a}, v{a+4}\nv_permlane32_swap_b32 v{a+1}, v{a+5}")
        for u in range(3):
            a = vD6 + 8*u
            e(f"v_add_f32 v{a}, v{a}, v{a+4}\nv_add_f32 v{a+1}, v{a+1}, v{a+5}")
        for u in range(3):
            a = vD6 + 8*u
            e(f"v_permlane16_swap_b32 v{a}, v{a+1}")
        for u in range(3):
            a = vD6 + 8*u
            e(f"v_add_f32 v{a}, v{a}, v{a+1}\nv_min_u32 v{a}, -2, v{a}")
            e(f"buffer_store_dword v{a}, v{vOo}, {s.sWS}, {[sT1,sT2,sT3][u]} offen sc1")
        e("s_branch L_B_done")
        e("L_B_red:")
        e(f"""s_sub_u32 {sT0}, {s.sW}, 6
        s_lshl_b32 {sT0}, {sT0}, 6
        s_add_u32 {sT0}, {sT0}, {sJ}
        s_cmp_ge_u32 {sT0}, 72
        s_cbranch_scc1 L_B_done
        s_lshl_b32 {sT1}, {sT0}, 12
        s_add_u32 {sT1}, {sT1}, {WS_OP}
        s_lshl_b32 {sT2}, {sT0}, 5
        v_and_b32 v{vt}, 3, v1
        v_lshlrev_b32 v{vt}, 2, v{vt}
        v_and_b32 v{vu}, 1, v2
        v_lshl_add_u32 v{vt}, v{vu}, 1, v{vt}
        v_lshrrev_b32 v{vu}, 1, v2
        v_add_lshl_u32 v{vXq}, v{vt}, v{vu}, 1""")
        s.spin_init()
        if s.hop1 in ("two", "any"):
            e(f"s_lshl_b32 {sT3}, {sJ}, 6\ns_add_u32 {sT3}, {sT3}, {sT1}\nv_mov_b32 v{vt}, 0")
            e(f"L_B_r0:\nbuffer_load_dword v{vS}, v{vt}, {s.sWS}, {sT3} offen sc1\ns_waitcnt vmcnt(0)\nv_cmp_eq_u32 vcc, -1, v{vS}")
            s.spin_retry("L_B_r0", 1)
        e("L_B_h2:")
        for q_ in range(4): e(f"buffer_load_dwordx4 {s.q(vCa+4*q_)}, v{vL16}, {s.sWS}, {sT1} offen offset:{q_*1024} sc1")
        e("s_waitcnt vmcnt(0)")
        s.sentinel_check(range(vCa, vCa+16), vu)
        s.spin_retry("L_B_h2", 0)
        s.st(10)
        for k in range(4): e(f"v_add_f32 v{vCa+k}, v{vCa+k}, v{vCa+4+k}\nv_add_f32 v{vCa+8+k}, v{vCa+8+k}, v{vCa+12+k}")
        for k in range(4): e(f"v_add_f32 v{vCa+k}, v{vCa+k}, v{vCa+8+k}")
        e(f"""v_permlane32_swap_b32 v{vCa}, v{vCa+1}
        v_permlane32_swap_b32 v{vCa+2}, v{vCa+3}
        v_add_f32 v{vCa}, v{vCa}, v{vCa+1}
        v_add_f32 v{vCa+2}, v{vCa+2}, v{vCa+3}
        v_permlane16_swap_b32 v{vCa}, v{vCa+2}
        v_add_f32 v{vCa}, v{vCa}, v{vCa+2}""")
        s.dppreduce("v_add_f32", vCa, (4, 8))
        e(f"""v_cvt_pk_bf16_f32 v{vCa}, v{vCa}, v{vCa}
        buffer_store_short v{vCa}, v{vXq}, {sOUT}, {sT2} offen
        s_cmp_lg_u32 {sT0}, 0
        s_cbranch_scc1 L_B_done
        v_mov_b32 v{vt}, 0
        s_mov_b64 exec, 1
        buffer_store_dword v{vTag}, v{vt}, {s.sWS}, 0 offen sc1
        s_mov_b64 exec, -1""")
        e("L_B_done:")
        s.st(11)
        s.stamps_out(12)
        e("L_end:\ns_endpgm")

    def text(s):
        s.entry(); s.roleA(); s.roleB()
        lines = fix(s.L)
        body = "\n".join(("" if l.endswith(":") else "    ") + l for l in lines)
        body += "\nL_codeend:\n"
        return body

HEADER = """; Fused decode step: out = g * GQA(x) + (1 - g) * latent-KV attention(x), one persistent launch.
"""
def make(path, **kw):
    g = G(**kw)
    body = g.text()
    src = wrap(body, 256, 512, LDS_BYTES, vgpr=256, sgpr=102, accum=256, header=HEADER)
    src = src.replace("  .amdhsa_system_sgpr_workgroup_id_x 1\n", "  .amdhsa_system_sgpr_workgroup_id_x 1\n  .amdhsa_float_denorm_mode_32 3\n")
    open(path, "w").write(src)
    return build(path)

if __name__ == "__main__":
    kw = json.loads(sys.argv[2]) if len(sys.argv) > 2 else {}
    co = make(sys.argv[1], **kw)
    import subprocess
    r = subprocess.run(["llvm-readelf", "-S", co], capture_output=True, text=True).stdout
    print([l for l in r.splitlines() if ".text" in l])
```

```python
import sys, json, math, struct
from asmlib import *
from hazard import fix

def f2u(f): return struct.unpack("<I", struct.pack("<f", f))[0]

WS_E, WS_FLAG, WS_QA, WS_QB, WS_QABS, WS_BST, WS_AP, WS_OP, WS_BP, WS_STAMP = \
    0x0, 0x1000, 0x10000, 0x40000, 0x70000, 0x80000, 0x90000, 0xD0000, 0x200000, 0x400000
OOB = 0x40000000
X = 131072
L_PQ, L_QOP, L_GT = X, X + 12288, X + 12800
L_OC, L_MS = X + 16384, X + 24576
L_QS = X + 28672
R1 = 65536
L_PB = X + 16384; L_MX = L_PB + 4608; L_LS = L_PB + 5120
L_OS = 98304
L_WT = X + 16384; L_OCB = L_WT + 1024; L_CP = L_WT + 4096; L_CTX = L_WT + 12544
L_WO = 73728
LDS_BYTES = 163840

class G:
    def __init__(s, W=(4,4,5,5,6), NPRE=4, WS=12, stamp=False, hop1="full", mimic=False, rot=0, spin=1 << 17, sleep=1, pf=True, wqpol='nt', bdet=False, BW=(3,5,6), early=False):
        s.L = []; s.W = list(W) if not isinstance(W, int) else [W]*5; s.NPRE = NPRE; s.WS = WS; s.stamp = stamp; s.hop1 = hop1; s.mimic = mimic; s.rot = rot
        s.spin = spin; s.sleep = sleep; s.nlab = 0; s.pf = pf; s.wqpol = wqpol; s.bdet = bdet; s.BW = BW; s.early = early; s.inB = False
    def e(s, t):
        for x in t.split("\n"):
            x = x.strip()
            if x: s.L.append(x)
    def lab(s, p="L"):
        s.nlab += 1; return f"{p}_{s.nlab}"
    def st2(s, k):
        s.e(f"s_memrealtime s[{76+2*k}:{77+2*k}]")
    def st(s, k):
        if s.stamp and not (s.bdet and s.inB): s.e(f"s_memrealtime s[{76+2*k}:{77+2*k}]")
    sX, sWS = "s[4:7]", "s[8:11]"
    sW, sLO, sHI, sC, sCnt = "s44", "s45", "s46", "s47", "s48"
    def q(s, r, n=4): return f"v[{r}:{r+n-1}]"

    def spin_init(s): s.e(f"s_mov_b32 {s.sCnt}, {s.spin}")
    def spin_retry(s, label, sleep=None):
        ok = s.lab("L_ok")
        s.e(f"s_cbranch_vccz {ok}")
        s.e(f"s_sub_u32 {s.sCnt}, {s.sCnt}, 1")
        s.e("s_cbranch_scc1 L_end")
        sl = s.sleep if sleep is None else sleep
        if sl: s.e(f"s_sleep {sl}")
        s.e(f"s_branch {label}")
        s.e(f"{ok}:")
    def sentinel_check(s, rs, t):
        rs = list(rs)
        if len(rs) == 1:
            s.e(f"v_cmp_eq_u32 vcc, -1, v{rs[0]}"); return
        if len(rs) == 2: s.e(f"v_max_u32 v{t}, v{rs[0]}, v{rs[1]}"); rs = []
        else: s.e(f"v_max3_u32 v{t}, v{rs[0]}, v{rs[1]}, v{rs[2]}"); rs = rs[3:]
        while len(rs) >= 2: s.e(f"v_max3_u32 v{t}, v{t}, v{rs[0]}, v{rs[1]}"); rs = rs[2:]
        if rs: s.e(f"v_max_u32 v{t}, v{t}, v{rs[0]}")
        s.e(f"v_cmp_eq_u32 vcc, -1, v{t}")
    def xreduce(s, op, v, t, which=(32, 16)):
        for k in which:
            s.e(f"v_mov_b32 v{t}, v{v}")
            s.e(f"v_permlane{k}_swap_b32 v{t}, v{v}")
            s.e(f"{op} v{v}, v{t}, v{v}")
    def dppreduce(s, op, v, rors):
        for r in rors: s.e(f"{op}_dpp v{v}, v{v}, v{v} row_ror:{r} row_mask:0xf bank_mask:0xf")
    def vlike(s, acc, A, rows, T, init):
        nd = len(rows) // 2
        mf = "v_mfma_f32_16x16x32_bf16" if nd == 4 else "v_mfma_f32_16x16x16_bf16"
        def perms(e_):
            sel = s.sHI if e_ & 1 else s.sLO
            for t in range(nd):
                s.e(f"v_perm_b32 v{T[e_&1]+t}, v{rows[2*t+1]+(e_>>1)}, v{rows[2*t]+(e_>>1)}, {sel}")
        perms(0)
        for e_ in range(8):
            if e_ < 7: perms(e_ + 1)
            c = "0" if init else s.q(acc + 4 * e_)
            s.e(f"{mf} {s.q(acc+4*e_)}, {s.q(A, nd)}, {s.q(T[e_&1], nd)}, {c}")
    def sum6(s, r):
        for k in range(4):
            s.e(f"v_add_f32 v{r+k}, v{r+k}, v{r+4+k}\nv_add_f32 v{r+8+k}, v{r+8+k}, v{r+12+k}\nv_add_f32 v{r+16+k}, v{r+16+k}, v{r+20+k}")
        for k in range(4):
            s.e(f"v_add_f32 v{r+k}, v{r+k}, v{r+8+k}\nv_add_f32 v{r+k}, v{r+k}, v{r+16+k}")
    def gather0(s, acc, dst):
        for e_ in range(8): s.e(f"v_mov_b32 v{dst+e_}, v{acc+4*e_}")
    def srd(s, base, slot, size):
        s.e(f"s_load_dwordx2 s[{base}:{base+1}], s[0:1], {slot*8}")
        s.post.append(f"s_mov_b32 s{base+2}, {size}"); s.post.append(f"s_mov_b32 s{base+3}, 0x20000")
    def consts(s):
        s.e(f"s_mov_b32 {s.sLO}, 0x05040100\ns_mov_b32 {s.sHI}, 0x07060302")
        s.e(f"s_mov_b32 {s.sC}, {hex(f2u(128**-0.5*math.log2(math.e)))}")
    def code_prefetch(s, vt, vd):
        if not s.pf: return 0
        s.e("s_getpc_b64 s[70:71]\nL_pc_%d:" % s.nlab); l = "L_pc_%d" % s.nlab; s.nlab += 1
        s.e(f"s_lshr_b32 s72, s2, 3\ns_and_b32 s72, s72, 7\ns_mul_i32 s72, s72, {s.pfn*1024}")
        s.e(f"s_sub_u32 s70, s70, {l}-{KNAME}\ns_subb_u32 s71, s71, 0")
        s.e(f"v_lshl_add_u32 v{vt}, v1, 4, s72")
        n = s.pfn
        for k in range(n):
            s.e(f"v_min_u32 v{vd+4}, L_codeend-{KNAME}-16, v{vt}")
            s.e(f"global_load_dwordx4 {s.q(vd)}, v{vd+4}, s[70:71]")
            if k + 1 < n: s.e(f"v_add_u32 v{vt}, 1024, v{vt}")
        return n
    pfn = 4
    def stamps_out(s, n):
        if not s.stamp: return
        s.e("s_waitcnt lgkmcnt(0)")
        s.e("s_getreg_b32 s74, hwreg(HW_REG_XCC_ID)")
        s.e(f"v_mov_b32 v2, 0")
        for k in range(12): s.e(f"v_writelane_b32 v2, s{76+2*k}, {k}")
        s.e("v_writelane_b32 v2, s74, 12")
        s.e(f"s_lshl_b32 s74, s2, 3\ns_add_u32 s74, s74, {s.sW}\ns_lshl_b32 s74, s74, 6\ns_add_u32 s74, s74, {WS_STAMP}")
        s.e("v_lshlrev_b32 v3, 2, v1\ns_mov_b64 exec, 0xffff")
        s.e(f"buffer_store_dword v2, v3, {s.sWS}, s74 offen\ns_waitcnt vmcnt(0)")

    def entry(s):
        e = s.e
        e("s_cmp_ge_u32 s2, 256\ns_cbranch_scc1 L_end")
        s.post = []
        s.srd(4, 0, 2304); s.srd(8, 14, 0x10000000)
        s.common_post = list(s.post)
        if s.stamp:
            for k in range(12): e(f"s_mov_b32 s{76+2*k}, 0")
        s.st(0)
        e("s_cmp_lt_u32 s2, 64\ns_cbranch_scc1 L_B")

    def lane_common(s):
        s.e(f"v_lshrrev_b32 v2, 6, v0\nv_and_b32 v1, 63, v0\nv_readfirstlane_b32 {s.sW}, v2")
        s.e("v_lshrrev_b32 v2, 4, v1\nv_and_b32 v3, 15, v1")

    def roleA(s):
        e = s.e; W = s.W
        sWQ, sK, sV = "s[12:15]", "s[16:19]", "s[20:23]"
        s.post = list(s.common_post)
        s.srd(12, 3, 4718592); s.srd(24, 7, 4718592); s.srd(16, 1, 0x4000000); s.srd(20, 2, 0x4000000)
        for p in s.post: e(p)
        s.lane_common(); s.consts()
        sHkv, sB, sS, sMM, sKb, sLb, sH6, sT0, sT1, sT2, sTag = "s57","s58","s59","s60","s61","s62","s63","s49","s50","s51","s64"
        e(f"""s_sub_u32 {sT0}, s2, 64
        s_and_b32 {sHkv}, {sT0}, 7
        s_lshr_b32 {sMM}, {sT0}, 3
        s_lshl_b32 {sHkv}, {sHkv}, 1
        s_cmp_ge_u32 {sMM}, 12
        s_cselect_b32 {sT1}, 1, 0
        s_cselect_b32 {sT2}, 12, 0
        s_add_u32 {sHkv}, {sHkv}, {sT1}
        s_sub_u32 {sMM}, {sMM}, {sT2}
        s_cmp_ge_u32 {sMM}, 6
        s_cselect_b32 {sB}, 1, 0
        s_cselect_b32 {sT2}, 6, 0
        s_sub_u32 {sS}, {sMM}, {sT2}
        s_mul_i32 {sT0}, {sS}, 43
        s_cmp_eq_u32 {sS}, 5
        s_cselect_b32 {sT1}, 1, 0
        s_sub_u32 {sT0}, {sT0}, {sT1}
        s_add_u32 {sT0}, {sT0}, {s.sW}
        s_lshl_b32 {sT0}, {sT0}, 13
        s_lshl_b32 {sKb}, {sB}, 4
        s_add_u32 {sKb}, {sKb}, {sHkv}
        s_lshl_b32 {sKb}, {sKb}, 21
        s_add_u32 {sKb}, {sKb}, {sT0}
        s_cmp_lt_u32 {sS}, 4
        s_cselect_b32 {sT0}, 3, 2
        s_cmp_lt_u32 {s.sW}, {sT0}
        s_cselect_b32 {sH6}, 1, 0
        s_lshl_b32 {sLb}, {s.sW}, 14""")
        vKoff, vVoff, vKrd = 4, 8, 12
        vM, vL, vAl, vNm, vA2, vt, vu = 9, 10, 11, 16, 17, 18, 19
        vQ, vS, vP, vT0, vT1 = 20, 36, 44, 48, 52
        vKa, vAcc, vV = 56, 88, 120
        vWoff, vXoff, vXa, vQ2 = 16, 17, 44, 184
        e(f"""v_lshlrev_b32 v{vVoff}, 4, v1
        v_lshlrev_b32 v{vt}, 2, v2
        v_xor_b32 v{vt}, v{vt}, v3
        v_lshlrev_b32 v{vt}, 4, v{vt}
        v_lshl_or_b32 v{vKoff}, v2, 8, v{vt}
        v_xor_b32 v{vKoff+1}, 16, v{vKoff}
        v_xor_b32 v{vKoff+2}, 32, v{vKoff}
        v_xor_b32 v{vKoff+3}, 48, v{vKoff}
        v_lshlrev_b32 v{vWoff}, 4, v3
        v_lshl_or_b32 v{vWoff}, v2, 15, v{vWoff}
        v_bfe_u32 v{vXoff}, v1, 2, 1
        v_mul_u32_u24 v{vXoff}, 1152, v{vXoff}
        v_lshl_add_u32 v{vXoff}, v2, 3, v{vXoff}""")
        def kload(i, j, w=None):
            if j % 4 == 0:
                e(f"s_add_u32 {sT0}, {sKb}, {i*65536 + (j>>2)*4096}\ns_add_u32 m0, {sLb}, {(i&1)*8192 + (j>>2)*4096}")
            if w is not None: e(f"s_waitcnt vmcnt({w-1})")
            e(f"buffer_load_dwordx4 v{vKoff+(j&3)}, {sK}, {sT0} offen offset:{(j&3)*1024} nt lds")
        def vload(i, j, w=None):
            if j % 4 == 0: e(f"s_add_u32 {sT1}, {sKb}, {i*65536 + (j>>2)*4096}")
            if w is not None: e(f"s_waitcnt vmcnt({w-1})")
            e(f"buffer_load_dwordx4 {s.q(vV+(i&1)*32+4*j)}, v{vVoff}, {sV}, {sT1} offen offset:{(j&3)*1024} nt")
        NPRE = s.NPRE
        e(f"s_cmp_ge_u32 {s.sW}, 6\ns_cbranch_scc1 L_A_w67")
        e(f"""s_mul_i32 {sT0}, {sS}, 96
        s_lshl_b32 {sT1}, {s.sW}, 4
        s_add_u32 {sT0}, {sT0}, {sT1}
        s_lshl_b32 {sT1}, {sT0}, 1
        s_lshl_b32 {sT0}, {sT0}, 13
        s_lshl_b32 {sT2}, {sHkv}, 1
        s_add_u32 {sT2}, {sT2}, {sB}
        s_lshl_b32 {sT2}, {sT2}, 8
        s_add_u32 {sT2}, {sT2}, {sT0}
        s_waitcnt lgkmcnt(0)""")
        for jj in range(4):
            e(f"buffer_load_dwordx4 {s.q(vKa+4*jj)}, v{vWoff}, s[24:27], {sT2} offen nt")
            e(f"buffer_load_dwordx4 {s.q(vKa+16+4*jj)}, v{vWoff}, {sWQ}, {sT2} offen nt")
            if jj < 3: e(f"s_add_u32 {sT2}, {sT2}, 8192")
        e(f"buffer_load_dwordx2 {s.q(vXa,2)}, v{vXoff}, {s.sX}, {sT1} offen")
        if s.early:
            for j in range(NPRE): kload(0, j)
        s.st(1)
        e(f"v_bfe_u32 v{vt}, v1, 4, 1\nv_lshlrev_b32 v{vt}, 9, v{vt}\nv_lshl_add_u32 v{vt}, v3, 5, v{vt}")
        e(f"s_lshl_b32 {sT2}, {s.sW}, 10\ns_add_u32 {sT2}, {sT2}, {L_PQ}\nv_add_u32 v{vt}, {sT2}, v{vt}")
        if s.early: e(f"s_waitcnt vmcnt({NPRE})")
        else:
            e("s_waitcnt vmcnt(0)")
            for j in range(NPRE): kload(0, j)
        s.vlike(vAcc, vXa, [vKa+4*j for j in range(4)], (vT0, vT1), True)
        s.vlike(vQ2, vXa, [vKa+16+4*j for j in range(4)], (vT0, vT1), True)
        s.gather0(vAcc, vS)
        e(f"ds_write_b128 v{vt}, {s.q(vS)} offset:6144\nds_write_b128 v{vt}, {s.q(vS+4)} offset:6160")
        s.gather0(vQ2, vQ)
        e(f"ds_write_b128 v{vt}, {s.q(vQ)}\nds_write_b128 v{vt}, {s.q(vQ+4)} offset:16\ns_waitcnt lgkmcnt(0)")
        e("s_branch L_A_b1")
        e("L_A_w67:")
        e(f"s_waitcnt lgkmcnt(0)\ns_cmp_eq_u32 {s.sW}, 7\ns_cbranch_scc1 L_A_svc")
        s.code_prefetch(vt, vKa)
        for j in range(NPRE): kload(0, j)
        e("L_A_b1:")
        s.st(2)
        e("s_barrier")
        for j in range(NPRE, 8): kload(0, j, W[0])
        for j in range(8): vload(0, j, W[0])
        for j in range(8): kload(1, j, W[1])
        for j in range(8): vload(1, j, W[1])
        e("s_branch L_A_b2")
        e("L_A_svc:\ns_setprio 3")
        vE, vZ, vSn = vKa, vKa+1, vKa+4
        sQA, sAP = "s65", "s66"
        e(f"""v_mov_b32 v{vZ}, 0
        buffer_load_dword v{vE}, v{vZ}, {s.sWS}, 0 offen sc1
        v_mov_b32 v{vSn}, -1
        v_mov_b32 v{vSn+1}, -1
        v_mov_b32 v{vSn+2}, -1
        v_mov_b32 v{vSn+3}, -1
        s_mul_i32 {sT0}, {sHkv}, 12
        s_add_u32 {sT1}, {sT0}, {sMM}
        s_lshl_b32 {sQA}, {sT1}, 10
        s_add_u32 {sQA}, {sQA}, {WS_QA}
        buffer_store_dwordx4 {s.q(vSn)}, v{vVoff}, {s.sWS}, {sQA} offen sc1
        s_add_u32 s75, {sQA}, {WS_QB-WS_QA}
        buffer_store_dwordx4 {s.q(vSn)}, v{vVoff}, {s.sWS}, s75 offen sc1
        s_add_u32 {sT1}, {sT1}, 64
        s_lshl_b32 {sT1}, {sT1}, 7
        s_add_u32 {sT1}, {sT1}, {WS_FLAG}
        s_mov_b32 s67, 0x9e3779b1
        s_waitcnt vmcnt(0)
        v_mul_lo_u32 v{vE}, v{vE}, s67
        v_add_u32 v{vE}, 0x7f4a7c15, v{vE}
        s_mov_b64 exec, 1
        buffer_store_dword v{vE}, v{vZ}, {s.sWS}, {sT1} offen sc1
        s_mov_b64 exec, -1""")
        s.st(1)
        sF, sP0, sP1 = "s67", "s69", "s73"
        e(f"""v_min_u32 v{vt}, 11, v1
        v_lshlrev_b32 v{vt}, 7, v{vt}
        s_add_u32 {sF}, {sT0}, 64
        s_lshl_b32 {sF}, {sF}, 7
        s_add_u32 {sF}, {sF}, {WS_FLAG}
        s_lshl_b32 {sP0}, {sT0}, 10
        s_lshl_b32 {sT2}, {sB}, 9
        s_add_u32 {sP0}, {sP0}, {sT2}
        s_add_u32 {sP0}, {sP0}, {WS_QA}
        s_add_u32 {sP1}, {sP0}, 4096""")
        for j in range(8): kload(0, j)
        e("s_barrier")
        s.st(2)
        vR = vAcc
        e(f"v_add_u32 v{vu}, {L_PQ}, v{vVoff}")
        for t in range(6): e(f"ds_read_b128 {s.q(vQ2+4*t)}, v{vu} offset:{6144+t*1024}")
        for t in range(6): e(f"ds_read_b128 {s.q(vR+4*t)}, v{vu} offset:{t*1024}")
        sum6 = lambda r=vR: s.sum6(r)
        e("s_waitcnt lgkmcnt(6)")
        sum6(vQ2)
        for k in range(4): e(f"v_min_u32 v{vQ2+k}, -2, v{vQ2+k}")
        e(f"buffer_store_dwordx4 {s.q(vQ2)}, v{vVoff}, {s.sWS}, s75 offen sc1")
        e("s_waitcnt lgkmcnt(0)")
        sum6()
        for k in range(4): e(f"v_min_u32 v{vR+k}, -2, v{vR+k}")
        e(f"buffer_store_dwordx4 {s.q(vR)}, v{vVoff}, {s.sWS}, {sQA} offen sc1")
        s.spin_init()
        e(f"buffer_load_dword v{vu}, v{vt}, {s.sWS}, {sF} offen sc1")
        for j in range(8): vload(0, j)
        e(f"s_waitcnt vmcnt(8)\ns_branch L_A_vc")
        e(f"L_A_vf:\nbuffer_load_dword v{vu}, v{vt}, {s.sWS}, {sF} offen sc1\ns_waitcnt vmcnt(0)\nL_A_vc:\nv_cmp_ne_u32 vcc, v{vu}, v{vE}")
        s.spin_retry("L_A_vf")
        s.st(3)
        e(f"""v_lshrrev_b32 v{vt}, 5, v1
        v_mul_u32_u24 v{vt}, 6144, v{vt}
        v_and_b32 v{vu}, 31, v1
        v_lshl_add_u32 v{vt}, v{vu}, 4, v{vt}""")
        def qap():
            for t in range(6): e(f"buffer_load_dwordx4 {s.q(vR+4*t)}, v{vt}, {s.sWS}, {sP0 if t<4 else sP1} offen offset:{(t&3)*1024} sc1")
        qap()
        for j in range(8): kload(1, j)
        e("s_waitcnt vmcnt(8)\ns_branch L_A_pc\nL_A_pq:")
        qap()
        e("s_waitcnt vmcnt(0)\nL_A_pc:")
        s.sentinel_check(range(vR, vR+24), vu)
        s.spin_retry("L_A_pq")
        s.st(4)
        sum6()
        e(f"""v_cvt_pk_bf16_f32 v{vR}, v{vR}, v{vR+1}
        v_cvt_pk_bf16_f32 v{vR+1}, v{vR+2}, v{vR+3}
        v_lshlrev_b32 v{vt}, 3, v1
        v_add_u32 v{vt}, {L_QOP}, v{vt}
        ds_write_b64 v{vt}, {s.q(vR,2)}
        s_setprio 0
        s_lshl_b32 s75, {sMM}, 7
        s_add_u32 s75, s75, {sF}
        v_lshlrev_b32 v{vt}, 12, v2
        v_lshl_add_u32 v{vu}, v3, 4, v{vt}
        s_lshl_b32 {sAP}, {sHkv}, 14
        s_add_u32 {sAP}, {sAP}, {WS_AP}
        s_lshl_b32 {sT2}, {sS}, 1
        s_add_u32 {sT2}, {sT2}, {sB}
        s_lshl_b32 s67, {sT2}, 8
        s_add_u32 s67, s67, {sAP}
        buffer_store_dwordx4 {s.q(vSn)}, v{vu}, {s.sWS}, s67 offen sc1
        s_lshl_b32 s67, {sT2}, 2
        s_add_u32 s67, s67, {sAP}
        buffer_store_dword v{vSn}, v{vt}, {s.sWS}, s67 offen offset:3072 sc1""")
        for j in range(8): vload(1, j, s.WS)
        e(f"""s_waitcnt vmcnt(8)
        s_mov_b64 exec, 1
        buffer_store_dword v{vE}, v{vZ}, {s.sWS}, s75 offen offset:64 sc1
        s_mov_b64 exec, -1
        s_waitcnt lgkmcnt(0)""")
        e("L_A_b2:")
        e(f"""v_xor_b32 v{vt}, v2, v3
        v_lshlrev_b32 v{vt}, 4, v{vt}
        v_and_b32 v{vu}, 3, v3
        v_lshl_or_b32 v{vt}, v{vu}, 10, v{vt}
        v_lshrrev_b32 v{vu}, 2, v3
        v_lshl_or_b32 v{vt}, v{vu}, 8, v{vt}
        v_add_u32 v{vKrd}, {sLb}, v{vt}
        v_xor_b32 v{vKrd+1}, 64, v{vKrd}
        v_xor_b32 v{vKrd+2}, 0x80, v{vKrd}
        v_xor_b32 v{vKrd+3}, 0xc0, v{vKrd}
        v_and_b32 v{vu}, 1, v{vu}
        v_lshlrev_b32 v{vu}, 8, v{vu}
        v_lshl_add_u32 v{vu}, v2, 4, v{vu}
        v_add_u32 v{vu}, {L_QOP}, v{vu}""")
        s.st(5)
        e("s_barrier")
        s.st(6)
        for kk in range(4): e(f"ds_read_b128 {s.q(vQ+4*kk)}, v{vu} offset:{kk*64}")
        def cond_wait(n_if_not6):
            l = s.lab("L_cw")
            e(f"s_cmp_lg_u32 {sH6}, 0\ns_cbranch_scc1 {l}\ns_waitcnt vmcnt({n_if_not6})\n{l}:")
        for i in range(6):
            if i == 5: e(f"s_cmp_eq_u32 {sH6}, 0\ns_cbranch_scc1 L_A_fin")
            e(f"s_waitcnt vmcnt({24 if i < 5 else 8})")
            if i == 4: cond_wait(8)
            for blk in range(2):
                for kk in range(4):
                    e(f"ds_read_b128 {s.q(vKa+16*blk+4*kk)}, v{vKrd+kk} offset:{(i&1)*8192+blk*4096}")
            e("s_waitcnt lgkmcnt(0)")
            for kk in range(4):
                for blk in range(2):
                    c = "0" if kk == 0 else s.q(vS+4*blk)
                    e(f"v_mfma_f32_16x16x32_bf16 {s.q(vS+4*blk)}, {s.q(vKa+16*blk+4*kk)}, {s.q(vQ+4*kk)}, {c}")
            if i + 2 < 5:
                for j in range(8): kload(i+2, j, W[i+2])
            elif i + 2 == 5:
                l = s.lab("L_k5"); e(f"s_cmp_eq_u32 {sH6}, 0\ns_cbranch_scc1 {l}")
                for j in range(8): kload(5, j)
                e(f"{l}:")
            if s.mimic:
                for k in range(4): e(f"v_cvt_pk_bf16_f32 v{vP+k}, v{vS+2*k}, v{vS+2*k+1}")
                for k in range(4): e(f"v_lshlrev_b32 v{vS+2*k}, 16, v{vP+k}\nv_and_b32 v{vS+2*k+1}, 0xffff0000, v{vP+k}")
                for k in range(8): e(f"v_mul_f32 v{vS+k}, {hex(f2u(128**-0.5))}, v{vS+k}")
                for k in range(4): e(f"v_cvt_pk_bf16_f32 v{vP+k}, v{vS+2*k}, v{vS+2*k+1}")
                for k in range(4): e(f"v_lshlrev_b32 v{vS+2*k}, 16, v{vP+k}\nv_and_b32 v{vS+2*k+1}, 0xffff0000, v{vP+k}")
            sC = s.sC if not s.mimic else "s68"
            if s.mimic and i == 0: e(f"s_mov_b32 s68, {hex(f2u(math.log2(math.e)))}")
            e(f"v_max3_f32 v{vt}, v{vS}, v{vS+1}, v{vS+2}\nv_max3_f32 v{vt}, v{vt}, v{vS+3}, v{vS+4}\nv_max3_f32 v{vt}, v{vt}, v{vS+5}, v{vS+6}")
            if i == 0: e(f"v_max_f32 v{vt}, v{vt}, v{vS+7}")
            else: e(f"v_max3_f32 v{vt}, v{vt}, v{vS+7}, v{vM}")
            s.xreduce("v_max_f32", vt, vu)
            e(f"v_mul_f32 v{vNm}, {sC}, v{vt}")
            if i > 0: e(f"v_fma_f32 v{vAl}, v{vM}, {sC}, -v{vNm}\nv_exp_f32 v{vAl}, v{vAl}")
            e(f"v_mov_b32 v{vM}, v{vt}")
            for k in range(8): e(f"v_fma_f32 v{vS+k}, v{vS+k}, {sC}, -v{vNm}")
            if i > 0:
                e(f"v_mov_b32_dpp v{vA2}, v{vAl} row_newbcast:0 row_mask:0x5 bank_mask:0xf\nv_mov_b32_dpp v{vA2}, v{vAl} row_newbcast:4 row_mask:0xa bank_mask:0xf")
            for k in range(8): e(f"v_exp_f32 v{vS+k}, v{vS+k}")
            if i > 0:
                for k in range(8): e(f"v_mul_f32 v{vAcc+4*k}, v{vA2}, v{vAcc+4*k}")
            for k in range(4): e(f"v_cvt_pk_bf16_f32 v{vP+k}, v{vS+2*k}, v{vS+2*k+1}")
            e(f"v_add_f32 v{vS}, v{vS}, v{vS+1}\nv_add_f32 v{vS+2}, v{vS+2}, v{vS+3}\nv_add_f32 v{vS+4}, v{vS+4}, v{vS+5}\nv_add_f32 v{vS+6}, v{vS+6}, v{vS+7}")
            e(f"v_add_f32 v{vS}, v{vS}, v{vS+2}\nv_add_f32 v{vS+4}, v{vS+4}, v{vS+6}\nv_add_f32 v{vS}, v{vS}, v{vS+4}")
            if i == 0: e(f"v_mov_b32 v{vL}, v{vS}")
            else: e(f"v_fma_f32 v{vL}, v{vL}, v{vAl}, v{vS}")
            e(f"s_waitcnt vmcnt({[24,24,24,16,16,0][i]})")
            if i == 4: cond_wait(0)
            s.vlike(vAcc, vP, [vV+(i&1)*32+4*j for j in range(8)], (vT0, vT1), i == 0)
            if i + 2 < 5:
                for j in range(8): vload(i+2, j, W[i+2])
            elif i + 2 == 5:
                l = s.lab("L_v5"); e(f"s_cmp_eq_u32 {sH6}, 0\ns_cbranch_scc1 {l}")
                for j in range(8): vload(5, j)
                e(f"{l}:")
            if i == 0: s.st(7)
        e("L_A_fin:")
        s.st(8)
        sCm = s.sC if not s.mimic else "s68"
        s.xreduce("v_add_f32", vL, vu)
        e(f"""v_mul_f32 v{vM}, {sCm}, v{vM}
        v_bfe_u32 v{vt}, v1, 4, 1
        v_lshlrev_b32 v{vt}, 9, v{vt}
        v_lshl_add_u32 v{vt}, v3, 5, v{vt}
        s_lshl_b32 {sT2}, {s.sW}, 10
        s_add_u32 {sT2}, {sT2}, {L_OC}
        v_add_u32 v{vt}, {sT2}, v{vt}
        v_bfe_u32 v{vu}, v1, 2, 1
        v_lshlrev_b32 v{vu}, 5, v{vu}
        s_lshl_b32 {sT2}, {s.sW}, 2
        s_add_u32 {sT2}, {sT2}, {L_MS}
        v_add_u32 v{vu}, {sT2}, v{vu}
        ds_write2_b32 v{vu}, v{vM}, v{vL} offset0:0 offset1:16""")
        s.gather0(vAcc, vS)
        e(f"ds_write_b128 v{vt}, {s.q(vS)}\nds_write_b128 v{vt}, {s.q(vS+4)} offset:16")
        e(f"""s_lshl_b32 {sT2}, {s.sW}, 8
        s_add_u32 {sT2}, {sT2}, {L_OC}
        v_lshl_add_u32 v{vt}, v1, 2, {sT2}
        s_lshr_b32 {sT2}, {s.sW}, 1
        s_lshl_b32 {sT2}, {sT2}, 5
        s_add_u32 {sT2}, {sT2}, {L_MS}
        v_and_b32 v{vu}, 7, v1
        v_lshl_add_u32 v{vu}, v{vu}, 2, {sT2}
        s_lshl_b32 {sT0}, {sHkv}, 2
        s_add_u32 {sT0}, {sT0}, {s.sW}
        s_lshl_b32 {sT0}, {sT0}, 12
        s_add_u32 {sT0}, {sT0}, {WS_AP}
        s_lshl_b32 {sT2}, {sS}, 1
        s_add_u32 {sT2}, {sT2}, {sB}
        s_lshl_b32 {sT1}, {sT2}, 2
        s_add_u32 {sT1}, {sT1}, {sT0}
        s_lshl_b32 {sT2}, {sT2}, 8
        s_add_u32 {sT0}, {sT0}, {sT2}
        s_waitcnt lgkmcnt(0)
        s_barrier""")
        s.st(9)
        e(f"s_cmp_ge_u32 {s.sW}, 4\ns_cbranch_scc1 L_A_done")
        e(f"ds_read2_b32 {s.q(vP,2)}, v{vu} offset0:0 offset1:16")
        for k in range(8): e(f"ds_read_b32 v{vS+k}, v{vt} offset:{k*1024}")
        e("s_waitcnt lgkmcnt(8)")
        D = "row_mask:0xf bank_mask:0xf"
        e(f"""v_max_f32_dpp v{vM}, v{vP}, v{vP} quad_perm:[1,0,3,2] {D}
        v_max_f32_dpp v{vM}, v{vM}, v{vM} quad_perm:[2,3,0,1] {D}
        v_max_f32_dpp v{vM}, v{vM}, v{vM} row_half_mirror {D}
        v_sub_f32 v{vP}, v{vP}, v{vM}
        v_exp_f32 v{vP}, v{vP}
        v_mul_f32 v{vL}, v{vP}, v{vP+1}
        v_add_f32_dpp v{vL}, v{vL}, v{vL} quad_perm:[1,0,3,2] {D}
        v_add_f32_dpp v{vL}, v{vL}, v{vL} quad_perm:[2,3,0,1] {D}
        v_add_f32_dpp v{vL}, v{vL}, v{vL} row_half_mirror {D}
        v_rcp_f32 v{vAl}, v{vL}
        v_log_f32 v{vL}, v{vL}
        v_lshlrev_b32 v{vt}, 2, v1
        v_mul_f32 v{vP}, v{vP}, v{vAl}
        v_add_f32 v{vL}, v{vL}, v{vM}
        s_waitcnt lgkmcnt(0)
        v_mul_f32_dpp v{vA2}, v{vP}, v{vS} row_newbcast:0 {D}""")
        for k in range(1, 8): e(f"v_fmac_f32_dpp v{vA2}, v{vP}, v{vS+k} row_newbcast:{k} {D}")
        e(f"""v_min_u32 v{vL}, -2, v{vL}
        v_min_u32 v{vA2}, -2, v{vA2}
        buffer_store_dword v{vA2}, v{vt}, {s.sWS}, {sT0} offen sc1
        s_mov_b64 exec, 1
        buffer_store_dword v{vL}, v{vt}, {s.sWS}, {sT1} offen offset:3072 sc1
        s_mov_b64 exec, -1""")
        e("L_A_done:")
        s.st(10)
        s.stamps_out(11)
        e("s_endpgm")

    def roleB(s):
        e = s.e
        sWQ, sUK, sCK, sUV, sWO2, sWO, sG, sOUT = "s[12:15]","s[16:19]","s[20:23]","s[24:27]","s[28:31]","s[32:35]","s[36:39]","s[40:43]"
        e("L_B:"); s.inB = True
        s.post = list(s.common_post)
        s.srd(12, 7, 4718592); s.srd(16, 8, 4194304); s.srd(20, 6, 16777216); s.srd(24, 9, 4194304)
        s.srd(28, 10, 4718592); s.srd(32, 4, 4718592); s.srd(36, 11, 1152); s.srd(40, 12, 2304)
        for p in s.post: e(p)
        s.lane_common(); s.consts()
        sH, sHalf, sJ, sAb, sSp, sCb, sT0, sT1, sT2, sT3, sHo, sTl = "s57","s58","s59","s60","s61","s62","s49","s50","s51","s52","s63","s64"
        e(f"""s_and_b32 {sT0}, s2, 7
        s_lshr_b32 {sT1}, s2, 3
        s_lshr_b32 {sH}, {sT1}, 1
        s_lshl_b32 {sT2}, {sT0}, 2
        s_add_u32 {sH}, {sH}, {sT2}
        s_and_b32 {sHalf}, {sT1}, 1
        s_lshl_b32 {sJ}, {sH}, 1
        s_add_u32 {sJ}, {sJ}, {sHalf}
        s_and_b32 {sAb}, {sT0}, 1
        s_lshr_b32 {sSp}, {sT0}, 1
        s_lshl_b32 {sSp}, {sSp}, 3
        s_add_u32 {sSp}, {sSp}, {sT1}
        s_lshl_b32 {sCb}, {sAb}, 23
        s_lshl_b32 {sT2}, {sSp}, 18
        s_add_u32 {sCb}, {sCb}, {sT2}
        s_lshl_b32 {sT2}, {s.sW}, 13
        s_add_u32 {sCb}, {sCb}, {sT2}
        s_lshl_b32 {sHo}, {sH}, 8""")
        vL16, vt, vu, vD, vUo = 4, 5, 6, 7, 8
        vG0, vG1, vTag = 12, 13, 14
        vCrd, vTr = 16, 20
        vMq, vLq, vMp, vAq, vAp, vNm, vPw, vPr, vXw, vXq, vXp = 24,25,26,27,28,29,30,31,9,10,11
        vS, vT0, vT1 = 32, 36, 40
        vP = 44
        vCa = 60
        vO = 92
        vUV = 124
        vQ = 156
        vWq, vXa = 156, 44
        e(f"""v_lshlrev_b32 v{vL16}, 4, v1
        s_and_b32 {sT2}, {s.sW}, 1
        s_mul_i32 {sT2}, {sT2}, 48
        v_xor_b32 v{vD}, {sT2}, v{vL16}
        v_xor_b32 v{vt}, v2, v3
        v_lshlrev_b32 v{vt}, 4, v{vt}
        v_lshl_or_b32 v{vUo}, v2, 13, v{vt}
        v_lshrrev_b32 v{vt}, 5, v1
        v_lshlrev_b32 v{vt}, 15, v{vt}
        v_and_b32 v{vu}, 31, v1
        v_lshl_add_u32 v{vXw}, v{vu}, 4, v{vt}""")
        def uk_dma(w=None):
            e(f"""s_lshl_b32 {sT0}, {sHalf}, 8
            s_lshl_b32 {sT1}, {s.sW}, 5
            s_add_u32 {sT0}, {sT0}, {sT1}
            s_lshl_b32 {sT0}, {sT0}, 13
            s_add_u32 {sT0}, {sT0}, {sHo}
            s_lshl_b32 {sT1}, {s.sW}, 13
            s_add_u32 {sT1}, {sT1}, {R1}""")
            for j in range(8):
                e(f"s_add_u32 m0, {sT1}, {j*1024}\nv_xor_b32 v{vu}, {(j&3)<<6}, v{vUo}")
                if w: e(f"s_waitcnt vmcnt({w-1})")
                e(f"buffer_load_dwordx4 v{vu}, {sUK}, {sT0} offen nt lds")
                if j < 7: e(f"s_add_u32 {sT0}, {sT0}, 32768")
        def tile_dma(soff, slot_s, w=None):
            for j in range(8):
                if j == 0: e(f"s_mov_b32 m0, {slot_s}")
                if j == 4: e(f"s_add_u32 m0, {slot_s}, 4096\ns_add_u32 {sT3}, {soff}, 4096")
                e(f"v_xor_b32 v{vu}, {(4*(j&3)+2*(j>>2))<<4}, v{vD}")
                if w: e(f"s_waitcnt vmcnt({w-1})")
                e(f"buffer_load_dwordx4 v{vu}, {sCK}, {soff if j<4 else sT3} offen offset:{(j&3)*1024} nt lds")
        def uv_load(w=None):
            e(f"""v_lshrrev_b32 v{vt}, 3, v1
            v_lshlrev_b32 v{vt}, 16, v{vt}
            v_and_b32 v{vu}, 7, v1
            v_lshl_add_u32 v{vt}, v{vu}, 4, v{vt}
            s_lshl_b32 {sT2}, {s.sW}, 19
            s_add_u32 {sT2}, {sT2}, {sHo}
            s_lshl_b32 {sT3}, {sHalf}, 7
            s_add_u32 {sT2}, {sT2}, {sT3}""")
            for j in range(8):
                if w: e(f"s_waitcnt vmcnt({w-1})")
                e(f"buffer_load_dwordx4 {s.q(vUV+4*j)}, v{vt}, {sUV}, {sT2} offen nt")
                if j < 7: e(f"s_add_u32 {sT2}, {sT2}, 8192")
        e(f"s_waitcnt lgkmcnt(0)\ns_cmp_eq_u32 {s.sW}, 7\ns_cbranch_scc1 L_B_svc")
        e(f"s_setprio 2\ns_cmp_lg_u32 {s.sW}, 6\ns_cbranch_scc1 L_B_w05")
        npf = s.code_prefetch(vt, vCa)
        e(f"""v_and_b32 v{vt}, 31, v1
        v_mul_u32_u24 v{vt}, 36, v{vt}
        v_lshrrev_b32 v{vu}, 5, v1
        v_mul_u32_u24 v{vu}, 1152, v{vu}
        v_add_u32 v{vu}, v{vu}, v{vt}
        buffer_load_dwordx4 {s.q(vQ)}, v{vu}, {s.sX}, 0 offen
        buffer_load_dwordx4 {s.q(vQ+4)}, v{vu}, {s.sX}, 0 offen offset:16
        buffer_load_dword v{vQ+8}, v{vu}, {s.sX}, 0 offen offset:32
        buffer_load_dwordx4 {s.q(vQ+12)}, v{vt}, {sG}, 0 offen
        buffer_load_dwordx4 {s.q(vQ+16)}, v{vt}, {sG}, 0 offen offset:16
        buffer_load_dword v{vQ+20}, v{vt}, {sG}, 0 offen offset:32
        v_mov_b32 v{vS}, 0
        s_waitcnt vmcnt(0)""")
        for k in range(9): e(f"v_dot2c_f32_bf16 v{vS}, v{vQ+k}, v{vQ+12+k}")
        s.dppreduce("v_add_f32", vS, (8, 4, 2, 1))
        s.xreduce("v_add_f32", vS, vt, (16,))
        e(f"""v_mul_f32 v{vS}, {hex(f2u(-math.log2(math.e)))}, v{vS}
        v_exp_f32 v{vS}, v{vS}
        v_lshrrev_b32 v{vt}, 5, v1
        v_add_f32 v{vS}, 1.0, v{vS}
        v_rcp_f32 v{vS}, v{vS}
        v_lshlrev_b32 v{vt}, 2, v{vt}
        v_add_u32 v{vt}, {L_GT}, v{vt}
        ds_write_b32 v{vt}, v{vS}""")
        vSn = vCa + 4
        for k in range(4): e(f"v_mov_b32 v{vSn+k}, -1")
        e(f"""v_and_b32 v{vu}, 31, v1
        v_lshlrev_b32 v{vu}, 8, v{vu}
        s_lshl_b32 {sT0}, {sAb}, 5
        s_add_u32 {sT0}, {sT0}, {sSp}
        s_lshl_b32 {sT0}, {sT0}, 2
        s_add_u32 {sT0}, {sT0}, {WS_BST}
        buffer_store_dword v{vSn}, v{vu}, {s.sWS}, {sT0} offen sc1
        v_lshrrev_b32 v{vt}, 2, v1
        v_lshlrev_b32 v{vt}, 12, v{vt}
        v_and_b32 v{vu}, 3, v1
        v_lshl_add_u32 v{vt}, v{vu}, 4, v{vt}
        s_lshl_b32 {sT0}, {sJ}, 6
        s_add_u32 {sT0}, {sT0}, {WS_OP}""")
        for i in range(5):
            if i == 4: e("s_mov_b32 exec_hi, 0")
            e(f"buffer_store_dwordx4 {s.q(vSn)}, v{vt}, {s.sWS}, {sT0} offen sc1")
            if i < 4: e(f"s_add_u32 {sT0}, {sT0}, 65536")
        e("s_mov_b64 exec, -1")
        uk_dma()
        e("s_branch L_B_w06\nL_B_w05:")
        uk_dma(s.BW[0])
        e("L_B_w06:")
        e(f"s_setprio 1\ns_lshl_b32 {sT2}, {s.sW}, 13")
        tile_dma(sCb, sT2, s.BW[1])
        e("s_setprio 0")
        uv_load(s.BW[2])
        s.st(1)
        e("s_branch L_B_b2")
        e("L_B_svc:\ns_setprio 3")
        vE, vZ, vSn, vR = vCa, vCa+1, vCa+4, vQ
        sQB, sQS = "s65", "s66"
        e(f"""v_mov_b32 v{vZ}, 0
        buffer_load_dword v{vE}, v{vZ}, {s.sWS}, 0 offen sc1
        v_mov_b32 v{vSn}, -1
        v_mov_b32 v{vSn+1}, -1
        v_mov_b32 v{vSn+2}, -1
        v_mov_b32 v{vSn+3}, -1
        v_and_b32 v{vu}, 31, v1
        s_lshl_b32 {sQS}, {sJ}, 9
        s_add_u32 {sQS}, {sQS}, {WS_QABS}
        buffer_store_dwordx4 {s.q(vSn)}, v{vXw}, {s.sWS}, {sQS} offen sc1""")
        e(f"""s_lshl_b32 {sT1}, {sJ}, 7
        s_add_u32 {sT1}, {sT1}, {WS_FLAG}
        s_mov_b32 {sT2}, 0x9e3779b1
        s_waitcnt vmcnt(0)
        v_mul_lo_u32 v{vTag}, v{vE}, {sT2}
        v_add_u32 v{vTag}, 0x7f4a7c15, v{vTag}
        v_mov_b32 v{vt}, {L_GT+8}
        s_mov_b64 exec, 1
        buffer_store_dword v{vTag}, v{vZ}, {s.sWS}, {sT1} offen sc1
        ds_write_b32 v{vt}, v{vTag}
        s_mov_b64 exec, -1""")
        s.st(1)
        uk_dma()
        e(f"""v_lshlrev_b32 v{vt}, 7, v1
        v_min_u32 v{vXq}, 11, v1
        v_lshlrev_b32 v{vXq}, 7, v{vXq}
        s_mov_b32 {sQB}, {WS_FLAG}
        s_lshr_b32 {sT0}, {sH}, 1
        s_mul_i32 {sT0}, {sT0}, 12
        s_add_u32 {sT0}, {sT0}, 64
        s_lshl_b32 {sT0}, {sT0}, 7
        s_add_u32 {sT0}, {sT0}, {WS_FLAG}""")
        s.spin_init()
        e(f"""L_B_vf:
        buffer_load_dword v{vu}, v{vt}, {s.sWS}, {sQB} offen sc1
        buffer_load_dword v{vXp}, v{vXq}, {s.sWS}, {sT0} offen sc1
        s_waitcnt vmcnt(0)
        v_cmp_ne_u32 vcc, v{vu}, v{vTag}
        v_cmp_ne_u32 s[54:55], v{vXp}, v{vTag}
        s_or_b64 vcc, vcc, s[54:55]""")
        s.spin_retry("L_B_vf")
        s.st(3)
        e(f"""s_mul_i32 {sT0}, {sH}, 6144
        s_add_u32 {sT0}, {sT0}, {WS_QB}
        s_add_u32 {sT1}, {sT0}, 4096
        L_B_pq:""")
        for t in range(6): e(f"buffer_load_dwordx4 {s.q(vR+4*t)}, v{vL16}, {s.sWS}, {sT0 if t<4 else sT1} offen offset:{(t&3)*1024} sc1")
        e("s_waitcnt vmcnt(0)")
        s.sentinel_check(range(vR, vR+24), vu)
        s.spin_retry("L_B_pq")
        s.st(2)
        s.sum6(vR)
        e(f"""v_cvt_pk_bf16_f32 v{vR}, v{vR}, v{vR+1}
        v_cvt_pk_bf16_f32 v{vR+1}, v{vR+2}, v{vR+3}
        v_lshlrev_b32 v{vt}, 3, v1
        v_add_u32 v{vt}, {L_QOP}, v{vt}
        ds_write_b64 v{vt}, {s.q(vR,2)}""")
        e("L_B_b2:")
        e(f"""v_bfe_u32 v{vu}, v1, 2, 1
        v_lshlrev_b32 v{vXq}, 9, v{vu}
        v_lshlrev_b32 v{vu}, 8, v{vu}
        v_lshl_add_u32 v{vu}, v2, 4, v{vu}
        v_add_u32 v{vu}, {L_QOP}, v{vu}
        v_xor_b32 v{vt}, v2, v3
        v_lshlrev_b32 v{vt}, 4, v{vt}
        v_lshl_or_b32 v{vt}, v3, 8, v{vt}
        s_lshl_b32 {sT2}, {s.sW}, 13
        s_add_u32 {sT2}, {sT2}, {R1}
        v_add_u32 v{vCrd}, {sT2}, v{vt}
        v_xor_b32 v{vCrd+1}, 64, v{vCrd}
        v_xor_b32 v{vCrd+2}, 0x80, v{vCrd}
        v_xor_b32 v{vCrd+3}, 0xc0, v{vCrd}
        v_lshl_add_u32 v{vXq}, v2, 3, v{vXq}
        s_lshl_b32 {sT2}, {s.sW}, 6
        s_add_u32 {sT2}, {sT2}, {L_QS}
        v_add_u32 v{vXq}, {sT2}, v{vXq}""")
        e(f"v_mov_b32 v{vt}, {L_GT}\ns_waitcnt lgkmcnt(0)")
        s.st(4)
        e("s_barrier")
        for kk in range(4): e(f"ds_read_b128 {s.q(vP+4*kk)}, v{vu} offset:{kk*64}")
        e(f"ds_read_b128 {s.q(vG0)}, v{vt}")
        e("s_waitcnt vmcnt(16)")
        for blk in range(2):
            for kk in range(4): e(f"ds_read_b128 {s.q(vCa+16*blk+4*kk)}, v{vCrd+kk} offset:{blk*4096}")
        e("s_waitcnt lgkmcnt(0)")
        for kk in range(4):
            for blk in range(2):
                c = "0" if kk == 0 else s.q(vS+4*blk)
                e(f"v_mfma_f32_16x16x32_bf16 {s.q(vS+4*blk)}, {s.q(vCa+16*blk+4*kk)}, {s.q(vP+4*kk)}, {c}")
        for k in range(4): e(f"v_cvt_pk_bf16_f32 v{vT1+k}, v{vS+2*k}, v{vS+2*k+1}")
        e(f"ds_write_b64 v{vXq}, {s.q(vT1,2)}\nds_write_b64 v{vXq}, {s.q(vT1+2,2)} offset:32\ns_waitcnt lgkmcnt(0)\ns_barrier")
        l = s.lab("L_nq")
        e(f"s_cmp_lg_u32 {s.sW}, 7\ns_cbranch_scc1 {l}")
        e(f"v_add_u32 v{vt}, {L_QS}, v{vL16}\nds_read_b128 {s.q(vT0)}, v{vt}\ns_waitcnt lgkmcnt(0)")
        for k in range(4): e(f"v_min_u32 v{vT0+k}, -2, v{vT0+k}")
        e(f"buffer_store_dwordx4 {s.q(vT0)}, v{vXw}, {s.sWS}, {sQS} offen sc1\ns_lshl_b32 {sT2}, {s.sW}, 13")
        tile_dma(sCb, sT2)
        uv_load()
        e(f"s_setprio 0\n{l}:")
        s.st(5)
        e(f"s_add_u32 {sT0}, {sCb}, 65536\ns_lshl_b32 {sT2}, {s.sW}, 13\ns_add_u32 {sT2}, {sT2}, {R1}")
        tile_dma(sT0, sT2)
        e(f"""s_lshl_b32 {sT0}, {sAb}, 15
        s_lshl_b32 {sT1}, {s.sW}, 12
        s_add_u32 {sT0}, {sT0}, {sT1}
        s_add_u32 {sT0}, {sT0}, {WS_QABS}""")
        def qpoll():
            for q_ in range(4): e(f"buffer_load_dwordx4 {s.q(vCa+4*q_)}, v{vL16}, {s.sWS}, {sT0} offen offset:{q_*1024} sc1")
        e(f"""s_lshl_b32 {sT2}, {s.sW}, 6
        s_and_b32 {sT2}, {sT2}, 0xff
        v_xor_b32 v{vt}, {sT2}, v{vL16}
        s_add_u32 {sT1}, {sT1}, {X}
        v_add_u32 v{vt}, {sT1}, v{vt}""")
        s.spin_init()
        e("L_B_qp:")
        qpoll()
        e("s_waitcnt vmcnt(0)")
        s.sentinel_check(range(vCa, vCa+16), vu)
        s.spin_retry("L_B_qp")
        for q_ in range(4):
            if q_: e(f"v_xor_b32 v{vu}, {q_<<4}, v{vt}")
            e(f"ds_write_b128 v{vu if q_ else vt}, {s.q(vCa+4*q_)} offset:{q_*1024}")
        e(f"""s_lshr_b32 {sT0}, {s.sW}, 2
        s_and_b32 {sT1}, {s.sW}, 3
        v_xor_b32 v{vt}, v2, v3
        v_lshlrev_b32 v{vt}, 4, v{vt}
        v_lshl_or_b32 v{vt}, v3, 10, v{vt}
        s_lshl_b32 {sT2}, {sT0}, 14
        s_add_u32 {sT2}, {sT2}, {X}
        v_add_u32 v{vTr}, {sT2}, v{vt}
        v_xor_b32 v{vTr+1}, 64, v{vTr}
        v_xor_b32 v{vTr+2}, 0x80, v{vTr}
        v_xor_b32 v{vTr+3}, 0xc0, v{vTr}
        s_waitcnt lgkmcnt(0)""")
        s.st(6)
        e("s_barrier")
        for kk in range(16): e(f"ds_read_b128 {s.q(vQ+4*kk)}, v{vTr+(kk&3)} offset:{(kk>>2)*256}")
        e(f"""s_mov_b32 {sT3}, 0x78
        v_lshrrev_b32 v{vt}, 2, v3
        v_lshlrev_b32 v{vt}, 1, v{vt}
        v_bfe_u32 v{vt}, {sT3}, v{vt}, 2
        v_and_b32 v{vu}, 3, v3
        v_lshl_or_b32 v{vt}, v{vu}, 2, v{vt}
        v_xor_b32 v{vt}, v{vt}, v2
        v_lshlrev_b32 v{vt}, 4, v{vt}
        v_lshl_or_b32 v{vt}, v3, 10, v{vt}
        s_lshl_b32 {sT2}, {sT1}, 14
        v_add_u32 v{vCrd}, {sT2}, v{vt}
        v_xor_b32 v{vCrd+1}, 64, v{vCrd}
        v_xor_b32 v{vCrd+2}, 0x80, v{vCrd}
        v_xor_b32 v{vCrd+3}, 0xc0, v{vCrd}
        s_lshl_b32 {sT2}, {sT0}, 4
        v_add_u32 v{vt}, {sT2}, v3
        v_mul_u32_u24 v{vPw}, 144, v{vt}
        v_lshl_add_u32 v{vPw}, v2, 3, v{vPw}
        s_lshl_b32 {sT2}, {sT1}, 5
        s_add_u32 {sT2}, {sT2}, {L_PB}
        v_add_u32 v{vPw}, {sT2}, v{vPw}
        v_lshlrev_b32 v{vXq}, 4, v{vt}
        v_add_u32 v{vXq}, {L_MX}, v{vXq}
        s_lshl_b32 {sT2}, {sT1}, 2
        v_add_u32 v{vXw}, {sT2}, v{vXq}
        v_and_b32 v{vt}, 31, v1
        v_lshlrev_b32 v{vXp}, 4, v{vt}
        v_add_u32 v{vXp}, {L_MX}, v{vXp}
        v_mul_u32_u24 v{vPr}, 144, v{vt}
        v_lshrrev_b32 v{vu}, 5, v1
        v_lshl_add_u32 v{vPr}, v{vu}, 4, v{vPr}
        v_add_u32 v{vPr}, {L_PB}, v{vPr}
        s_waitcnt lgkmcnt(0)""")
        e(f"""v_bfe_u32 v{vt}, v1, 2, 2
        v_lshl_add_u32 v{vTr+1}, v{vu}, 3, v{vt}
        v_lshlrev_b32 v{vTr+1}, 10, v{vTr+1}
        v_lshlrev_b32 v{vt}, 2, v{vt}
        v_mad_u32_u24 v{vt}, v{vu}, 3, v{vt}
        v_bfe_u32 v{vu}, v1, 4, 1
        v_lshlrev_b32 v{vu}, 1, v{vu}
        v_bfe_u32 v{vTr+2}, v1, 1, 1
        v_add_u32 v{vu}, v{vu}, v{vTr+2}
        s_lshl_b32 {sT2}, {s.sW}, 3
        v_add_u32 v{vu}, {sT2}, v{vu}
        v_xor_b32 v{vu}, v{vu}, v{vt}
        v_lshl_or_b32 v{vTr}, v{vu}, 4, v{vTr+1}
        v_and_b32 v{vu}, 1, v1
        v_lshl_or_b32 v{vTr}, v{vu}, 3, v{vTr}
        v_xor_b32 v{vTr+1}, 64, v{vTr}
        v_xor_b32 v{vTr+2}, 32, v{vTr}
        v_xor_b32 v{vTr+3}, 0x60, v{vTr}
        v_mov_b32 v{vMq}, 0xff800000
        v_mov_b32 v{vMp}, 0xff800000
        v_mov_b32 v{vLq}, 0""")
        def w_dma(srd, ldsbase):
            e(f"""s_mul_i32 {sT0}, {sJ}, 73728
            s_mul_i32 {sT1}, {s.sW}, 9216
            s_add_u32 {sT0}, {sT0}, {sT1}""")
            for j in range(9):
                if j % 4 == 0:
                    e(f"s_add_u32 m0, {sT1}, {ldsbase + j*1024}")
                    if j: e(f"s_add_u32 {sT0}, {sT0}, 4096")
                e(f"buffer_load_dwordx4 v{vL16}, {srd}, {sT0} offen offset:{(j&3)*1024} nt lds")
        def tile(tl):
            if s.bdet: s.st2(3*tl)
            if tl == 2: e("s_waitcnt vmcnt(8)")
            e("s_barrier")
            if s.bdet: s.st2(3*tl+1)
            def crd(kk): e(f"ds_read_b128 {s.q(vCa+4*(kk&7))}, v{vCrd+(kk&3)} offset:{(kk>>2)*256}")
            for kk in range(8): crd(kk)
            for h4 in range(4):
                e(f"s_waitcnt lgkmcnt({4 if h4 < 3 else 0})")
                for kk in range(4*h4, 4*h4+4):
                    c = "0" if kk == 0 else s.q(vS)
                    e(f"v_mfma_f32_16x16x32_bf16 {s.q(vS)}, {s.q(vCa+4*(kk&7))}, {s.q(vQ+4*kk)}, {c}")
                if h4 < 2:
                    for kk in range(4*h4+8, 4*h4+12): crd(kk)
            e(f"v_max3_f32 v{vt}, v{vS}, v{vS+1}, v{vS+2}\nv_max_f32 v{vt}, v{vt}, v{vS+3}")
            s.xreduce("v_max_f32", vt, vu)
            e(f"ds_write_b32 v{vXw}, v{vt}\ns_waitcnt lgkmcnt(0)\ns_barrier")
            e(f"ds_read_b128 {s.q(vT0)}, v{vXq}\nds_read_b128 {s.q(vT1)}, v{vXp}\ns_waitcnt lgkmcnt(1)")
            e(f"""v_max3_f32 v{vt}, v{vT0}, v{vT0+1}, v{vT0+2}
            v_max3_f32 v{vt}, v{vt}, v{vT0+3}, v{vMq}
            v_mul_f32 v{vNm}, {s.sC}, v{vt}
            v_fma_f32 v{vAq}, v{vMq}, {s.sC}, -v{vNm}
            v_mov_b32 v{vMq}, v{vt}
            v_exp_f32 v{vAq}, v{vAq}""")
            for k in range(4): e(f"v_fma_f32 v{vS+k}, v{vS+k}, {s.sC}, -v{vNm}")
            for k in range(4): e(f"v_exp_f32 v{vS+k}, v{vS+k}")
            e(f"""s_waitcnt lgkmcnt(0)
            v_max3_f32 v{vt}, v{vT1}, v{vT1+1}, v{vT1+2}
            v_cvt_pk_bf16_f32 v{vT0}, v{vS}, v{vS+1}
            v_cvt_pk_bf16_f32 v{vT0+1}, v{vS+2}, v{vS+3}
            v_max3_f32 v{vt}, v{vt}, v{vT1+3}, v{vMp}
            ds_write_b64 v{vPw}, {s.q(vT0,2)}
            v_add_f32 v{vS}, v{vS}, v{vS+1}
            v_add_f32 v{vS+2}, v{vS+2}, v{vS+3}
            v_sub_f32 v{vAp}, v{vMp}, v{vt}
            v_add_f32 v{vS}, v{vS}, v{vS+2}
            v_mul_f32 v{vAp}, {s.sC}, v{vAp}
            v_fma_f32 v{vLq}, v{vLq}, v{vAq}, v{vS}
            v_exp_f32 v{vAp}, v{vAp}
            v_mov_b32 v{vMp}, v{vt}""")
            if tl == 3:
                s.xreduce("v_add_f32", vLq, vu)
                e(f"ds_write_b32 v{vXw}, v{vLq} offset:512")
            if tl > 0:
                for k in range(32): e(f"v_mul_f32 v{vO+k}, v{vAp}, v{vO+k}")
            e("s_waitcnt lgkmcnt(0)\ns_barrier")
            if s.bdet: s.st2(3*tl+2)
            for ks in range(4):
                e(f"ds_read_b128 {s.q(vP+4*ks)}, v{vPr} offset:{ks*32}")
                for mb in range(2):
                    for t in range(2):
                        e(f"ds_read_b64_tr_b16 {s.q(vCa+8*ks+4*mb+2*t,2)}, v{vTr+2*t+mb} offset:{ks*16384+t*4096}")
            for ks in range(4):
                e(f"s_waitcnt lgkmcnt({min(15, 5*(3-ks))})")
                for mb in range(2):
                    c = "0" if (tl == 0 and ks == 0) else s.q(vO+16*mb,16)
                    e(f"v_mfma_f32_32x32x16_bf16 {s.q(vO+16*mb,16)}, {s.q(vCa+8*ks+4*mb)}, {s.q(vP+4*ks)}, {c}")
            e("s_barrier")
            if tl < 2:
                e(f"s_add_u32 {sT0}, {sCb}, {(tl+2)<<16}\ns_lshl_b32 {sT2}, {s.sW}, 13")
                if tl: e(f"s_add_u32 {sT2}, {sT2}, {R1}")
                tile_dma(sT0, sT2)
            if tl == 2:
                l = s.lab("L_wo")
                e(f"s_cmp_eq_u32 {s.sW}, 7\ns_cbranch_scc1 {l}")
                w_dma(sWO2, 0)
                e(f"s_waitcnt vmcnt(9)\ns_branch {l}b\n{l}:\ns_waitcnt vmcnt(0)\n{l}b:")
            if tl == 3:
                l = s.lab("L_wo")
                e(f"s_cmp_lg_u32 {s.sW}, 7\ns_cbranch_scc1 {l}")
                w_dma(sWO2, 0)
                e(f"{l}:")
            if tl < 3:
                for k in range(4): e(f"v_xor_b32 v{vCrd+k}, 0x10000, v{vCrd+k}\nv_xor_b32 v{vTr+k}, 0x10000, v{vTr+k}")
        for tl in range(4): tile(tl)
        s.st(7)
        e(f"""ds_read_b128 {s.q(vT0)}, v{vXp} offset:512
        v_and_b32 v{vt}, 31, v1
        v_mul_u32_u24 v{vt}, 1040, v{vt}
        v_lshrrev_b32 v{vu}, 5, v1
        v_lshl_add_u32 v{vt}, v{vu}, 3, v{vt}
        s_lshl_b32 {sT2}, {s.sW}, 7
        s_add_u32 {sT2}, {sT2}, {L_OS}
        v_add_u32 v{vt}, {sT2}, v{vt}
        s_waitcnt lgkmcnt(0)
        v_add_f32 v{vT0}, v{vT0}, v{vT0+1}
        v_add_f32 v{vT0+2}, v{vT0+2}, v{vT0+3}
        v_add_f32 v{vT0}, v{vT0}, v{vT0+2}
        v_rcp_f32 v{vAp}, v{vT0}
        v_log_f32 v{vLq}, v{vT0}
        v_fma_f32 v{vLq}, v{vMp}, {s.sC}, v{vLq}
        v_min_u32 v{vLq}, -2, v{vLq}""")
        for k in range(32): e(f"v_mul_f32 v{vO+k}, v{vAp}, v{vO+k}")
        for k in range(16): e(f"v_cvt_pk_bf16_f32 v{vCa+k}, v{vO+2*k}, v{vO+2*k+1}")
        for mb in range(2):
            for q4 in range(4): e(f"ds_write_b64 v{vt}, {s.q(vCa+8*mb+2*q4,2)} offset:{mb*64+q4*16}")
        e(f"""s_mul_i32 {sT2}, {s.sW}, 4160
        s_add_u32 {sT2}, {sT2}, {L_OS}
        v_add_u32 v{vt}, {sT2}, v{vL16}
        s_lshl_b32 {sT0}, {s.sW}, 18
        s_lshl_b32 {sT1}, {sAb}, 15
        s_add_u32 {sT0}, {sT0}, {sT1}
        s_lshl_b32 {sT1}, {sSp}, 10
        s_add_u32 {sT0}, {sT0}, {sT1}
        s_add_u32 {sT0}, {sT0}, {WS_BP}
        s_waitcnt lgkmcnt(0)
        s_barrier""")
        for q_ in range(4): e(f"ds_read_b128 {s.q(vCa+4*q_)}, v{vt} offset:{q_*1040}")
        for q_ in range(4):
            e(f"s_waitcnt lgkmcnt({3-q_})\nbuffer_store_dwordx4 {s.q(vCa+4*q_)}, v{vL16}, {s.sWS}, {sT0} offen sc1")
            if q_ < 3: e(f"s_add_u32 {sT0}, {sT0}, 65536")
        e("s_waitcnt vmcnt(0)\ns_barrier")
        l = s.lab("L_ns")
        e(f"""s_cmp_lg_u32 {s.sW}, 7
        s_cbranch_scc1 {l}
        v_and_b32 v{vu}, 31, v1
        v_lshlrev_b32 v{vu}, 8, v{vu}
        s_lshl_b32 {sT0}, {sAb}, 5
        s_add_u32 {sT0}, {sT0}, {sSp}
        s_lshl_b32 {sT0}, {sT0}, 2
        s_add_u32 {sT0}, {sT0}, {WS_BST}
        buffer_store_dword v{vLq}, v{vu}, {s.sWS}, {sT0} offen sc1
        {l}:""")
        s.st(8)
        e(f"v_lshlrev_b32 v{vt}, 2, v1\ns_add_u32 {sT0}, {sHo}, {WS_BST}")
        s.spin_init()
        e(f"""v_min_u32 v{vXq}, 11, v1
        v_lshlrev_b32 v{vXq}, 7, v{vXq}
        s_lshr_b32 {sT1}, {sH}, 1
        s_mul_i32 {sT1}, {sT1}, 12
        s_add_u32 {sT1}, {sT1}, 64
        s_lshl_b32 {sT1}, {sT1}, 7
        s_add_u32 {sT1}, {sT1}, {WS_FLAG}
        L_B_ps:
        buffer_load_dword v{vS}, v{vt}, {s.sWS}, {sT0} offen sc1
        buffer_load_dword v{vu}, v{vXq}, {s.sWS}, {sT1} offen offset:64 sc1
        s_waitcnt vmcnt(0)
        v_cmp_eq_u32 vcc, -1, v{vS}
        v_cmp_ne_u32 s[54:55], v{vu}, v{vTag}
        s_or_b64 vcc, vcc, s[54:55]""")
        s.spin_retry("L_B_ps", 4)
        e(f"""v_lshlrev_b32 v{vu}, 4, v3
        v_lshl_or_b32 v{vu}, v2, 13, v{vu}
        s_lshl_b32 {sT0}, {sH}, 16
        s_lshr_b32 {sT1}, {s.sW}, 2
        s_lshl_b32 {sT2}, {sT1}, 15
        s_add_u32 {sT0}, {sT0}, {sT2}
        s_and_b32 {sT2}, {s.sW}, 3
        s_lshl_b32 {sT2}, {sT2}, 8
        s_add_u32 {sT0}, {sT0}, {sT2}
        s_add_u32 {sT0}, {sT0}, {WS_BP}
        s_add_u32 {sT3}, {sT0}, 4096""")
        for j in range(8): e(f"buffer_load_dwordx4 {s.q(vCa+4*j)}, v{vu}, {s.sWS}, {sT0 if j<4 else sT3} offen offset:{(j&3)*1024} sc1")
        e(f"""s_lshl_b32 {sT3}, {s.sW}, 7
        s_add_u32 {sT3}, {sT3}, {L_WT}
        v_lshl_add_u32 v{vXw}, v1, 1, {sT3}
        s_lshl_b32 {sTl}, {sT1}, 6
        s_add_u32 {sT3}, {sT3}, {sTl}
        v_lshl_add_u32 v{vXq}, v2, 4, {sT3}
        s_lshl_b32 {sT1}, {sT1}, 10
        s_add_u32 {sT1}, {sT1}, {sT2}
        s_add_u32 {sT1}, {sT1}, {L_OCB}
        v_lshl_add_u32 v{vXp}, v3, 4, {sT1}""")
        w_dma(sWO, L_WO)
        e(f"v_mov_b32 v{vt}, v{vS}")
        s.dppreduce("v_max_f32", vt, (8, 4, 2, 1)); s.xreduce("v_max_f32", vt, vu, (16,))
        e(f"v_sub_f32 v{vS}, v{vS}, v{vt}\nv_exp_f32 v{vS}, v{vS}\nv_mov_b32 v{vt}, v{vS}")
        s.dppreduce("v_add_f32", vt, (8, 4, 2, 1)); s.xreduce("v_add_f32", vt, vu, (16,))
        e(f"""v_rcp_f32 v{vt}, v{vt}
        v_mul_f32 v{vS}, v{vS}, v{vt}
        v_cvt_pk_bf16_f32 v{vS}, v{vS}, v{vS}
        ds_write_b16 v{vXw}, v{vS}
        s_waitcnt lgkmcnt(0)
        ds_read_b128 {s.q(vP)}, v{vXq}
        s_waitcnt vmcnt(9) lgkmcnt(0)""")
        s.vlike(vO, vP, [vCa+4*j for j in range(8)], (vT0, vT1), True)
        for k in range(4): e(f"v_cvt_pk_bf16_f32 v{vP+k}, v{vO+8*k}, v{vO+8*k+4}")
        e(f"ds_write_b128 v{vXp}, {s.q(vP)}")
        e(f"""v_bfe_u32 v{vt}, v1, 2, 1
        v_lshlrev_b32 v{vt}, 10, v{vt}
        v_lshl_add_u32 v{vt}, v2, 5, v{vt}
        v_bfe_u32 v{vu}, v1, 3, 1
        v_lshl_add_u32 v{vt}, v{vu}, 4, v{vt}
        s_lshl_b32 {sT0}, {s.sW}, 7
        s_add_u32 {sT0}, {sT0}, {L_OCB}
        v_add_u32 v{vt}, {sT0}, v{vt}
        v_lshrrev_b32 v{vXq}, 5, v1
        v_cmp_eq_u32 vcc, v{vXq}, v{vu}
        v_lshlrev_b32 v{vXq}, 8, v2
        v_and_b32 v{vu}, 7, v1
        v_lshl_add_u32 v{vXq}, v{vu}, 5, v{vXq}
        s_lshl_b32 {sT0}, {s.sW}, 10
        v_add_u32 v{vXq}, {sT0}, v{vXq}
        v_mov_b32 v{vu}, 8192
        v_cndmask_b32 v{vXq}, v{vu}, v{vXq}, vcc
        v_add_u32 v{vXq}, {L_CP}, v{vXq}
        s_waitcnt lgkmcnt(0)
        s_barrier
        ds_read_b128 {s.q(vP)}, v{vt}
        s_waitcnt lgkmcnt(0)""")
        s.vlike(vO, vP, [vUV+4*j for j in range(8)], (vT0, vT1), True)
        s.gather0(vO, vP)
        e(f"ds_write_b128 v{vXq}, {s.q(vP)}\nds_write_b128 v{vXq}, {s.q(vP+4)} offset:16\ns_waitcnt lgkmcnt(0)\ns_barrier")
        l = s.lab("L_nc")
        e(f"""s_cmp_lg_u32 {s.sW}, 0
        s_cbranch_scc1 {l}
        v_lshrrev_b32 v{vu}, 5, v1
        v_and_b32 v{vt}, 31, v1
        v_lshlrev_b32 v{vt}, 4, v{vt}
        v_lshl_add_u32 v{vt}, v{vu}, 12, v{vt}
        v_add_u32 v{vt}, {L_CP}, v{vt}""")
        for p in range(8): e(f"ds_read_b128 {s.q(vCa+4*p)}, v{vt} offset:{p*512}")
        e(f"""v_bfe_u32 v{vu}, v1, 4, 1
        v_cmp_eq_u32 vcc, 0, v{vu}
        v_cndmask_b32 v{vS}, v{vG1}, v{vG0}, vcc
        v_sub_f32 v{vS}, 1.0, v{vS}
        v_cmp_gt_u32 vcc, 32, v1
        v_cndmask_b32 v{vS}, 0, v{vS}, vcc
        v_lshlrev_b32 v{vt}, 3, v1
        v_add_u32 v{vt}, {L_CTX}, v{vt}
        s_waitcnt lgkmcnt(0)""")
        for k in range(4):
            for p in range(4): e(f"v_add_f32 v{vCa+8*p+k}, v{vCa+8*p+k}, v{vCa+8*p+4+k}")
            e(f"v_add_f32 v{vCa+k}, v{vCa+k}, v{vCa+8+k}\nv_add_f32 v{vCa+16+k}, v{vCa+16+k}, v{vCa+24+k}\nv_add_f32 v{vCa+k}, v{vCa+k}, v{vCa+16+k}")
        for k in range(4): s.xreduce("v_add_f32", vCa+k, vu, (32,))
        for k in range(4): e(f"v_mul_f32 v{vCa+k}, v{vS}, v{vCa+k}")
        e(f"""v_cvt_pk_bf16_f32 v{vCa}, v{vCa}, v{vCa+1}
        v_cvt_pk_bf16_f32 v{vCa+1}, v{vCa+2}, v{vCa+3}
        v_cndmask_b32 v{vCa}, 0, v{vCa}, vcc
        v_cndmask_b32 v{vCa+1}, 0, v{vCa+1}, vcc
        ds_write_b64 v{vt}, {s.q(vCa,2)}
        {l}:
        s_waitcnt vmcnt(0) lgkmcnt(0)
        s_barrier""")
        s.st(9)
        e(f"s_cmp_ge_u32 {s.sW}, 6\ns_cbranch_scc1 L_B_red")
        vD6, vWb, vA8, vPl = vO, vQ, vP, vCa
        e(f"""v_min_u32 v{vt}, 2, v3
        v_lshlrev_b32 v{vt}, 7, v{vt}
        v_lshl_add_u32 v{vt}, v2, 3, v{vt}
        v_add_u32 v{vt}, {L_CTX}, v{vt}
        v_lshrrev_b32 v{vu}, 2, v1
        v_mul_u32_u24 v{vu}, 1152, v{vu}
        v_and_b32 v{vXq}, 3, v1
        v_lshl_add_u32 v{vu}, v{vXq}, 3, v{vu}
        s_mul_i32 {sT0}, {s.sW}, 192
        v_add_u32 v{vu}, {sT0}, v{vu}""")
        for q_ in range(4): e(f"ds_read_b64 {s.q(vA8+2*q_,2)}, v{vt} offset:{q_*32}")
        def wtr():
            for ti in range(6):
                for q_ in range(4): e(f"ds_read_b64_tr_b16 {s.q(vWb+8*ti+2*q_,2)}, v{vu} offset:{q_*18432+ti*32}")
        def wmf(init):
            for ks in range(2):
                for ti in range(6):
                    c = "0" if (init and ks == 0) else s.q(vD6+4*ti)
                    e(f"v_mfma_f32_16x16x32_bf16 {s.q(vD6+4*ti)}, {s.q(vA8+4*ks)}, {s.q(vWb+8*ti+4*ks)}, {c}")
        wtr()
        e(f"v_add_u32 v{vu}, {L_WO}, v{vu}\ns_waitcnt lgkmcnt(0)")
        wmf(True)
        wtr()
        vPo, vPs, vGs, vOo = vXq, vXp, vXw, vPw
        e(f"""v_lshlrev_b32 v{vPo}, 8, v3
        v_lshl_add_u32 v{vPo}, v2, 4, v{vPo}
        v_lshlrev_b32 v{vPs}, 2, v3
        v_mov_b32 v{vt}, {OOB}
        v_cmp_gt_u32 s[54:55], 12, v3
        v_cndmask_b32 v{vPo}, v{vt}, v{vPo}, s[54:55]
        v_cndmask_b32 v{vPs}, v{vt}, v{vPs}, s[54:55]
        v_and_b32 v{vt}, 1, v1
        v_cmp_eq_u32 vcc, 0, v{vt}
        v_cndmask_b32 v{vGs}, v{vG1}, v{vG0}, vcc
        v_and_b32 v{vt}, 1, v2
        v_mul_u32_u24 v{vt}, 36, v{vt}
        v_lshrrev_b32 v{vu}, 1, v2
        v_add_u32 v{vt}, v{vt}, v{vu}
        v_lshlrev_b32 v{vt}, 12, v{vt}
        v_lshl_add_u32 v{vOo}, v3, 2, v{vt}
        v_mov_b32 v{vNm}, 0xff800000
        s_lshl_b32 {sT0}, {sJ}, 12
        s_add_u32 {sT0}, {sT0}, {WS_AP}
        s_mul_i32 {sT1}, {s.sW}, {6*4096}
        s_lshl_b32 {sT2}, {sJ}, 6
        s_add_u32 {sT1}, {sT1}, {sT2}
        s_add_u32 {sT1}, {sT1}, {WS_OP}
        s_add_u32 {sT2}, {sT1}, 8192
        s_add_u32 {sT3}, {sT1}, 16384
        s_waitcnt lgkmcnt(0)""")
        s.spin_init()
        if s.hop1 in ("two", "any"):
            e(f"L_B_h0:\nbuffer_load_dword v{vS}, v{vPs}, {s.sWS}, {sT0} offen offset:3072 sc1\ns_waitcnt vmcnt(0)")
            if s.hop1 == "two":
                e(f"v_cmp_eq_u32 vcc, -1, v{vS}")
            else:
                e(f"v_cmp_eq_u32 vcc, -1, v{vS}\ns_cmp_eq_u64 vcc, s[54:55]\ns_cselect_b64 vcc, vcc, 0")
            s.spin_retry("L_B_h0", 2)
        e("L_B_h1:")
        e(f"buffer_load_dword v{vS}, v{vPs}, {s.sWS}, {sT0} offen offset:3072 sc1")
        for q_ in range(4): e(f"buffer_load_dwordx4 {s.q(vPl+4*q_)}, v{vPo}, {s.sWS}, {sT0} offen offset:{q_*64} sc1")
        e("s_waitcnt vmcnt(0)")
        s.sentinel_check([vS] + list(range(vPl, vPl+16)), vu)
        s.spin_retry("L_B_h1", 0)
        s.st(10)
        e(f"v_cndmask_b32 v{vS}, v{vNm}, v{vS}, s[54:55]")
        e(f"v_max_f32_dpp v{vt}, v{vS}, v{vS} row_ror:2 row_mask:0xf bank_mask:0xf")
        s.dppreduce("v_max_f32", vt, (4, 8))
        e(f"v_sub_f32 v{vS}, v{vS}, v{vt}\nv_exp_f32 v{vS}, v{vS}")
        e(f"v_add_f32_dpp v{vt}, v{vS}, v{vS} row_ror:2 row_mask:0xf bank_mask:0xf")
        s.dppreduce("v_add_f32", vt, (4, 8))
        e(f"v_rcp_f32 v{vt}, v{vt}\nv_mul_f32 v{vS}, v{vS}, v{vGs}\nv_mul_f32 v{vS}, v{vS}, v{vt}")
        for k in range(16): e(f"v_mul_f32 v{vPl+k}, v{vS}, v{vPl+k}")
        for k in range(8): e(f"v_cvt_pk_bf16_f32 v{vA8+k}, v{vPl+2*k}, v{vPl+2*k+1}")
        wmf(False)
        for ti in range(6): e(f"v_add_f32 v{vD6+4*ti}, v{vD6+4*ti}, v{vD6+4*ti+2}\nv_add_f32 v{vD6+4*ti+1}, v{vD6+4*ti+1}, v{vD6+4*ti+3}")
        for u in range(3):
            a = vD6 + 8*u
            e(f"v_permlane32_swap_b32 v{a}, v{a+4}\nv_permlane32_swap_b32 v{a+1}, v{a+5}")
        for u in range(3):
            a = vD6 + 8*u
            e(f"v_add_f32 v{a}, v{a}, v{a+4}\nv_add_f32 v{a+1}, v{a+1}, v{a+5}")
        for u in range(3):
            a = vD6 + 8*u
            e(f"v_permlane16_swap_b32 v{a}, v{a+1}")
        for u in range(3):
            a = vD6 + 8*u
            e(f"v_add_f32 v{a}, v{a}, v{a+1}\nv_min_u32 v{a}, -2, v{a}")
            e(f"buffer_store_dword v{a}, v{vOo}, {s.sWS}, {[sT1,sT2,sT3][u]} offen sc1")
        e("s_branch L_B_done")
        e("L_B_red:")
        e(f"""s_sub_u32 {sT0}, {s.sW}, 6
        s_lshl_b32 {sT0}, {sT0}, 6
        s_add_u32 {sT0}, {sT0}, {sJ}
        s_cmp_ge_u32 {sT0}, 72
        s_cbranch_scc1 L_B_done
        s_lshl_b32 {sT1}, {sT0}, 12
        s_add_u32 {sT1}, {sT1}, {WS_OP}
        s_lshl_b32 {sT2}, {sT0}, 5
        v_and_b32 v{vt}, 3, v1
        v_lshlrev_b32 v{vt}, 2, v{vt}
        v_and_b32 v{vu}, 1, v2
        v_lshl_add_u32 v{vt}, v{vu}, 1, v{vt}
        v_lshrrev_b32 v{vu}, 1, v2
        v_add_lshl_u32 v{vXq}, v{vt}, v{vu}, 1""")
        s.spin_init()
        if s.hop1 in ("two", "any"):
            e(f"s_lshl_b32 {sT3}, {sJ}, 6\ns_add_u32 {sT3}, {sT3}, {sT1}\nv_mov_b32 v{vt}, 0")
            e(f"L_B_r0:\nbuffer_load_dword v{vS}, v{vt}, {s.sWS}, {sT3} offen sc1\ns_waitcnt vmcnt(0)\nv_cmp_eq_u32 vcc, -1, v{vS}")
            s.spin_retry("L_B_r0", 1)
        e("L_B_h2:")
        for q_ in range(4): e(f"buffer_load_dwordx4 {s.q(vCa+4*q_)}, v{vL16}, {s.sWS}, {sT1} offen offset:{q_*1024} sc1")
        e("s_waitcnt vmcnt(0)")
        s.sentinel_check(range(vCa, vCa+16), vu)
        s.spin_retry("L_B_h2", 0)
        s.st(10)
        for k in range(4): e(f"v_add_f32 v{vCa+k}, v{vCa+k}, v{vCa+4+k}\nv_add_f32 v{vCa+8+k}, v{vCa+8+k}, v{vCa+12+k}")
        for k in range(4): e(f"v_add_f32 v{vCa+k}, v{vCa+k}, v{vCa+8+k}")
        e(f"""v_permlane32_swap_b32 v{vCa}, v{vCa+1}
        v_permlane32_swap_b32 v{vCa+2}, v{vCa+3}
        v_add_f32 v{vCa}, v{vCa}, v{vCa+1}
        v_add_f32 v{vCa+2}, v{vCa+2}, v{vCa+3}
        v_permlane16_swap_b32 v{vCa}, v{vCa+2}
        v_add_f32 v{vCa}, v{vCa}, v{vCa+2}""")
        s.dppreduce("v_add_f32", vCa, (4, 8))
        e(f"""v_cvt_pk_bf16_f32 v{vCa}, v{vCa}, v{vCa}
        buffer_store_short v{vCa}, v{vXq}, {sOUT}, {sT2} offen
        s_cmp_lg_u32 {sT0}, 0
        s_cbranch_scc1 L_B_done
        v_mov_b32 v{vt}, 0
        s_mov_b64 exec, 1
        buffer_store_dword v{vTag}, v{vt}, {s.sWS}, 0 offen sc1
        s_mov_b64 exec, -1""")
        e("L_B_done:")
        s.st(11)
        s.stamps_out(12)
        e("L_end:\ns_endpgm")

    def text(s):
        s.entry(); s.roleA(); s.roleB()
        lines = fix(s.L)
        body = "\n".join(("" if l.endswith(":") else "    ") + l for l in lines)
        body += "\nL_codeend:\n"
        return body

HEADER = """; Fused decode step: out = g * GQA(x) + (1 - g) * latent-KV attention(x), one persistent launch.
"""
def make(path, **kw):
    g = G(**kw)
    body = g.text()
    src = wrap(body, 256, 512, LDS_BYTES, vgpr=256, sgpr=102, accum=256, header=HEADER)
    src = src.replace("  .amdhsa_system_sgpr_workgroup_id_x 1\n", "  .amdhsa_system_sgpr_workgroup_id_x 1\n  .amdhsa_float_denorm_mode_32 3\n")
    open(path, "w").write(src)
    return build(path)

if __name__ == "__main__":
    kw = json.loads(sys.argv[2]) if len(sys.argv) > 2 else {}
    co = make(sys.argv[1], **kw)
    import subprocess
    r = subprocess.run(["llvm-readelf", "-S", co], capture_output=True, text=True).stdout
    print([l for l in r.splitlines() if ".text" in l])
```

```python
import sys, json, math, struct
from asmlib import *
from hazard import fix

def f2u(f): return struct.unpack("<I", struct.pack("<f", f))[0]

WS_E, WS_FLAG, WS_QA, WS_QB, WS_QABS, WS_BST, WS_AP, WS_OP, WS_BP, WS_STAMP = \
    0x0, 0x1000, 0x10000, 0x40000, 0x70000, 0x80000, 0x90000, 0xD0000, 0x200000, 0x400000
OOB = 0x40000000
X = 131072
L_PQ, L_QOP, L_GT = X, X + 12288, X + 12800
L_OC, L_MS = X + 16384, X + 24576
L_QS = X + 28672
R1 = 65536
L_PB = X + 16384; L_MX = L_PB + 4608; L_LS = L_PB + 5120
L_OS = 98304
L_WT = X + 16384; L_OCB = L_WT + 1024; L_CP = L_WT + 4096; L_CTX = L_WT + 12544
L_WO = 73728
LDS_BYTES = 163840

class G:
    def __init__(s, W=(4,4,5,5,6), NPRE=4, WS=12, stamp=False, hop1="full", mimic=False, rot=0, spin=1 << 17, sleep=1, pf=True, wqpol='nt', bdet=False, BW=(3,5,6), early=False, dbg='', wsoff=0):
        s.L = []; s.W = list(W) if not isinstance(W, int) else [W]*5; s.NPRE = NPRE; s.WS = WS; s.stamp = stamp; s.hop1 = hop1; s.mimic = mimic; s.rot = rot
        s.spin = spin; s.sleep = sleep; s.nlab = 0; s.pf = pf; s.wqpol = wqpol; s.bdet = bdet; s.BW = BW; s.early = early; s.dbg = dbg; s.wsoff = wsoff; s.inB = False
    def e(s, t):
        for x in t.split("\n"):
            x = x.strip()
            if x: s.L.append(x)
    def lab(s, p="L"):
        s.nlab += 1; return f"{p}_{s.nlab}"
    def st2(s, k):
        s.e(f"s_memrealtime s[{76+2*k}:{77+2*k}]")
    def st(s, k):
        if s.stamp and not (s.bdet and s.inB): s.e(f"s_memrealtime s[{76+2*k}:{77+2*k}]")
    sX, sWS = "s[4:7]", "s[8:11]"
    sW, sLO, sHI, sC, sCnt = "s44", "s45", "s46", "s47", "s48"
    def q(s, r, n=4): return f"v[{r}:{r+n-1}]"

    def spin_init(s): s.e(f"s_mov_b32 {s.sCnt}, {s.spin}")
    def spin_retry(s, label, sleep=None):
        if "nodep" in getattr(s, "dbg", "") and label not in ("L_A_wc", "L_A_wc2", "L_A_wq2"): return
        ok = s.lab("L_ok")
        s.e(f"s_cbranch_vccz {ok}")
        s.e(f"s_sub_u32 {s.sCnt}, {s.sCnt}, 1")
        s.e("s_cbranch_scc1 L_end")
        sl = s.sleep if sleep is None else sleep
        if sl: s.e(f"s_sleep {sl}")
        s.e(f"s_branch {label}")
        s.e(f"{ok}:")
    def sentinel_check(s, rs, t):
        rs = list(rs)
        if len(rs) == 1:
            s.e(f"v_cmp_eq_u32 vcc, -1, v{rs[0]}"); return
        if len(rs) == 2: s.e(f"v_max_u32 v{t}, v{rs[0]}, v{rs[1]}"); rs = []
        else: s.e(f"v_max3_u32 v{t}, v{rs[0]}, v{rs[1]}, v{rs[2]}"); rs = rs[3:]
        while len(rs) >= 2: s.e(f"v_max3_u32 v{t}, v{t}, v{rs[0]}, v{rs[1]}"); rs = rs[2:]
        if rs: s.e(f"v_max_u32 v{t}, v{t}, v{rs[0]}")
        s.e(f"v_cmp_eq_u32 vcc, -1, v{t}")
    def xreduce(s, op, v, t, which=(32, 16)):
        for k in which:
            s.e(f"v_mov_b32 v{t}, v{v}")
            s.e(f"v_permlane{k}_swap_b32 v{t}, v{v}")
            s.e(f"{op} v{v}, v{t}, v{v}")
    def dppreduce(s, op, v, rors):
        for r in rors: s.e(f"{op}_dpp v{v}, v{v}, v{v} row_ror:{r} row_mask:0xf bank_mask:0xf")
    def vlike(s, acc, A, rows, T, init):
        nd = len(rows) // 2
        mf = "v_mfma_f32_16x16x32_bf16" if nd == 4 else "v_mfma_f32_16x16x16_bf16"
        def perms(e_):
            sel = s.sHI if e_ & 1 else s.sLO
            for t in range(nd):
                s.e(f"v_perm_b32 v{T[e_&1]+t}, v{rows[2*t+1]+(e_>>1)}, v{rows[2*t]+(e_>>1)}, {sel}")
        perms(0)
        for e_ in range(8):
            if e_ < 7: perms(e_ + 1)
            c = "0" if init else s.q(acc + 4 * e_)
            s.e(f"{mf} {s.q(acc+4*e_)}, {s.q(A, nd)}, {s.q(T[e_&1], nd)}, {c}")
    def sum6(s, r):
        for k in range(4):
            s.e(f"v_add_f32 v{r+k}, v{r+k}, v{r+4+k}\nv_add_f32 v{r+8+k}, v{r+8+k}, v{r+12+k}\nv_add_f32 v{r+16+k}, v{r+16+k}, v{r+20+k}")
        for k in range(4):
            s.e(f"v_add_f32 v{r+k}, v{r+k}, v{r+8+k}\nv_add_f32 v{r+k}, v{r+k}, v{r+16+k}")
    def gather0(s, acc, dst):
        for e_ in range(8): s.e(f"v_mov_b32 v{dst+e_}, v{acc+4*e_}")
    def srd(s, base, slot, size):
        s.e(f"s_load_dwordx2 s[{base}:{base+1}], s[0:1], {slot*8}")
        s.post.append(f"s_mov_b32 s{base+2}, {size}"); s.post.append(f"s_mov_b32 s{base+3}, 0x20000")
    def consts(s):
        s.e(f"s_mov_b32 {s.sLO}, 0x05040100\ns_mov_b32 {s.sHI}, 0x07060302")
        s.e(f"s_mov_b32 {s.sC}, {hex(f2u(128**-0.5*math.log2(math.e)))}")
    def code_prefetch(s, vt, vd):
        if not s.pf: return 0
        s.e("s_getpc_b64 s[70:71]\nL_pc_%d:" % s.nlab); l = "L_pc_%d" % s.nlab; s.nlab += 1
        s.e(f"s_lshr_b32 s72, s2, 3\ns_and_b32 s72, s72, 7\ns_mul_i32 s72, s72, {s.pfn*1024}")
        s.e(f"s_sub_u32 s70, s70, {l}-{KNAME}\ns_subb_u32 s71, s71, 0")
        s.e(f"v_lshl_add_u32 v{vt}, v1, 4, s72")
        n = s.pfn
        for k in range(n):
            s.e(f"v_min_u32 v{vd+4}, L_codeend-{KNAME}-16, v{vt}")
            s.e(f"global_load_dwordx4 {s.q(vd)}, v{vd+4}, s[70:71]")
            if k + 1 < n: s.e(f"v_add_u32 v{vt}, 1024, v{vt}")
        return n
    pfn = 4
    def stamps_out(s, n):
        if not s.stamp: return
        s.e("s_waitcnt lgkmcnt(0)")
        s.e("s_getreg_b32 s74, hwreg(HW_REG_XCC_ID)")
        s.e(f"v_mov_b32 v2, 0")
        for k in range(12): s.e(f"v_writelane_b32 v2, s{76+2*k}, {k}")
        s.e("v_writelane_b32 v2, s74, 12")
        s.e(f"s_lshl_b32 s74, s2, 3\ns_add_u32 s74, s74, {s.sW}\ns_lshl_b32 s74, s74, 6\ns_add_u32 s74, s74, {WS_STAMP}")
        s.e("v_lshlrev_b32 v3, 2, v1\ns_mov_b64 exec, 0xffff")
        s.e(f"buffer_store_dword v2, v3, {s.sWS}, s74 offen\ns_waitcnt vmcnt(0)")

    def entry(s):
        e = s.e
        e("s_cmp_ge_u32 s2, 256\ns_cbranch_scc1 L_end")
        s.post = []
        s.srd(4, 0, 2304); s.srd(8, 14, 0x10000000 - s.wsoff)
        s.common_post = list(s.post)
        if s.stamp:
            for k in range(12): e(f"s_mov_b32 s{76+2*k}, 0")
        s.st(0)
        e("s_cmp_lt_u32 s2, 64\ns_cbranch_scc1 L_B")

    def wsfix(s):
        if s.wsoff: s.e(f"s_add_u32 s8, s8, {s.wsoff}\ns_addc_u32 s9, s9, 0")
    def lane_common(s):
        s.e(f"v_lshrrev_b32 v2, 6, v0\nv_and_b32 v1, 63, v0\nv_readfirstlane_b32 {s.sW}, v2")
        s.e("v_lshrrev_b32 v2, 4, v1\nv_and_b32 v3, 15, v1")

    def roleA(s):
        e = s.e; W = s.W
        sWQ, sK, sV = "s[12:15]", "s[16:19]", "s[20:23]"
        s.post = list(s.common_post)
        s.srd(12, 3, 4718592); s.srd(24, 7, 4718592); s.srd(16, 1, 0x4000000); s.srd(20, 2, 0x4000000)
        for p in s.post: e(p)
        s.lane_common(); s.consts()
        sHkv, sB, sS, sMM, sKb, sLb, sH6, sT0, sT1, sT2, sTag = "s57","s58","s59","s60","s61","s62","s63","s49","s50","s51","s64"
        e(f"""s_sub_u32 {sT0}, s2, 64
        s_and_b32 {sHkv}, {sT0}, 7
        s_lshr_b32 {sMM}, {sT0}, 3
        s_lshl_b32 {sHkv}, {sHkv}, 1
        s_cmp_ge_u32 {sMM}, 12
        s_cselect_b32 {sT1}, 1, 0
        s_cselect_b32 {sT2}, 12, 0
        s_add_u32 {sHkv}, {sHkv}, {sT1}
        s_sub_u32 {sMM}, {sMM}, {sT2}
        s_cmp_ge_u32 {sMM}, 6
        s_cselect_b32 {sB}, 1, 0
        s_cselect_b32 {sT2}, 6, 0
        s_sub_u32 {sS}, {sMM}, {sT2}
        s_mul_i32 {sT0}, {sS}, 43
        s_cmp_eq_u32 {sS}, 5
        s_cselect_b32 {sT1}, 1, 0
        s_sub_u32 {sT0}, {sT0}, {sT1}
        s_add_u32 {sT0}, {sT0}, {s.sW}
        s_lshl_b32 {sT0}, {sT0}, 13
        s_lshl_b32 {sKb}, {sB}, 4
        s_add_u32 {sKb}, {sKb}, {sHkv}
        s_lshl_b32 {sKb}, {sKb}, 21
        s_add_u32 {sKb}, {sKb}, {sT0}
        s_cmp_lt_u32 {sS}, 4
        s_cselect_b32 {sT0}, 3, 2
        s_cmp_lt_u32 {s.sW}, {sT0}
        s_cselect_b32 {sH6}, 1, 0
        s_lshl_b32 {sLb}, {s.sW}, 14""")
        vKoff, vVoff, vKrd = 4, 8, 12
        vM, vL, vAl, vNm, vA2, vt, vu = 9, 10, 11, 16, 17, 18, 19
        vQ, vS, vP, vT0, vT1 = 20, 36, 44, 48, 52
        vKa, vAcc, vV = 56, 88, 120
        vWoff, vXoff, vXa, vQ2 = 16, 17, 44, 184
        e(f"""v_lshlrev_b32 v{vVoff}, 4, v1
        v_lshlrev_b32 v{vt}, 2, v2
        v_xor_b32 v{vt}, v{vt}, v3
        v_lshlrev_b32 v{vt}, 4, v{vt}
        v_lshl_or_b32 v{vKoff}, v2, 8, v{vt}
        v_xor_b32 v{vKoff+1}, 16, v{vKoff}
        v_xor_b32 v{vKoff+2}, 32, v{vKoff}
        v_xor_b32 v{vKoff+3}, 48, v{vKoff}
        v_lshlrev_b32 v{vWoff}, 4, v3
        v_lshl_or_b32 v{vWoff}, v2, 15, v{vWoff}
        v_bfe_u32 v{vXoff}, v1, 2, 1
        v_mul_u32_u24 v{vXoff}, 1152, v{vXoff}
        v_lshl_add_u32 v{vXoff}, v2, 3, v{vXoff}""")
        def kload(i, j, w=None):
            if j % 4 == 0:
                e(f"s_add_u32 {sT0}, {sKb}, {i*65536 + (j>>2)*4096}\ns_add_u32 m0, {sLb}, {(i&1)*8192 + (j>>2)*4096}")
            if w is not None: e(f"s_waitcnt vmcnt({w-1})")
            e(f"buffer_load_dwordx4 v{vKoff+(j&3)}, {sK}, {sT0} offen offset:{(j&3)*1024} nt lds")
        def vload(i, j, w=None):
            if j % 4 == 0: e(f"s_add_u32 {sT1}, {sKb}, {i*65536 + (j>>2)*4096}")
            if w is not None: e(f"s_waitcnt vmcnt({w-1})")
            e(f"buffer_load_dwordx4 {s.q(vV+(i&1)*32+4*j)}, v{vVoff}, {sV}, {sT1} offen offset:{(j&3)*1024} nt")
        NPRE = s.NPRE
        e(f"s_cmp_ge_u32 {s.sW}, 6\ns_cbranch_scc1 L_A_w67")
        e(f"""s_mul_i32 {sT0}, {sS}, 96
        s_lshl_b32 {sT1}, {s.sW}, 4
        s_add_u32 {sT0}, {sT0}, {sT1}
        s_lshl_b32 {sT1}, {sT0}, 1
        s_lshl_b32 {sT0}, {sT0}, 13
        s_lshl_b32 {sT2}, {sHkv}, 1
        s_add_u32 {sT2}, {sT2}, {sB}
        s_lshl_b32 {sT2}, {sT2}, 8
        s_add_u32 {sT2}, {sT2}, {sT0}
        s_waitcnt lgkmcnt(0)""")
        s.wsfix()
        for jj in range(4):
            e(f"buffer_load_dwordx4 {s.q(vKa+4*jj)}, v{vWoff}, s[24:27], {sT2} offen nt")
            e(f"buffer_load_dwordx4 {s.q(vKa+16+4*jj)}, v{vWoff}, {sWQ}, {sT2} offen nt")
            if jj < 3: e(f"s_add_u32 {sT2}, {sT2}, 8192")
        e(f"buffer_load_dwordx2 {s.q(vXa,2)}, v{vXoff}, {s.sX}, {sT1} offen")
        if s.early:
            for j in range(NPRE): kload(0, j)
        s.st(1)
        e(f"v_bfe_u32 v{vt}, v1, 4, 1\nv_lshlrev_b32 v{vt}, 9, v{vt}\nv_lshl_add_u32 v{vt}, v3, 5, v{vt}")
        e(f"s_lshl_b32 {sT2}, {s.sW}, 10\ns_add_u32 {sT2}, {sT2}, {L_PQ}\nv_add_u32 v{vt}, {sT2}, v{vt}")
        if s.early: e(f"s_waitcnt vmcnt({NPRE})")
        else:
            e("s_waitcnt vmcnt(0)")
            for j in range(NPRE): kload(0, j)
        s.vlike(vAcc, vXa, [vKa+4*j for j in range(4)], (vT0, vT1), True)
        s.vlike(vQ2, vXa, [vKa+16+4*j for j in range(4)], (vT0, vT1), True)
        s.gather0(vAcc, vS)
        e(f"ds_write_b128 v{vt}, {s.q(vS)} offset:6144\nds_write_b128 v{vt}, {s.q(vS+4)} offset:6160")
        s.gather0(vQ2, vQ)
        e(f"ds_write_b128 v{vt}, {s.q(vQ)}\nds_write_b128 v{vt}, {s.q(vQ+4)} offset:16\ns_waitcnt lgkmcnt(0)")
        e("s_branch L_A_b1")
        e("L_A_w67:")
        e("s_waitcnt lgkmcnt(0)"); s.wsfix(); e(f"s_cmp_eq_u32 {s.sW}, 7\ns_cbranch_scc1 L_A_svc")
        s.code_prefetch(vt, vKa)
        for j in range(NPRE): kload(0, j)
        e("L_A_b1:")
        s.st(2)
        e("s_barrier")
        for j in range(NPRE, 8): kload(0, j, W[0])
        for j in range(8): vload(0, j, W[0])
        for j in range(8): kload(1, j, W[1])
        for j in range(8): vload(1, j, W[1])
        e("s_branch L_A_b2")
        e("L_A_svc:\ns_setprio 3")
        vE, vZ, vSn = vKa, vKa+1, vKa+4
        sQA, sAP = "s65", "s66"
        e(f"""v_mov_b32 v{vZ}, 0
        buffer_load_dword v{vE}, v{vZ}, {s.sWS}, 0 offen sc1
        v_mov_b32 v{vSn}, -1
        v_mov_b32 v{vSn+1}, -1
        v_mov_b32 v{vSn+2}, -1
        v_mov_b32 v{vSn+3}, -1
        s_mul_i32 {sT0}, {sHkv}, 12
        s_add_u32 {sT1}, {sT0}, {sMM}
        s_lshl_b32 {sQA}, {sT1}, 10
        s_add_u32 {sQA}, {sQA}, {WS_QA}
        buffer_store_dwordx4 {s.q(vSn)}, v{vVoff}, {s.sWS}, {sQA} offen sc1
        s_add_u32 s75, {sQA}, {WS_QB-WS_QA}
        buffer_store_dwordx4 {s.q(vSn)}, v{vVoff}, {s.sWS}, s75 offen sc1
        s_add_u32 {sT1}, {sT1}, 64
        s_lshl_b32 {sT1}, {sT1}, 7
        s_add_u32 {sT1}, {sT1}, {WS_FLAG}
        s_mov_b32 s67, 0x9e3779b1
        s_waitcnt vmcnt(0)
        v_mul_lo_u32 v{vE}, v{vE}, s67
        v_add_u32 v{vE}, 0x7f4a7c15, v{vE}
        s_mov_b64 exec, 1
        buffer_store_dword v{vE}, v{vZ}, {s.sWS}, {sT1} offen sc1
        s_mov_b64 exec, -1""")
        s.st(1)
        sF, sP0, sP1 = "s67", "s69", "s73"
        e(f"""v_min_u32 v{vt}, 11, v1
        v_lshlrev_b32 v{vt}, 7, v{vt}
        s_add_u32 {sF}, {sT0}, 64
        s_lshl_b32 {sF}, {sF}, 7
        s_add_u32 {sF}, {sF}, {WS_FLAG}
        s_lshl_b32 {sP0}, {sT0}, 10
        s_lshl_b32 {sT2}, {sB}, 9
        s_add_u32 {sP0}, {sP0}, {sT2}
        s_add_u32 {sP0}, {sP0}, {WS_QA}
        s_add_u32 {sP1}, {sP0}, 4096""")
        for j in range(8): kload(0, j)
        e("s_barrier")
        s.st(2)
        vR = vAcc
        e(f"v_add_u32 v{vu}, {L_PQ}, v{vVoff}")
        for t in range(6): e(f"ds_read_b128 {s.q(vQ2+4*t)}, v{vu} offset:{6144+t*1024}")
        for t in range(6): e(f"ds_read_b128 {s.q(vR+4*t)}, v{vu} offset:{t*1024}")
        sum6 = lambda r=vR: s.sum6(r)
        e("s_waitcnt lgkmcnt(6)")
        sum6(vQ2)
        for k in range(4): e(f"v_min_u32 v{vQ2+k}, -2, v{vQ2+k}")
        e(f"buffer_store_dwordx4 {s.q(vQ2)}, v{vVoff}, {s.sWS}, s75 offen sc1")
        e("s_waitcnt lgkmcnt(0)")
        sum6()
        for k in range(4): e(f"v_min_u32 v{vR+k}, -2, v{vR+k}")
        e(f"buffer_store_dwordx4 {s.q(vR)}, v{vVoff}, {s.sWS}, {sQA} offen sc1")
        s.spin_init()
        e(f"buffer_load_dword v{vu}, v{vt}, {s.sWS}, {sF} offen sc1")
        for j in range(8): vload(0, j)
        e(f"s_waitcnt vmcnt(8)\ns_branch L_A_vc")
        e(f"L_A_vf:\nbuffer_load_dword v{vu}, v{vt}, {s.sWS}, {sF} offen sc1\ns_waitcnt vmcnt(0)\nL_A_vc:\nv_cmp_ne_u32 vcc, v{vu}, v{vE}")
        s.spin_retry("L_A_vf")
        s.st(3)
        e(f"""v_lshrrev_b32 v{vt}, 5, v1
        v_mul_u32_u24 v{vt}, 6144, v{vt}
        v_and_b32 v{vu}, 31, v1
        v_lshl_add_u32 v{vt}, v{vu}, 4, v{vt}""")
        def qap():
            for t in range(6): e(f"buffer_load_dwordx4 {s.q(vR+4*t)}, v{vt}, {s.sWS}, {sP0 if t<4 else sP1} offen offset:{(t&3)*1024} sc1")
        qap()
        for j in range(8): kload(1, j)
        e("s_waitcnt vmcnt(8)\ns_branch L_A_pc\nL_A_pq:")
        qap()
        e("s_waitcnt vmcnt(0)\nL_A_pc:")
        s.sentinel_check(range(vR, vR+24), vu)
        s.spin_retry("L_A_pq")
        s.st(4)
        sum6()
        e(f"""v_cvt_pk_bf16_f32 v{vR}, v{vR}, v{vR+1}
        v_cvt_pk_bf16_f32 v{vR+1}, v{vR+2}, v{vR+3}
        v_lshlrev_b32 v{vt}, 3, v1
        v_add_u32 v{vt}, {L_QOP}, v{vt}
        ds_write_b64 v{vt}, {s.q(vR,2)}
        s_setprio 0
        s_lshl_b32 s75, {sMM}, 7
        s_add_u32 s75, s75, {sF}
        v_lshlrev_b32 v{vt}, 12, v2
        v_lshl_add_u32 v{vu}, v3, 4, v{vt}
        s_lshl_b32 {sAP}, {sHkv}, 14
        s_add_u32 {sAP}, {sAP}, {WS_AP}
        s_lshl_b32 {sT2}, {sS}, 1
        s_add_u32 {sT2}, {sT2}, {sB}
        s_lshl_b32 s67, {sT2}, 8
        s_add_u32 s67, s67, {sAP}
        buffer_store_dwordx4 {s.q(vSn)}, v{vu}, {s.sWS}, s67 offen sc1
        s_lshl_b32 s67, {sT2}, 2
        s_add_u32 s67, s67, {sAP}
        buffer_store_dword v{vSn}, v{vt}, {s.sWS}, s67 offen offset:3072 sc1""")
        for j in range(8): vload(1, j, s.WS)
        e(f"""s_waitcnt vmcnt(8)
        s_mov_b64 exec, 1
        buffer_store_dword v{vE}, v{vZ}, {s.sWS}, s75 offen offset:64 sc1
        s_mov_b64 exec, -1
        s_waitcnt lgkmcnt(0)""")
        e("L_A_b2:")
        e(f"""v_xor_b32 v{vt}, v2, v3
        v_lshlrev_b32 v{vt}, 4, v{vt}
        v_and_b32 v{vu}, 3, v3
        v_lshl_or_b32 v{vt}, v{vu}, 10, v{vt}
        v_lshrrev_b32 v{vu}, 2, v3
        v_lshl_or_b32 v{vt}, v{vu}, 8, v{vt}
        v_add_u32 v{vKrd}, {sLb}, v{vt}
        v_xor_b32 v{vKrd+1}, 64, v{vKrd}
        v_xor_b32 v{vKrd+2}, 0x80, v{vKrd}
        v_xor_b32 v{vKrd+3}, 0xc0, v{vKrd}
        v_and_b32 v{vu}, 1, v{vu}
        v_lshlrev_b32 v{vu}, 8, v{vu}
        v_lshl_add_u32 v{vu}, v2, 4, v{vu}
        v_add_u32 v{vu}, {L_QOP}, v{vu}""")
        s.st(5)
        e("s_barrier")
        s.st(6)
        for kk in range(4): e(f"ds_read_b128 {s.q(vQ+4*kk)}, v{vu} offset:{kk*64}")
        def cond_wait(n_if_not6):
            l = s.lab("L_cw")
            e(f"s_cmp_lg_u32 {sH6}, 0\ns_cbranch_scc1 {l}\ns_waitcnt vmcnt({n_if_not6})\n{l}:")
        for i in range(6):
            if i == 5: e(f"s_cmp_eq_u32 {sH6}, 0\ns_cbranch_scc1 L_A_fin")
            e(f"s_waitcnt vmcnt({24 if i < 5 else 8})")
            if i == 4: cond_wait(8)
            for blk in range(2):
                for kk in range(4):
                    e(f"ds_read_b128 {s.q(vKa+16*blk+4*kk)}, v{vKrd+kk} offset:{(i&1)*8192+blk*4096}")
            e("s_waitcnt lgkmcnt(0)")
            for kk in range(4):
                for blk in range(2):
                    c = "0" if kk == 0 else s.q(vS+4*blk)
                    e(f"v_mfma_f32_16x16x32_bf16 {s.q(vS+4*blk)}, {s.q(vKa+16*blk+4*kk)}, {s.q(vQ+4*kk)}, {c}")
            if i + 2 < 5:
                for j in range(8): kload(i+2, j, W[i+2])
            elif i + 2 == 5:
                l = s.lab("L_k5"); e(f"s_cmp_eq_u32 {sH6}, 0\ns_cbranch_scc1 {l}")
                for j in range(8): kload(5, j)
                e(f"{l}:")
            if s.mimic:
                for k in range(4): e(f"v_cvt_pk_bf16_f32 v{vP+k}, v{vS+2*k}, v{vS+2*k+1}")
                for k in range(4): e(f"v_lshlrev_b32 v{vS+2*k}, 16, v{vP+k}\nv_and_b32 v{vS+2*k+1}, 0xffff0000, v{vP+k}")
                for k in range(8): e(f"v_mul_f32 v{vS+k}, {hex(f2u(128**-0.5))}, v{vS+k}")
                for k in range(4): e(f"v_cvt_pk_bf16_f32 v{vP+k}, v{vS+2*k}, v{vS+2*k+1}")
                for k in range(4): e(f"v_lshlrev_b32 v{vS+2*k}, 16, v{vP+k}\nv_and_b32 v{vS+2*k+1}, 0xffff0000, v{vP+k}")
            sC = s.sC if not s.mimic else "s68"
            if s.mimic and i == 0: e(f"s_mov_b32 s68, {hex(f2u(math.log2(math.e)))}")
            e(f"v_max3_f32 v{vt}, v{vS}, v{vS+1}, v{vS+2}\nv_max3_f32 v{vt}, v{vt}, v{vS+3}, v{vS+4}\nv_max3_f32 v{vt}, v{vt}, v{vS+5}, v{vS+6}")
            if i == 0: e(f"v_max_f32 v{vt}, v{vt}, v{vS+7}")
            else: e(f"v_max3_f32 v{vt}, v{vt}, v{vS+7}, v{vM}")
            s.xreduce("v_max_f32", vt, vu)
            e(f"v_mul_f32 v{vNm}, {sC}, v{vt}")
            if i > 0: e(f"v_fma_f32 v{vAl}, v{vM}, {sC}, -v{vNm}\nv_exp_f32 v{vAl}, v{vAl}")
            e(f"v_mov_b32 v{vM}, v{vt}")
            for k in range(8): e(f"v_fma_f32 v{vS+k}, v{vS+k}, {sC}, -v{vNm}")
            if i > 0:
                e(f"v_mov_b32_dpp v{vA2}, v{vAl} row_newbcast:0 row_mask:0x5 bank_mask:0xf\nv_mov_b32_dpp v{vA2}, v{vAl} row_newbcast:4 row_mask:0xa bank_mask:0xf")
            for k in range(8): e(f"v_exp_f32 v{vS+k}, v{vS+k}")
            if i > 0:
                for k in range(8): e(f"v_mul_f32 v{vAcc+4*k}, v{vA2}, v{vAcc+4*k}")
            for k in range(4): e(f"v_cvt_pk_bf16_f32 v{vP+k}, v{vS+2*k}, v{vS+2*k+1}")
            e(f"v_add_f32 v{vS}, v{vS}, v{vS+1}\nv_add_f32 v{vS+2}, v{vS+2}, v{vS+3}\nv_add_f32 v{vS+4}, v{vS+4}, v{vS+5}\nv_add_f32 v{vS+6}, v{vS+6}, v{vS+7}")
            e(f"v_add_f32 v{vS}, v{vS}, v{vS+2}\nv_add_f32 v{vS+4}, v{vS+4}, v{vS+6}\nv_add_f32 v{vS}, v{vS}, v{vS+4}")
            if i == 0: e(f"v_mov_b32 v{vL}, v{vS}")
            else: e(f"v_fma_f32 v{vL}, v{vL}, v{vAl}, v{vS}")
            e(f"s_waitcnt vmcnt({[24,24,24,16,16,0][i]})")
            if i == 4: cond_wait(0)
            s.vlike(vAcc, vP, [vV+(i&1)*32+4*j for j in range(8)], (vT0, vT1), i == 0)
            if i + 2 < 5:
                for j in range(8): vload(i+2, j, W[i+2])
            elif i + 2 == 5:
                l = s.lab("L_v5"); e(f"s_cmp_eq_u32 {sH6}, 0\ns_cbranch_scc1 {l}")
                for j in range(8): vload(5, j)
                e(f"{l}:")
            if i == 0: s.st(7)
        e("L_A_fin:")
        s.st(8)
        sCm = s.sC if not s.mimic else "s68"
        s.xreduce("v_add_f32", vL, vu)
        e(f"""v_mul_f32 v{vM}, {sCm}, v{vM}
        v_bfe_u32 v{vt}, v1, 4, 1
        v_lshlrev_b32 v{vt}, 9, v{vt}
        v_lshl_add_u32 v{vt}, v3, 5, v{vt}
        s_lshl_b32 {sT2}, {s.sW}, 10
        s_add_u32 {sT2}, {sT2}, {L_OC}
        v_add_u32 v{vt}, {sT2}, v{vt}
        v_bfe_u32 v{vu}, v1, 2, 1
        v_lshlrev_b32 v{vu}, 5, v{vu}
        s_lshl_b32 {sT2}, {s.sW}, 2
        s_add_u32 {sT2}, {sT2}, {L_MS}
        v_add_u32 v{vu}, {sT2}, v{vu}
        ds_write2_b32 v{vu}, v{vM}, v{vL} offset0:0 offset1:16""")
        s.gather0(vAcc, vS)
        e(f"ds_write_b128 v{vt}, {s.q(vS)}\nds_write_b128 v{vt}, {s.q(vS+4)} offset:16")
        e(f"""s_lshl_b32 {sT2}, {s.sW}, 8
        s_add_u32 {sT2}, {sT2}, {L_OC}
        v_lshl_add_u32 v{vt}, v1, 2, {sT2}
        s_lshr_b32 {sT2}, {s.sW}, 1
        s_lshl_b32 {sT2}, {sT2}, 5
        s_add_u32 {sT2}, {sT2}, {L_MS}
        v_and_b32 v{vu}, 7, v1
        v_lshl_add_u32 v{vu}, v{vu}, 2, {sT2}
        s_lshl_b32 {sT0}, {sHkv}, 2
        s_add_u32 {sT0}, {sT0}, {s.sW}
        s_lshl_b32 {sT0}, {sT0}, 12
        s_add_u32 {sT0}, {sT0}, {WS_AP}
        s_lshl_b32 {sT2}, {sS}, 1
        s_add_u32 {sT2}, {sT2}, {sB}
        s_lshl_b32 {sT1}, {sT2}, 2
        s_add_u32 {sT1}, {sT1}, {sT0}
        s_lshl_b32 {sT2}, {sT2}, 8
        s_add_u32 {sT0}, {sT0}, {sT2}
        s_waitcnt lgkmcnt(0)
        s_barrier""")
        s.st(9)
        e(f"s_cmp_ge_u32 {s.sW}, 4\ns_cbranch_scc1 L_A_done")
        e(f"ds_read2_b32 {s.q(vP,2)}, v{vu} offset0:0 offset1:16")
        for k in range(8): e(f"ds_read_b32 v{vS+k}, v{vt} offset:{k*1024}")
        e("s_waitcnt lgkmcnt(8)")
        D = "row_mask:0xf bank_mask:0xf"
        e(f"""v_max_f32_dpp v{vM}, v{vP}, v{vP} quad_perm:[1,0,3,2] {D}
        v_max_f32_dpp v{vM}, v{vM}, v{vM} quad_perm:[2,3,0,1] {D}
        v_max_f32_dpp v{vM}, v{vM}, v{vM} row_half_mirror {D}
        v_sub_f32 v{vP}, v{vP}, v{vM}
        v_exp_f32 v{vP}, v{vP}
        v_mul_f32 v{vL}, v{vP}, v{vP+1}
        v_add_f32_dpp v{vL}, v{vL}, v{vL} quad_perm:[1,0,3,2] {D}
        v_add_f32_dpp v{vL}, v{vL}, v{vL} quad_perm:[2,3,0,1] {D}
        v_add_f32_dpp v{vL}, v{vL}, v{vL} row_half_mirror {D}
        v_rcp_f32 v{vAl}, v{vL}
        v_log_f32 v{vL}, v{vL}
        v_lshlrev_b32 v{vt}, 2, v1
        v_mul_f32 v{vP}, v{vP}, v{vAl}
        v_add_f32 v{vL}, v{vL}, v{vM}
        s_waitcnt lgkmcnt(0)
        v_mul_f32_dpp v{vA2}, v{vP}, v{vS} row_newbcast:0 {D}""")
        for k in range(1, 8): e(f"v_fmac_f32_dpp v{vA2}, v{vP}, v{vS+k} row_newbcast:{k} {D}")
        e(f"""v_min_u32 v{vL}, -2, v{vL}
        v_min_u32 v{vA2}, -2, v{vA2}
        buffer_store_dword v{vA2}, v{vt}, {s.sWS}, {sT0} offen sc1
        s_mov_b64 exec, 1
        buffer_store_dword v{vL}, v{vt}, {s.sWS}, {sT1} offen offset:3072 sc1
        s_mov_b64 exec, -1""")
        e("L_A_done:")
        s.st(10)
        s.stamps_out(11)
        e("s_endpgm")

    def roleB(s):
        e = s.e
        sWQ, sUK, sCK, sUV, sWO2, sWO, sG, sOUT = "s[12:15]","s[16:19]","s[20:23]","s[24:27]","s[28:31]","s[32:35]","s[36:39]","s[40:43]"
        e("L_B:"); s.inB = True
        s.post = list(s.common_post)
        s.srd(12, 7, 4718592); s.srd(16, 8, 4194304); s.srd(20, 6, 16777216); s.srd(24, 9, 4194304)
        s.srd(28, 10, 4718592); s.srd(32, 4, 4718592); s.srd(36, 11, 1152); s.srd(40, 12, 2304)
        for p in s.post: e(p)
        s.lane_common(); s.consts()
        sH, sHalf, sJ, sAb, sSp, sCb, sT0, sT1, sT2, sT3, sHo, sTl = "s57","s58","s59","s60","s61","s62","s49","s50","s51","s52","s63","s64"
        e(f"""s_and_b32 {sT0}, s2, 7
        s_lshr_b32 {sT1}, s2, 3
        s_lshr_b32 {sH}, {sT1}, 1
        s_lshl_b32 {sT2}, {sT0}, 2
        s_add_u32 {sH}, {sH}, {sT2}
        s_and_b32 {sHalf}, {sT1}, 1
        s_lshl_b32 {sJ}, {sH}, 1
        s_add_u32 {sJ}, {sJ}, {sHalf}
        s_and_b32 {sAb}, {sT0}, 1
        s_lshr_b32 {sSp}, {sT0}, 1
        s_lshl_b32 {sSp}, {sSp}, 3
        s_add_u32 {sSp}, {sSp}, {sT1}
        s_lshl_b32 {sCb}, {sAb}, 23
        s_lshl_b32 {sT2}, {sSp}, 18
        s_add_u32 {sCb}, {sCb}, {sT2}
        s_lshl_b32 {sT2}, {s.sW}, 13
        s_add_u32 {sCb}, {sCb}, {sT2}
        s_lshl_b32 {sHo}, {sH}, 8""")
        vL16, vt, vu, vD, vUo = 4, 5, 6, 7, 8
        vG0, vG1, vTag = 12, 13, 14
        vCrd, vTr = 16, 20
        vMq, vLq, vMp, vAq, vAp, vNm, vPw, vPr, vXw, vXq, vXp = 24,25,26,27,28,29,30,31,9,10,11
        vS, vT0, vT1 = 32, 36, 40
        vP = 44
        vCa = 60
        vO = 92
        vUV = 124
        vQ = 156
        vWq, vXa = 156, 44
        e(f"""v_lshlrev_b32 v{vL16}, 4, v1
        s_and_b32 {sT2}, {s.sW}, 1
        s_mul_i32 {sT2}, {sT2}, 48
        v_xor_b32 v{vD}, {sT2}, v{vL16}
        v_xor_b32 v{vt}, v2, v3
        v_lshlrev_b32 v{vt}, 4, v{vt}
        v_lshl_or_b32 v{vUo}, v2, 13, v{vt}
        v_lshrrev_b32 v{vt}, 5, v1
        v_lshlrev_b32 v{vt}, 15, v{vt}
        v_and_b32 v{vu}, 31, v1
        v_lshl_add_u32 v{vXw}, v{vu}, 4, v{vt}""")
        def uk_dma(w=None):
            e(f"""s_lshl_b32 {sT0}, {sHalf}, 8
            s_lshl_b32 {sT1}, {s.sW}, 5
            s_add_u32 {sT0}, {sT0}, {sT1}
            s_lshl_b32 {sT0}, {sT0}, 13
            s_add_u32 {sT0}, {sT0}, {sHo}
            s_lshl_b32 {sT1}, {s.sW}, 13
            s_add_u32 {sT1}, {sT1}, {R1}""")
            for j in range(8):
                e(f"s_add_u32 m0, {sT1}, {j*1024}\nv_xor_b32 v{vu}, {(j&3)<<6}, v{vUo}")
                if w: e(f"s_waitcnt vmcnt({w-1})")
                e(f"buffer_load_dwordx4 v{vu}, {sUK}, {sT0} offen nt lds")
                if j < 7: e(f"s_add_u32 {sT0}, {sT0}, 32768")
        def tile_dma(soff, slot_s, w=None):
            for j in range(8):
                if j == 0: e(f"s_mov_b32 m0, {slot_s}")
                if j == 4: e(f"s_add_u32 m0, {slot_s}, 4096\ns_add_u32 {sT3}, {soff}, 4096")
                e(f"v_xor_b32 v{vu}, {(4*(j&3)+2*(j>>2))<<4}, v{vD}")
                if w: e(f"s_waitcnt vmcnt({w-1})")
                e(f"buffer_load_dwordx4 v{vu}, {sCK}, {soff if j<4 else sT3} offen offset:{(j&3)*1024} nt lds")
        def uv_load(w=None):
            e(f"""v_lshrrev_b32 v{vt}, 3, v1
            v_lshlrev_b32 v{vt}, 16, v{vt}
            v_and_b32 v{vu}, 7, v1
            v_lshl_add_u32 v{vt}, v{vu}, 4, v{vt}
            s_lshl_b32 {sT2}, {s.sW}, 19
            s_add_u32 {sT2}, {sT2}, {sHo}
            s_lshl_b32 {sT3}, {sHalf}, 7
            s_add_u32 {sT2}, {sT2}, {sT3}""")
            for j in range(8):
                if w: e(f"s_waitcnt vmcnt({w-1})")
                e(f"buffer_load_dwordx4 {s.q(vUV+4*j)}, v{vt}, {sUV}, {sT2} offen nt")
                if j < 7: e(f"s_add_u32 {sT2}, {sT2}, 8192")
        e("s_waitcnt lgkmcnt(0)"); s.wsfix(); e(f"s_cmp_eq_u32 {s.sW}, 7\ns_cbranch_scc1 L_B_svc")
        e(f"s_setprio 2\ns_cmp_lg_u32 {s.sW}, 6\ns_cbranch_scc1 L_B_w05")
        npf = s.code_prefetch(vt, vCa)
        e(f"""v_and_b32 v{vt}, 31, v1
        v_mul_u32_u24 v{vt}, 36, v{vt}
        v_lshrrev_b32 v{vu}, 5, v1
        v_mul_u32_u24 v{vu}, 1152, v{vu}
        v_add_u32 v{vu}, v{vu}, v{vt}
        buffer_load_dwordx4 {s.q(vQ)}, v{vu}, {s.sX}, 0 offen
        buffer_load_dwordx4 {s.q(vQ+4)}, v{vu}, {s.sX}, 0 offen offset:16
        buffer_load_dword v{vQ+8}, v{vu}, {s.sX}, 0 offen offset:32
        buffer_load_dwordx4 {s.q(vQ+12)}, v{vt}, {sG}, 0 offen
        buffer_load_dwordx4 {s.q(vQ+16)}, v{vt}, {sG}, 0 offen offset:16
        buffer_load_dword v{vQ+20}, v{vt}, {sG}, 0 offen offset:32
        v_mov_b32 v{vS}, 0
        s_waitcnt vmcnt(0)""")
        for k in range(9): e(f"v_dot2c_f32_bf16 v{vS}, v{vQ+k}, v{vQ+12+k}")
        s.dppreduce("v_add_f32", vS, (8, 4, 2, 1))
        s.xreduce("v_add_f32", vS, vt, (16,))
        e(f"""v_mul_f32 v{vS}, {hex(f2u(-math.log2(math.e)))}, v{vS}
        v_exp_f32 v{vS}, v{vS}
        v_lshrrev_b32 v{vt}, 5, v1
        v_add_f32 v{vS}, 1.0, v{vS}
        v_rcp_f32 v{vS}, v{vS}
        v_lshlrev_b32 v{vt}, 2, v{vt}
        v_add_u32 v{vt}, {L_GT}, v{vt}
        ds_write_b32 v{vt}, v{vS}""")
        vSn = vCa + 4
        for k in range(4): e(f"v_mov_b32 v{vSn+k}, -1")
        e(f"""v_and_b32 v{vu}, 31, v1
        v_lshlrev_b32 v{vu}, 8, v{vu}
        s_lshl_b32 {sT0}, {sAb}, 5
        s_add_u32 {sT0}, {sT0}, {sSp}
        s_lshl_b32 {sT0}, {sT0}, 2
        s_add_u32 {sT0}, {sT0}, {WS_BST}
        buffer_store_dword v{vSn}, v{vu}, {s.sWS}, {sT0} offen sc1
        v_lshrrev_b32 v{vt}, 2, v1
        v_lshlrev_b32 v{vt}, 12, v{vt}
        v_and_b32 v{vu}, 3, v1
        v_lshl_add_u32 v{vt}, v{vu}, 4, v{vt}
        s_lshl_b32 {sT0}, {sJ}, 6
        s_add_u32 {sT0}, {sT0}, {WS_OP}""")
        for i in range(5):
            if i == 4: e("s_mov_b32 exec_hi, 0")
            e(f"buffer_store_dwordx4 {s.q(vSn)}, v{vt}, {s.sWS}, {sT0} offen sc1")
            if i < 4: e(f"s_add_u32 {sT0}, {sT0}, 65536")
        e("s_mov_b64 exec, -1")
        uk_dma()
        e("s_branch L_B_w06\nL_B_w05:")
        uk_dma(s.BW[0])
        e("L_B_w06:")
        e(f"s_setprio 1\ns_lshl_b32 {sT2}, {s.sW}, 13")
        tile_dma(sCb, sT2, s.BW[1])
        e("s_setprio 0")
        uv_load(s.BW[2])
        s.st(1)
        e("s_branch L_B_b2")
        e("L_B_svc:\ns_setprio 3")
        vE, vZ, vSn, vR = vCa, vCa+1, vCa+4, vQ
        sQB, sQS = "s65", "s66"
        e(f"""v_mov_b32 v{vZ}, 0
        buffer_load_dword v{vE}, v{vZ}, {s.sWS}, 0 offen sc1
        v_mov_b32 v{vSn}, -1
        v_mov_b32 v{vSn+1}, -1
        v_mov_b32 v{vSn+2}, -1
        v_mov_b32 v{vSn+3}, -1
        v_and_b32 v{vu}, 31, v1
        s_lshl_b32 {sQS}, {sJ}, 9
        s_add_u32 {sQS}, {sQS}, {WS_QABS}
        buffer_store_dwordx4 {s.q(vSn)}, v{vXw}, {s.sWS}, {sQS} offen sc1""")
        e(f"""s_lshl_b32 {sT1}, {sJ}, 7
        s_add_u32 {sT1}, {sT1}, {WS_FLAG}
        s_mov_b32 {sT2}, 0x9e3779b1
        s_waitcnt vmcnt(0)
        v_mul_lo_u32 v{vTag}, v{vE}, {sT2}
        v_add_u32 v{vTag}, 0x7f4a7c15, v{vTag}
        v_mov_b32 v{vt}, {L_GT+8}
        s_mov_b64 exec, 1
        buffer_store_dword v{vTag}, v{vZ}, {s.sWS}, {sT1} offen sc1
        ds_write_b32 v{vt}, v{vTag}
        s_mov_b64 exec, -1""")
        s.st(1)
        uk_dma()
        e(f"""v_lshlrev_b32 v{vt}, 7, v1
        v_min_u32 v{vXq}, 11, v1
        v_lshlrev_b32 v{vXq}, 7, v{vXq}
        s_mov_b32 {sQB}, {WS_FLAG}
        s_lshr_b32 {sT0}, {sH}, 1
        s_mul_i32 {sT0}, {sT0}, 12
        s_add_u32 {sT0}, {sT0}, 64
        s_lshl_b32 {sT0}, {sT0}, 7
        s_add_u32 {sT0}, {sT0}, {WS_FLAG}""")
        s.spin_init()
        e(f"""L_B_vf:
        buffer_load_dword v{vu}, v{vt}, {s.sWS}, {sQB} offen sc1
        buffer_load_dword v{vXp}, v{vXq}, {s.sWS}, {sT0} offen sc1
        s_waitcnt vmcnt(0)
        v_cmp_ne_u32 vcc, v{vu}, v{vTag}
        v_cmp_ne_u32 s[54:55], v{vXp}, v{vTag}
        s_or_b64 vcc, vcc, s[54:55]""")
        s.spin_retry("L_B_vf")
        s.st(3)
        e(f"""s_mul_i32 {sT0}, {sH}, 6144
        s_add_u32 {sT0}, {sT0}, {WS_QB}
        s_add_u32 {sT1}, {sT0}, 4096
        L_B_pq:""")
        for t in range(6): e(f"buffer_load_dwordx4 {s.q(vR+4*t)}, v{vL16}, {s.sWS}, {sT0 if t<4 else sT1} offen offset:{(t&3)*1024} sc1")
        e("s_waitcnt vmcnt(0)")
        s.sentinel_check(range(vR, vR+24), vu)
        s.spin_retry("L_B_pq")
        s.st(2)
        s.sum6(vR)
        e(f"""v_cvt_pk_bf16_f32 v{vR}, v{vR}, v{vR+1}
        v_cvt_pk_bf16_f32 v{vR+1}, v{vR+2}, v{vR+3}
        v_lshlrev_b32 v{vt}, 3, v1
        v_add_u32 v{vt}, {L_QOP}, v{vt}
        ds_write_b64 v{vt}, {s.q(vR,2)}""")
        e("L_B_b2:")
        e(f"""v_bfe_u32 v{vu}, v1, 2, 1
        v_lshlrev_b32 v{vXq}, 9, v{vu}
        v_lshlrev_b32 v{vu}, 8, v{vu}
        v_lshl_add_u32 v{vu}, v2, 4, v{vu}
        v_add_u32 v{vu}, {L_QOP}, v{vu}
        v_xor_b32 v{vt}, v2, v3
        v_lshlrev_b32 v{vt}, 4, v{vt}
        v_lshl_or_b32 v{vt}, v3, 8, v{vt}
        s_lshl_b32 {sT2}, {s.sW}, 13
        s_add_u32 {sT2}, {sT2}, {R1}
        v_add_u32 v{vCrd}, {sT2}, v{vt}
        v_xor_b32 v{vCrd+1}, 64, v{vCrd}
        v_xor_b32 v{vCrd+2}, 0x80, v{vCrd}
        v_xor_b32 v{vCrd+3}, 0xc0, v{vCrd}
        v_lshl_add_u32 v{vXq}, v2, 3, v{vXq}
        s_lshl_b32 {sT2}, {s.sW}, 6
        s_add_u32 {sT2}, {sT2}, {L_QS}
        v_add_u32 v{vXq}, {sT2}, v{vXq}""")
        e(f"v_mov_b32 v{vt}, {L_GT}\ns_waitcnt lgkmcnt(0)")
        s.st(4)
        e("s_barrier")
        for kk in range(4): e(f"ds_read_b128 {s.q(vP+4*kk)}, v{vu} offset:{kk*64}")
        e(f"ds_read_b128 {s.q(vG0)}, v{vt}")
        e("s_waitcnt vmcnt(16)")
        for blk in range(2):
            for kk in range(4): e(f"ds_read_b128 {s.q(vCa+16*blk+4*kk)}, v{vCrd+kk} offset:{blk*4096}")
        e("s_waitcnt lgkmcnt(0)")
        for kk in range(4):
            for blk in range(2):
                c = "0" if kk == 0 else s.q(vS+4*blk)
                e(f"v_mfma_f32_16x16x32_bf16 {s.q(vS+4*blk)}, {s.q(vCa+16*blk+4*kk)}, {s.q(vP+4*kk)}, {c}")
        for k in range(4): e(f"v_cvt_pk_bf16_f32 v{vT1+k}, v{vS+2*k}, v{vS+2*k+1}")
        e(f"ds_write_b64 v{vXq}, {s.q(vT1,2)}\nds_write_b64 v{vXq}, {s.q(vT1+2,2)} offset:32\ns_waitcnt lgkmcnt(0)\ns_barrier")
        l = s.lab("L_nq")
        e(f"s_cmp_lg_u32 {s.sW}, 7\ns_cbranch_scc1 {l}")
        e(f"v_add_u32 v{vt}, {L_QS}, v{vL16}\nds_read_b128 {s.q(vT0)}, v{vt}\ns_waitcnt lgkmcnt(0)")
        for k in range(4): e(f"v_min_u32 v{vT0+k}, -2, v{vT0+k}")
        e(f"buffer_store_dwordx4 {s.q(vT0)}, v{vXw}, {s.sWS}, {sQS} offen sc1\ns_lshl_b32 {sT2}, {s.sW}, 13")
        tile_dma(sCb, sT2)
        uv_load()
        e(f"s_setprio 0\n{l}:")
        s.st(5)
        e(f"s_add_u32 {sT0}, {sCb}, 65536\ns_lshl_b32 {sT2}, {s.sW}, 13\ns_add_u32 {sT2}, {sT2}, {R1}")
        tile_dma(sT0, sT2)
        e(f"""s_lshl_b32 {sT0}, {sAb}, 15
        s_lshl_b32 {sT1}, {s.sW}, 12
        s_add_u32 {sT0}, {sT0}, {sT1}
        s_add_u32 {sT0}, {sT0}, {WS_QABS}""")
        def qpoll():
            for q_ in range(4): e(f"buffer_load_dwordx4 {s.q(vCa+4*q_)}, v{vL16}, {s.sWS}, {sT0} offen offset:{q_*1024} sc1")
        e(f"""s_lshl_b32 {sT2}, {s.sW}, 6
        s_and_b32 {sT2}, {sT2}, 0xff
        v_xor_b32 v{vt}, {sT2}, v{vL16}
        s_add_u32 {sT1}, {sT1}, {X}
        v_add_u32 v{vt}, {sT1}, v{vt}""")
        s.spin_init()
        e("L_B_qp:")
        qpoll()
        e("s_waitcnt vmcnt(0)")
        s.sentinel_check(range(vCa, vCa+16), vu)
        s.spin_retry("L_B_qp")
        for q_ in range(4):
            if q_: e(f"v_xor_b32 v{vu}, {q_<<4}, v{vt}")
            e(f"ds_write_b128 v{vu if q_ else vt}, {s.q(vCa+4*q_)} offset:{q_*1024}")
        e(f"""s_lshr_b32 {sT0}, {s.sW}, 2
        s_and_b32 {sT1}, {s.sW}, 3
        v_xor_b32 v{vt}, v2, v3
        v_lshlrev_b32 v{vt}, 4, v{vt}
        v_lshl_or_b32 v{vt}, v3, 10, v{vt}
        s_lshl_b32 {sT2}, {sT0}, 14
        s_add_u32 {sT2}, {sT2}, {X}
        v_add_u32 v{vTr}, {sT2}, v{vt}
        v_xor_b32 v{vTr+1}, 64, v{vTr}
        v_xor_b32 v{vTr+2}, 0x80, v{vTr}
        v_xor_b32 v{vTr+3}, 0xc0, v{vTr}
        s_waitcnt lgkmcnt(0)""")
        s.st(6)
        e("s_barrier")
        for kk in range(16): e(f"ds_read_b128 {s.q(vQ+4*kk)}, v{vTr+(kk&3)} offset:{(kk>>2)*256}")
        e(f"""s_mov_b32 {sT3}, 0x78
        v_lshrrev_b32 v{vt}, 2, v3
        v_lshlrev_b32 v{vt}, 1, v{vt}
        v_bfe_u32 v{vt}, {sT3}, v{vt}, 2
        v_and_b32 v{vu}, 3, v3
        v_lshl_or_b32 v{vt}, v{vu}, 2, v{vt}
        v_xor_b32 v{vt}, v{vt}, v2
        v_lshlrev_b32 v{vt}, 4, v{vt}
        v_lshl_or_b32 v{vt}, v3, 10, v{vt}
        s_lshl_b32 {sT2}, {sT1}, 14
        v_add_u32 v{vCrd}, {sT2}, v{vt}
        v_xor_b32 v{vCrd+1}, 64, v{vCrd}
        v_xor_b32 v{vCrd+2}, 0x80, v{vCrd}
        v_xor_b32 v{vCrd+3}, 0xc0, v{vCrd}
        s_lshl_b32 {sT2}, {sT0}, 4
        v_add_u32 v{vt}, {sT2}, v3
        v_mul_u32_u24 v{vPw}, 144, v{vt}
        v_lshl_add_u32 v{vPw}, v2, 3, v{vPw}
        s_lshl_b32 {sT2}, {sT1}, 5
        s_add_u32 {sT2}, {sT2}, {L_PB}
        v_add_u32 v{vPw}, {sT2}, v{vPw}
        v_lshlrev_b32 v{vXq}, 4, v{vt}
        v_add_u32 v{vXq}, {L_MX}, v{vXq}
        s_lshl_b32 {sT2}, {sT1}, 2
        v_add_u32 v{vXw}, {sT2}, v{vXq}
        v_and_b32 v{vt}, 31, v1
        v_lshlrev_b32 v{vXp}, 4, v{vt}
        v_add_u32 v{vXp}, {L_MX}, v{vXp}
        v_mul_u32_u24 v{vPr}, 144, v{vt}
        v_lshrrev_b32 v{vu}, 5, v1
        v_lshl_add_u32 v{vPr}, v{vu}, 4, v{vPr}
        v_add_u32 v{vPr}, {L_PB}, v{vPr}
        s_waitcnt lgkmcnt(0)""")
        e(f"""v_bfe_u32 v{vt}, v1, 2, 2
        v_lshl_add_u32 v{vTr+1}, v{vu}, 3, v{vt}
        v_lshlrev_b32 v{vTr+1}, 10, v{vTr+1}
        v_lshlrev_b32 v{vt}, 2, v{vt}
        v_mad_u32_u24 v{vt}, v{vu}, 3, v{vt}
        v_bfe_u32 v{vu}, v1, 4, 1
        v_lshlrev_b32 v{vu}, 1, v{vu}
        v_bfe_u32 v{vTr+2}, v1, 1, 1
        v_add_u32 v{vu}, v{vu}, v{vTr+2}
        s_lshl_b32 {sT2}, {s.sW}, 3
        v_add_u32 v{vu}, {sT2}, v{vu}
        v_xor_b32 v{vu}, v{vu}, v{vt}
        v_lshl_or_b32 v{vTr}, v{vu}, 4, v{vTr+1}
        v_and_b32 v{vu}, 1, v1
        v_lshl_or_b32 v{vTr}, v{vu}, 3, v{vTr}
        v_xor_b32 v{vTr+1}, 64, v{vTr}
        v_xor_b32 v{vTr+2}, 32, v{vTr}
        v_xor_b32 v{vTr+3}, 0x60, v{vTr}
        v_mov_b32 v{vMq}, 0xff800000
        v_mov_b32 v{vMp}, 0xff800000
        v_mov_b32 v{vLq}, 0""")
        def w_dma(srd, ldsbase):
            e(f"""s_mul_i32 {sT0}, {sJ}, 73728
            s_mul_i32 {sT1}, {s.sW}, 9216
            s_add_u32 {sT0}, {sT0}, {sT1}""")
            for j in range(9):
                if j % 4 == 0:
                    e(f"s_add_u32 m0, {sT1}, {ldsbase + j*1024}")
                    if j: e(f"s_add_u32 {sT0}, {sT0}, 4096")
                e(f"buffer_load_dwordx4 v{vL16}, {srd}, {sT0} offen offset:{(j&3)*1024} nt lds")
        def tile(tl):
            if s.bdet: s.st2(3*tl)
            if tl == 2: e("s_waitcnt vmcnt(8)")
            e("s_barrier")
            if s.bdet: s.st2(3*tl+1)
            def crd(kk): e(f"ds_read_b128 {s.q(vCa+4*(kk&7))}, v{vCrd+(kk&3)} offset:{(kk>>2)*256}")
            for kk in range(8): crd(kk)
            for h4 in range(4):
                e(f"s_waitcnt lgkmcnt({4 if h4 < 3 else 0})")
                for kk in range(4*h4, 4*h4+4):
                    c = "0" if kk == 0 else s.q(vS)
                    e(f"v_mfma_f32_16x16x32_bf16 {s.q(vS)}, {s.q(vCa+4*(kk&7))}, {s.q(vQ+4*kk)}, {c}")
                if h4 < 2:
                    for kk in range(4*h4+8, 4*h4+12): crd(kk)
            e(f"v_max3_f32 v{vt}, v{vS}, v{vS+1}, v{vS+2}\nv_max_f32 v{vt}, v{vt}, v{vS+3}")
            s.xreduce("v_max_f32", vt, vu)
            e(f"ds_write_b32 v{vXw}, v{vt}\ns_waitcnt lgkmcnt(0)\ns_barrier")
            e(f"ds_read_b128 {s.q(vT0)}, v{vXq}\nds_read_b128 {s.q(vT1)}, v{vXp}\ns_waitcnt lgkmcnt(1)")
            e(f"""v_max3_f32 v{vt}, v{vT0}, v{vT0+1}, v{vT0+2}
            v_max3_f32 v{vt}, v{vt}, v{vT0+3}, v{vMq}
            v_mul_f32 v{vNm}, {s.sC}, v{vt}
            v_fma_f32 v{vAq}, v{vMq}, {s.sC}, -v{vNm}
            v_mov_b32 v{vMq}, v{vt}
            v_exp_f32 v{vAq}, v{vAq}""")
            for k in range(4): e(f"v_fma_f32 v{vS+k}, v{vS+k}, {s.sC}, -v{vNm}")
            for k in range(4): e(f"v_exp_f32 v{vS+k}, v{vS+k}")
            e(f"""s_waitcnt lgkmcnt(0)
            v_max3_f32 v{vt}, v{vT1}, v{vT1+1}, v{vT1+2}
            v_cvt_pk_bf16_f32 v{vT0}, v{vS}, v{vS+1}
            v_cvt_pk_bf16_f32 v{vT0+1}, v{vS+2}, v{vS+3}
            v_max3_f32 v{vt}, v{vt}, v{vT1+3}, v{vMp}
            ds_write_b64 v{vPw}, {s.q(vT0,2)}
            v_add_f32 v{vS}, v{vS}, v{vS+1}
            v_add_f32 v{vS+2}, v{vS+2}, v{vS+3}
            v_sub_f32 v{vAp}, v{vMp}, v{vt}
            v_add_f32 v{vS}, v{vS}, v{vS+2}
            v_mul_f32 v{vAp}, {s.sC}, v{vAp}
            v_fma_f32 v{vLq}, v{vLq}, v{vAq}, v{vS}
            v_exp_f32 v{vAp}, v{vAp}
            v_mov_b32 v{vMp}, v{vt}""")
            if tl == 3:
                s.xreduce("v_add_f32", vLq, vu)
                e(f"ds_write_b32 v{vXw}, v{vLq} offset:512")
            if tl > 0:
                for k in range(32): e(f"v_mul_f32 v{vO+k}, v{vAp}, v{vO+k}")
            e("s_waitcnt lgkmcnt(0)\ns_barrier")
            if s.bdet: s.st2(3*tl+2)
            for ks in range(4):
                e(f"ds_read_b128 {s.q(vP+4*ks)}, v{vPr} offset:{ks*32}")
                for mb in range(2):
                    for t in range(2):
                        e(f"ds_read_b64_tr_b16 {s.q(vCa+8*ks+4*mb+2*t,2)}, v{vTr+2*t+mb} offset:{ks*16384+t*4096}")
            for ks in range(4):
                e(f"s_waitcnt lgkmcnt({min(15, 5*(3-ks))})")
                for mb in range(2):
                    c = "0" if (tl == 0 and ks == 0) else s.q(vO+16*mb,16)
                    e(f"v_mfma_f32_32x32x16_bf16 {s.q(vO+16*mb,16)}, {s.q(vCa+8*ks+4*mb)}, {s.q(vP+4*ks)}, {c}")
            e("s_barrier")
            if tl < 2:
                e(f"s_add_u32 {sT0}, {sCb}, {(tl+2)<<16}\ns_lshl_b32 {sT2}, {s.sW}, 13")
                if tl: e(f"s_add_u32 {sT2}, {sT2}, {R1}")
                tile_dma(sT0, sT2)
            if tl == 2:
                l = s.lab("L_wo")
                e(f"s_cmp_eq_u32 {s.sW}, 7\ns_cbranch_scc1 {l}")
                w_dma(sWO2, 0)
                e(f"s_waitcnt vmcnt(9)\ns_branch {l}b\n{l}:\ns_waitcnt vmcnt(0)\n{l}b:")
            if tl == 3:
                l = s.lab("L_wo")
                e(f"s_cmp_lg_u32 {s.sW}, 7\ns_cbranch_scc1 {l}")
                w_dma(sWO2, 0)
                e(f"{l}:")
            if tl < 3:
                for k in range(4): e(f"v_xor_b32 v{vCrd+k}, 0x10000, v{vCrd+k}\nv_xor_b32 v{vTr+k}, 0x10000, v{vTr+k}")
        for tl in range(4): tile(tl)
        s.st(7)
        e(f"""ds_read_b128 {s.q(vT0)}, v{vXp} offset:512
        v_and_b32 v{vt}, 31, v1
        v_mul_u32_u24 v{vt}, 1040, v{vt}
        v_lshrrev_b32 v{vu}, 5, v1
        v_lshl_add_u32 v{vt}, v{vu}, 3, v{vt}
        s_lshl_b32 {sT2}, {s.sW}, 7
        s_add_u32 {sT2}, {sT2}, {L_OS}
        v_add_u32 v{vt}, {sT2}, v{vt}
        s_waitcnt lgkmcnt(0)
        v_add_f32 v{vT0}, v{vT0}, v{vT0+1}
        v_add_f32 v{vT0+2}, v{vT0+2}, v{vT0+3}
        v_add_f32 v{vT0}, v{vT0}, v{vT0+2}
        v_rcp_f32 v{vAp}, v{vT0}
        v_log_f32 v{vLq}, v{vT0}
        v_fma_f32 v{vLq}, v{vMp}, {s.sC}, v{vLq}
        v_min_u32 v{vLq}, -2, v{vLq}""")
        for k in range(32): e(f"v_mul_f32 v{vO+k}, v{vAp}, v{vO+k}")
        for k in range(16): e(f"v_cvt_pk_bf16_f32 v{vCa+k}, v{vO+2*k}, v{vO+2*k+1}")
        for mb in range(2):
            for q4 in range(4): e(f"ds_write_b64 v{vt}, {s.q(vCa+8*mb+2*q4,2)} offset:{mb*64+q4*16}")
        e(f"""s_mul_i32 {sT2}, {s.sW}, 4160
        s_add_u32 {sT2}, {sT2}, {L_OS}
        v_add_u32 v{vt}, {sT2}, v{vL16}
        s_lshl_b32 {sT0}, {s.sW}, 18
        s_lshl_b32 {sT1}, {sAb}, 15
        s_add_u32 {sT0}, {sT0}, {sT1}
        s_lshl_b32 {sT1}, {sSp}, 10
        s_add_u32 {sT0}, {sT0}, {sT1}
        s_add_u32 {sT0}, {sT0}, {WS_BP}
        s_waitcnt lgkmcnt(0)
        s_barrier""")
        for q_ in range(4): e(f"ds_read_b128 {s.q(vCa+4*q_)}, v{vt} offset:{q_*1040}")
        for q_ in range(4):
            e(f"s_waitcnt lgkmcnt({3-q_})\nbuffer_store_dwordx4 {s.q(vCa+4*q_)}, v{vL16}, {s.sWS}, {sT0} offen sc1")
            if q_ < 3: e(f"s_add_u32 {sT0}, {sT0}, 65536")
        e("s_waitcnt vmcnt(0)\ns_barrier")
        l = s.lab("L_ns")
        e(f"""s_cmp_lg_u32 {s.sW}, 7
        s_cbranch_scc1 {l}
        v_and_b32 v{vu}, 31, v1
        v_lshlrev_b32 v{vu}, 8, v{vu}
        s_lshl_b32 {sT0}, {sAb}, 5
        s_add_u32 {sT0}, {sT0}, {sSp}
        s_lshl_b32 {sT0}, {sT0}, 2
        s_add_u32 {sT0}, {sT0}, {WS_BST}
        buffer_store_dword v{vLq}, v{vu}, {s.sWS}, {sT0} offen sc1
        {l}:""")
        s.st(8)
        e(f"v_lshlrev_b32 v{vt}, 2, v1\ns_add_u32 {sT0}, {sHo}, {WS_BST}")
        s.spin_init()
        e(f"""v_min_u32 v{vXq}, 11, v1
        v_lshlrev_b32 v{vXq}, 7, v{vXq}
        s_lshr_b32 {sT1}, {sH}, 1
        s_mul_i32 {sT1}, {sT1}, 12
        s_add_u32 {sT1}, {sT1}, 64
        s_lshl_b32 {sT1}, {sT1}, 7
        s_add_u32 {sT1}, {sT1}, {WS_FLAG}
        L_B_ps:
        buffer_load_dword v{vS}, v{vt}, {s.sWS}, {sT0} offen sc1
        buffer_load_dword v{vu}, v{vXq}, {s.sWS}, {sT1} offen offset:64 sc1
        s_waitcnt vmcnt(0)
        v_cmp_eq_u32 vcc, -1, v{vS}
        v_cmp_ne_u32 s[54:55], v{vu}, v{vTag}
        s_or_b64 vcc, vcc, s[54:55]""")
        s.spin_retry("L_B_ps", 4)
        e(f"""v_lshlrev_b32 v{vu}, 4, v3
        v_lshl_or_b32 v{vu}, v2, 13, v{vu}
        s_lshl_b32 {sT0}, {sH}, 16
        s_lshr_b32 {sT1}, {s.sW}, 2
        s_lshl_b32 {sT2}, {sT1}, 15
        s_add_u32 {sT0}, {sT0}, {sT2}
        s_and_b32 {sT2}, {s.sW}, 3
        s_lshl_b32 {sT2}, {sT2}, 8
        s_add_u32 {sT0}, {sT0}, {sT2}
        s_add_u32 {sT0}, {sT0}, {WS_BP}
        s_add_u32 {sT3}, {sT0}, 4096""")
        for j in range(8): e(f"buffer_load_dwordx4 {s.q(vCa+4*j)}, v{vu}, {s.sWS}, {sT0 if j<4 else sT3} offen offset:{(j&3)*1024} sc1")
        e(f"""s_lshl_b32 {sT3}, {s.sW}, 7
        s_add_u32 {sT3}, {sT3}, {L_WT}
        v_lshl_add_u32 v{vXw}, v1, 1, {sT3}
        s_lshl_b32 {sTl}, {sT1}, 6
        s_add_u32 {sT3}, {sT3}, {sTl}
        v_lshl_add_u32 v{vXq}, v2, 4, {sT3}
        s_lshl_b32 {sT1}, {sT1}, 10
        s_add_u32 {sT1}, {sT1}, {sT2}
        s_add_u32 {sT1}, {sT1}, {L_OCB}
        v_lshl_add_u32 v{vXp}, v3, 4, {sT1}""")
        w_dma(sWO, L_WO)
        e(f"v_mov_b32 v{vt}, v{vS}")
        s.dppreduce("v_max_f32", vt, (8, 4, 2, 1)); s.xreduce("v_max_f32", vt, vu, (16,))
        e(f"v_sub_f32 v{vS}, v{vS}, v{vt}\nv_exp_f32 v{vS}, v{vS}\nv_mov_b32 v{vt}, v{vS}")
        s.dppreduce("v_add_f32", vt, (8, 4, 2, 1)); s.xreduce("v_add_f32", vt, vu, (16,))
        e(f"""v_rcp_f32 v{vt}, v{vt}
        v_mul_f32 v{vS}, v{vS}, v{vt}
        v_cvt_pk_bf16_f32 v{vS}, v{vS}, v{vS}
        ds_write_b16 v{vXw}, v{vS}
        s_waitcnt lgkmcnt(0)
        ds_read_b128 {s.q(vP)}, v{vXq}
        s_waitcnt vmcnt(9) lgkmcnt(0)""")
        s.vlike(vO, vP, [vCa+4*j for j in range(8)], (vT0, vT1), True)
        for k in range(4): e(f"v_cvt_pk_bf16_f32 v{vP+k}, v{vO+8*k}, v{vO+8*k+4}")
        e(f"ds_write_b128 v{vXp}, {s.q(vP)}")
        e(f"""v_bfe_u32 v{vt}, v1, 2, 1
        v_lshlrev_b32 v{vt}, 10, v{vt}
        v_lshl_add_u32 v{vt}, v2, 5, v{vt}
        v_bfe_u32 v{vu}, v1, 3, 1
        v_lshl_add_u32 v{vt}, v{vu}, 4, v{vt}
        s_lshl_b32 {sT0}, {s.sW}, 7
        s_add_u32 {sT0}, {sT0}, {L_OCB}
        v_add_u32 v{vt}, {sT0}, v{vt}
        v_lshrrev_b32 v{vXq}, 5, v1
        v_cmp_eq_u32 vcc, v{vXq}, v{vu}
        v_lshlrev_b32 v{vXq}, 8, v2
        v_and_b32 v{vu}, 7, v1
        v_lshl_add_u32 v{vXq}, v{vu}, 5, v{vXq}
        s_lshl_b32 {sT0}, {s.sW}, 10
        v_add_u32 v{vXq}, {sT0}, v{vXq}
        v_mov_b32 v{vu}, 8192
        v_cndmask_b32 v{vXq}, v{vu}, v{vXq}, vcc
        v_add_u32 v{vXq}, {L_CP}, v{vXq}
        s_waitcnt lgkmcnt(0)
        s_barrier
        ds_read_b128 {s.q(vP)}, v{vt}
        s_waitcnt lgkmcnt(0)""")
        s.vlike(vO, vP, [vUV+4*j for j in range(8)], (vT0, vT1), True)
        s.gather0(vO, vP)
        e(f"ds_write_b128 v{vXq}, {s.q(vP)}\nds_write_b128 v{vXq}, {s.q(vP+4)} offset:16\ns_waitcnt lgkmcnt(0)\ns_barrier")
        l = s.lab("L_nc")
        e(f"""s_cmp_lg_u32 {s.sW}, 0
        s_cbranch_scc1 {l}
        v_lshrrev_b32 v{vu}, 5, v1
        v_and_b32 v{vt}, 31, v1
        v_lshlrev_b32 v{vt}, 4, v{vt}
        v_lshl_add_u32 v{vt}, v{vu}, 12, v{vt}
        v_add_u32 v{vt}, {L_CP}, v{vt}""")
        for p in range(8): e(f"ds_read_b128 {s.q(vCa+4*p)}, v{vt} offset:{p*512}")
        e(f"""v_bfe_u32 v{vu}, v1, 4, 1
        v_cmp_eq_u32 vcc, 0, v{vu}
        v_cndmask_b32 v{vS}, v{vG1}, v{vG0}, vcc
        v_sub_f32 v{vS}, 1.0, v{vS}
        v_cmp_gt_u32 vcc, 32, v1
        v_cndmask_b32 v{vS}, 0, v{vS}, vcc
        v_lshlrev_b32 v{vt}, 3, v1
        v_add_u32 v{vt}, {L_CTX}, v{vt}
        s_waitcnt lgkmcnt(0)""")
        for k in range(4):
            for p in range(4): e(f"v_add_f32 v{vCa+8*p+k}, v{vCa+8*p+k}, v{vCa+8*p+4+k}")
            e(f"v_add_f32 v{vCa+k}, v{vCa+k}, v{vCa+8+k}\nv_add_f32 v{vCa+16+k}, v{vCa+16+k}, v{vCa+24+k}\nv_add_f32 v{vCa+k}, v{vCa+k}, v{vCa+16+k}")
        for k in range(4): s.xreduce("v_add_f32", vCa+k, vu, (32,))
        for k in range(4): e(f"v_mul_f32 v{vCa+k}, v{vS}, v{vCa+k}")
        e(f"""v_cvt_pk_bf16_f32 v{vCa}, v{vCa}, v{vCa+1}
        v_cvt_pk_bf16_f32 v{vCa+1}, v{vCa+2}, v{vCa+3}
        v_cndmask_b32 v{vCa}, 0, v{vCa}, vcc
        v_cndmask_b32 v{vCa+1}, 0, v{vCa+1}, vcc
        ds_write_b64 v{vt}, {s.q(vCa,2)}
        {l}:
        s_waitcnt vmcnt(0) lgkmcnt(0)
        s_barrier""")
        s.st(9)
        e(f"s_cmp_ge_u32 {s.sW}, 6\ns_cbranch_scc1 L_B_red")
        vD6, vWb, vA8, vPl = vO, vQ, vP, vCa
        e(f"""v_min_u32 v{vt}, 2, v3
        v_lshlrev_b32 v{vt}, 7, v{vt}
        v_lshl_add_u32 v{vt}, v2, 3, v{vt}
        v_add_u32 v{vt}, {L_CTX}, v{vt}
        v_lshrrev_b32 v{vu}, 2, v1
        v_mul_u32_u24 v{vu}, 1152, v{vu}
        v_and_b32 v{vXq}, 3, v1
        v_lshl_add_u32 v{vu}, v{vXq}, 3, v{vu}
        s_mul_i32 {sT0}, {s.sW}, 192
        v_add_u32 v{vu}, {sT0}, v{vu}""")
        for q_ in range(4): e(f"ds_read_b64 {s.q(vA8+2*q_,2)}, v{vt} offset:{q_*32}")
        def wtr():
            for ti in range(6):
                for q_ in range(4): e(f"ds_read_b64_tr_b16 {s.q(vWb+8*ti+2*q_,2)}, v{vu} offset:{q_*18432+ti*32}")
        def wmf(init):
            for ks in range(2):
                for ti in range(6):
                    c = "0" if (init and ks == 0) else s.q(vD6+4*ti)
                    e(f"v_mfma_f32_16x16x32_bf16 {s.q(vD6+4*ti)}, {s.q(vA8+4*ks)}, {s.q(vWb+8*ti+4*ks)}, {c}")
        wtr()
        e(f"v_add_u32 v{vu}, {L_WO}, v{vu}\ns_waitcnt lgkmcnt(0)")
        wmf(True)
        wtr()
        vPo, vPs, vGs, vOo = vXq, vXp, vXw, vPw
        e(f"""v_lshlrev_b32 v{vPo}, 8, v3
        v_lshl_add_u32 v{vPo}, v2, 4, v{vPo}
        v_lshlrev_b32 v{vPs}, 2, v3
        v_mov_b32 v{vt}, {OOB}
        v_cmp_gt_u32 s[54:55], 12, v3
        v_cndmask_b32 v{vPo}, v{vt}, v{vPo}, s[54:55]
        v_cndmask_b32 v{vPs}, v{vt}, v{vPs}, s[54:55]
        v_and_b32 v{vt}, 1, v1
        v_cmp_eq_u32 vcc, 0, v{vt}
        v_cndmask_b32 v{vGs}, v{vG1}, v{vG0}, vcc
        v_and_b32 v{vt}, 1, v2
        v_mul_u32_u24 v{vt}, 36, v{vt}
        v_lshrrev_b32 v{vu}, 1, v2
        v_add_u32 v{vt}, v{vt}, v{vu}
        v_lshlrev_b32 v{vt}, 12, v{vt}
        v_lshl_add_u32 v{vOo}, v3, 2, v{vt}
        v_mov_b32 v{vNm}, 0xff800000
        s_lshl_b32 {sT0}, {sJ}, 12
        s_add_u32 {sT0}, {sT0}, {WS_AP}
        s_mul_i32 {sT1}, {s.sW}, {6*4096}
        s_lshl_b32 {sT2}, {sJ}, 6
        s_add_u32 {sT1}, {sT1}, {sT2}
        s_add_u32 {sT1}, {sT1}, {WS_OP}
        s_add_u32 {sT2}, {sT1}, 8192
        s_add_u32 {sT3}, {sT1}, 16384
        s_waitcnt lgkmcnt(0)""")
        s.spin_init()
        if s.hop1 in ("two", "any"):
            e(f"L_B_h0:\nbuffer_load_dword v{vS}, v{vPs}, {s.sWS}, {sT0} offen offset:3072 sc1\ns_waitcnt vmcnt(0)")
            if s.hop1 == "two":
                e(f"v_cmp_eq_u32 vcc, -1, v{vS}")
            else:
                e(f"v_cmp_eq_u32 vcc, -1, v{vS}\ns_cmp_eq_u64 vcc, s[54:55]\ns_cselect_b64 vcc, vcc, 0")
            s.spin_retry("L_B_h0", 2)
        e("L_B_h1:")
        e(f"buffer_load_dword v{vS}, v{vPs}, {s.sWS}, {sT0} offen offset:3072 sc1")
        for q_ in range(4): e(f"buffer_load_dwordx4 {s.q(vPl+4*q_)}, v{vPo}, {s.sWS}, {sT0} offen offset:{q_*64} sc1")
        e("s_waitcnt vmcnt(0)")
        s.sentinel_check([vS] + list(range(vPl, vPl+16)), vu)
        s.spin_retry("L_B_h1", 0)
        s.st(10)
        e(f"v_cndmask_b32 v{vS}, v{vNm}, v{vS}, s[54:55]")
        e(f"v_max_f32_dpp v{vt}, v{vS}, v{vS} row_ror:2 row_mask:0xf bank_mask:0xf")
        s.dppreduce("v_max_f32", vt, (4, 8))
        e(f"v_sub_f32 v{vS}, v{vS}, v{vt}\nv_exp_f32 v{vS}, v{vS}")
        e(f"v_add_f32_dpp v{vt}, v{vS}, v{vS} row_ror:2 row_mask:0xf bank_mask:0xf")
        s.dppreduce("v_add_f32", vt, (4, 8))
        e(f"v_rcp_f32 v{vt}, v{vt}\nv_mul_f32 v{vS}, v{vS}, v{vGs}\nv_mul_f32 v{vS}, v{vS}, v{vt}")
        for k in range(16): e(f"v_mul_f32 v{vPl+k}, v{vS}, v{vPl+k}")
        for k in range(8): e(f"v_cvt_pk_bf16_f32 v{vA8+k}, v{vPl+2*k}, v{vPl+2*k+1}")
        wmf(False)
        for ti in range(6): e(f"v_add_f32 v{vD6+4*ti}, v{vD6+4*ti}, v{vD6+4*ti+2}\nv_add_f32 v{vD6+4*ti+1}, v{vD6+4*ti+1}, v{vD6+4*ti+3}")
        for u in range(3):
            a = vD6 + 8*u
            e(f"v_permlane32_swap_b32 v{a}, v{a+4}\nv_permlane32_swap_b32 v{a+1}, v{a+5}")
        for u in range(3):
            a = vD6 + 8*u
            e(f"v_add_f32 v{a}, v{a}, v{a+4}\nv_add_f32 v{a+1}, v{a+1}, v{a+5}")
        for u in range(3):
            a = vD6 + 8*u
            e(f"v_permlane16_swap_b32 v{a}, v{a+1}")
        for u in range(3):
            a = vD6 + 8*u
            e(f"v_add_f32 v{a}, v{a}, v{a+1}\nv_min_u32 v{a}, -2, v{a}")
            e(f"buffer_store_dword v{a}, v{vOo}, {s.sWS}, {[sT1,sT2,sT3][u]} offen sc1")
        e("s_branch L_B_done")
        e("L_B_red:")
        e(f"""s_sub_u32 {sT0}, {s.sW}, 6
        s_lshl_b32 {sT0}, {sT0}, 6
        s_add_u32 {sT0}, {sT0}, {sJ}
        s_cmp_ge_u32 {sT0}, 72
        s_cbranch_scc1 L_B_done
        s_lshl_b32 {sT1}, {sT0}, 12
        s_add_u32 {sT1}, {sT1}, {WS_OP}
        s_lshl_b32 {sT2}, {sT0}, 5
        v_and_b32 v{vt}, 3, v1
        v_lshlrev_b32 v{vt}, 2, v{vt}
        v_and_b32 v{vu}, 1, v2
        v_lshl_add_u32 v{vt}, v{vu}, 1, v{vt}
        v_lshrrev_b32 v{vu}, 1, v2
        v_add_lshl_u32 v{vXq}, v{vt}, v{vu}, 1""")
        s.spin_init()
        if s.hop1 in ("two", "any"):
            e(f"s_lshl_b32 {sT3}, {sJ}, 6\ns_add_u32 {sT3}, {sT3}, {sT1}\nv_mov_b32 v{vt}, 0")
            e(f"L_B_r0:\nbuffer_load_dword v{vS}, v{vt}, {s.sWS}, {sT3} offen sc1\ns_waitcnt vmcnt(0)\nv_cmp_eq_u32 vcc, -1, v{vS}")
            s.spin_retry("L_B_r0", 1)
        e("L_B_h2:")
        for q_ in range(4): e(f"buffer_load_dwordx4 {s.q(vCa+4*q_)}, v{vL16}, {s.sWS}, {sT1} offen offset:{q_*1024} sc1")
        e("s_waitcnt vmcnt(0)")
        s.sentinel_check(range(vCa, vCa+16), vu)
        s.spin_retry("L_B_h2", 0)
        s.st(10)
        for k in range(4): e(f"v_add_f32 v{vCa+k}, v{vCa+k}, v{vCa+4+k}\nv_add_f32 v{vCa+8+k}, v{vCa+8+k}, v{vCa+12+k}")
        for k in range(4): e(f"v_add_f32 v{vCa+k}, v{vCa+k}, v{vCa+8+k}")
        e(f"""v_permlane32_swap_b32 v{vCa}, v{vCa+1}
        v_permlane32_swap_b32 v{vCa+2}, v{vCa+3}
        v_add_f32 v{vCa}, v{vCa}, v{vCa+1}
        v_add_f32 v{vCa+2}, v{vCa+2}, v{vCa+3}
        v_permlane16_swap_b32 v{vCa}, v{vCa+2}
        v_add_f32 v{vCa}, v{vCa}, v{vCa+2}""")
        s.dppreduce("v_add_f32", vCa, (4, 8))
        e(f"""v_cvt_pk_bf16_f32 v{vCa}, v{vCa}, v{vCa}
        buffer_store_short v{vCa}, v{vXq}, {sOUT}, {sT2} offen
        s_cmp_lg_u32 {sT0}, 0
        s_cbranch_scc1 L_B_done
        v_mov_b32 v{vt}, 0
        s_mov_b64 exec, 1
        buffer_store_dword v{vTag}, v{vt}, {s.sWS}, 0 offen sc1
        s_mov_b64 exec, -1""")
        e("L_B_done:")
        s.st(11)
        s.stamps_out(12)
        e("L_end:\ns_endpgm")

    def text(s):
        s.entry(); s.roleA(); s.roleB()
        lines = fix(s.L)
        body = "\n".join(("" if l.endswith(":") else "    ") + l for l in lines)
        body += "\nL_codeend:\n"
        return body

HEADER = """; Fused decode step: out = g * GQA(x) + (1 - g) * latent-KV attention(x), one persistent launch.
"""
def make(path, **kw):
    g = G(**kw)
    body = g.text()
    src = wrap(body, 256, 512, LDS_BYTES, vgpr=256, sgpr=102, accum=256, header=HEADER)
    src = src.replace("  .amdhsa_system_sgpr_workgroup_id_x 1\n", "  .amdhsa_system_sgpr_workgroup_id_x 1\n  .amdhsa_float_denorm_mode_32 3\n")
    open(path, "w").write(src)
    return build(path)

if __name__ == "__main__":
    kw = json.loads(sys.argv[2]) if len(sys.argv) > 2 else {}
    co = make(sys.argv[1], **kw)
    import subprocess
    r = subprocess.run(["llvm-readelf", "-S", co], capture_output=True, text=True).stdout
    print([l for l in r.splitlines() if ".text" in l])
```

```python
import sys, json, math, struct
from asmlib import *
from hazard import fix

def f2u(f): return struct.unpack("<I", struct.pack("<f", f))[0]

WS_E, WS_FLAG, WS_QA, WS_QB, WS_QABS, WS_BST, WS_AP, WS_OP, WS_BP, WS_STAMP = \
    0x0, 0x1000, 0x10000, 0x40000, 0x70000, 0x80000, 0x90000, 0xD0000, 0x200000, 0x400000
OOB = 0x40000000
X = 131072
L_PQ, L_QOP, L_GT = X, X + 12288, X + 12800
L_OC, L_MS = X + 16384, X + 24576
L_QS = X + 28672
R1 = 65536
L_PB = X + 16384; L_MX = L_PB + 4608; L_LS = L_PB + 5120
L_OS = 98304
L_WT = X + 16384; L_OCB = L_WT + 1024; L_CP = L_WT + 4096; L_CTX = L_WT + 12544
L_WO = 73728
LDS_BYTES = 163840

class G:
    def __init__(s, W=(4,4,5,5,6), NPRE=4, WS=12, stamp=False, hop1="full", mimic=False, rot=0, spin=1 << 17, sleep=1, pf=True, wqpol='nt', bdet=False, BW=(3,5,6), early=False, dbg='', wsoff=0):
        s.L = []; s.W = list(W) if not isinstance(W, int) else [W]*5; s.NPRE = NPRE; s.WS = WS; s.stamp = stamp; s.hop1 = hop1; s.mimic = mimic; s.rot = rot
        s.spin = spin; s.sleep = sleep; s.nlab = 0; s.pf = pf; s.wqpol = wqpol; s.bdet = bdet; s.BW = BW; s.early = early; s.dbg = dbg; s.wsoff = wsoff; s.inB = False
    def e(s, t):
        for x in t.split("\n"):
            x = x.strip()
            if x: s.L.append(x)
    def lab(s, p="L"):
        s.nlab += 1; return f"{p}_{s.nlab}"
    def st2(s, k):
        s.e(f"s_memrealtime s[{76+2*k}:{77+2*k}]")
    def st(s, k):
        if s.stamp and not (s.bdet and s.inB): s.e(f"s_memrealtime s[{76+2*k}:{77+2*k}]")
    sX, sWS = "s[4:7]", "s[8:11]"
    sW, sLO, sHI, sC, sCnt = "s44", "s45", "s46", "s47", "s48"
    def q(s, r, n=4): return f"v[{r}:{r+n-1}]"

    def spin_init(s): s.e(f"s_mov_b32 {s.sCnt}, {s.spin}")
    def spin_retry(s, label, sleep=None):
        if "nodep" in getattr(s, "dbg", "") and label not in ("L_A_wc", "L_A_wc2", "L_A_wq2"): return
        ok = s.lab("L_ok")
        s.e(f"s_cbranch_vccz {ok}")
        s.e(f"s_sub_u32 {s.sCnt}, {s.sCnt}, 1")
        s.e("s_cbranch_scc1 L_end")
        sl = s.sleep if sleep is None else sleep
        if sl: s.e(f"s_sleep {sl}")
        s.e(f"s_branch {label}")
        s.e(f"{ok}:")
    def sentinel_check(s, rs, t):
        rs = list(rs)
        if len(rs) == 1:
            s.e(f"v_cmp_eq_u32 vcc, -1, v{rs[0]}"); return
        if len(rs) == 2: s.e(f"v_max_u32 v{t}, v{rs[0]}, v{rs[1]}"); rs = []
        else: s.e(f"v_max3_u32 v{t}, v{rs[0]}, v{rs[1]}, v{rs[2]}"); rs = rs[3:]
        while len(rs) >= 2: s.e(f"v_max3_u32 v{t}, v{t}, v{rs[0]}, v{rs[1]}"); rs = rs[2:]
        if rs: s.e(f"v_max_u32 v{t}, v{t}, v{rs[0]}")
        s.e(f"v_cmp_eq_u32 vcc, -1, v{t}")
    def xreduce(s, op, v, t, which=(32, 16)):
        for k in which:
            s.e(f"v_mov_b32 v{t}, v{v}")
            s.e(f"v_permlane{k}_swap_b32 v{t}, v{v}")
            s.e(f"{op} v{v}, v{t}, v{v}")
    def dppreduce(s, op, v, rors):
        for r in rors: s.e(f"{op}_dpp v{v}, v{v}, v{v} row_ror:{r} row_mask:0xf bank_mask:0xf")
    def vlike(s, acc, A, rows, T, init):
        nd = len(rows) // 2
        mf = "v_mfma_f32_16x16x32_bf16" if nd == 4 else "v_mfma_f32_16x16x16_bf16"
        def perms(e_):
            sel = s.sHI if e_ & 1 else s.sLO
            for t in range(nd):
                s.e(f"v_perm_b32 v{T[e_&1]+t}, v{rows[2*t+1]+(e_>>1)}, v{rows[2*t]+(e_>>1)}, {sel}")
        perms(0)
        for e_ in range(8):
            if e_ < 7: perms(e_ + 1)
            c = "0" if init else s.q(acc + 4 * e_)
            s.e(f"{mf} {s.q(acc+4*e_)}, {s.q(A, nd)}, {s.q(T[e_&1], nd)}, {c}")
    def sum6(s, r):
        for k in range(4):
            s.e(f"v_add_f32 v{r+k}, v{r+k}, v{r+4+k}\nv_add_f32 v{r+8+k}, v{r+8+k}, v{r+12+k}\nv_add_f32 v{r+16+k}, v{r+16+k}, v{r+20+k}")
        for k in range(4):
            s.e(f"v_add_f32 v{r+k}, v{r+k}, v{r+8+k}\nv_add_f32 v{r+k}, v{r+k}, v{r+16+k}")
    def gather0(s, acc, dst):
        for e_ in range(8): s.e(f"v_mov_b32 v{dst+e_}, v{acc+4*e_}")
    def srd(s, base, slot, size):
        s.e(f"s_load_dwordx2 s[{base}:{base+1}], s[0:1], {slot*8}")
        s.post.append(f"s_mov_b32 s{base+2}, {size}"); s.post.append(f"s_mov_b32 s{base+3}, 0x20000")
    def consts(s):
        s.e(f"s_mov_b32 {s.sLO}, 0x05040100\ns_mov_b32 {s.sHI}, 0x07060302")
        s.e(f"s_mov_b32 {s.sC}, {hex(f2u(128**-0.5*math.log2(math.e)))}")
    def code_prefetch(s, vt, vd):
        if not s.pf: return 0
        s.e("s_getpc_b64 s[70:71]\nL_pc_%d:" % s.nlab); l = "L_pc_%d" % s.nlab; s.nlab += 1
        s.e(f"s_lshr_b32 s72, s2, 3\ns_and_b32 s72, s72, 7\ns_mul_i32 s72, s72, {s.pfn*1024}")
        s.e(f"s_sub_u32 s70, s70, {l}-{KNAME}\ns_subb_u32 s71, s71, 0")
        s.e(f"v_lshl_add_u32 v{vt}, v1, 4, s72")
        n = s.pfn
        for k in range(n):
            s.e(f"v_min_u32 v{vd+4}, L_codeend-{KNAME}-16, v{vt}")
            s.e(f"global_load_dwordx4 {s.q(vd)}, v{vd+4}, s[70:71]")
            if k + 1 < n: s.e(f"v_add_u32 v{vt}, 1024, v{vt}")
        return n
    pfn = 4
    def stamps_out(s, n):
        if not s.stamp: return
        if s.stamp == "dbg":
            ks = [2, 5, 7, 8, 10] if not s.inB else [4, 6, 7, 8, 9, 10, 11]
            base = 1 if not s.inB else 8
            s.e("s_load_dwordx2 s[70:71], s[0:1], 104\ns_waitcnt lgkmcnt(0)\ns_not_b32 s76, s76\nv_mov_b32 v2, 0\nv_mov_b32 v3, 0")
            s.e("v_writelane_b32 v2, s76, 0")
            for i, k in enumerate(ks): s.e(f"v_writelane_b32 v2, s{76+2*k}, {i+1}\ns_mov_b32 s72, {4*(base+i)}\nv_writelane_b32 v3, s72, {i+1}")
            s.e(f"s_mov_b64 exec, {(1 << (len(ks)+1)) - 1}\nglobal_atomic_umax v3, v2, s[70:71] sc1\ns_waitcnt vmcnt(0)")
            return
        s.e("s_waitcnt lgkmcnt(0)")
        s.e("s_getreg_b32 s74, hwreg(HW_REG_XCC_ID)")
        s.e(f"v_mov_b32 v2, 0")
        for k in range(12): s.e(f"v_writelane_b32 v2, s{76+2*k}, {k}")
        s.e("v_writelane_b32 v2, s74, 12")
        s.e(f"s_lshl_b32 s74, s2, 3\ns_add_u32 s74, s74, {s.sW}\ns_lshl_b32 s74, s74, 6\ns_add_u32 s74, s74, {WS_STAMP}")
        s.e("v_lshlrev_b32 v3, 2, v1\ns_mov_b64 exec, 0xffff")
        s.e(f"buffer_store_dword v2, v3, {s.sWS}, s74 offen\ns_waitcnt vmcnt(0)")

    def entry(s):
        e = s.e
        e("s_cmp_ge_u32 s2, 256\ns_cbranch_scc1 L_end")
        s.post = []
        s.srd(4, 0, 2304); s.srd(8, 14, 0x10000000 - s.wsoff)
        s.common_post = list(s.post)
        if s.stamp:
            for k in range(12): e(f"s_mov_b32 s{76+2*k}, 0")
        s.st(0)
        e("s_cmp_lt_u32 s2, 64\ns_cbranch_scc1 L_B")

    def wsfix(s):
        if s.wsoff: s.e(f"s_add_u32 s8, s8, {s.wsoff}\ns_addc_u32 s9, s9, 0")
    def lane_common(s):
        s.e(f"v_lshrrev_b32 v2, 6, v0\nv_and_b32 v1, 63, v0\nv_readfirstlane_b32 {s.sW}, v2")
        s.e("v_lshrrev_b32 v2, 4, v1\nv_and_b32 v3, 15, v1")

    def roleA(s):
        e = s.e; W = s.W
        sWQ, sK, sV = "s[12:15]", "s[16:19]", "s[20:23]"
        s.post = list(s.common_post)
        s.srd(12, 3, 4718592); s.srd(24, 7, 4718592); s.srd(16, 1, 0x4000000); s.srd(20, 2, 0x4000000)
        for p in s.post: e(p)
        s.lane_common(); s.consts()
        sHkv, sB, sS, sMM, sKb, sLb, sH6, sT0, sT1, sT2, sTag = "s57","s58","s59","s60","s61","s62","s63","s49","s50","s51","s64"
        e(f"""s_sub_u32 {sT0}, s2, 64
        s_and_b32 {sHkv}, {sT0}, 7
        s_lshr_b32 {sMM}, {sT0}, 3
        s_lshl_b32 {sHkv}, {sHkv}, 1
        s_cmp_ge_u32 {sMM}, 12
        s_cselect_b32 {sT1}, 1, 0
        s_cselect_b32 {sT2}, 12, 0
        s_add_u32 {sHkv}, {sHkv}, {sT1}
        s_sub_u32 {sMM}, {sMM}, {sT2}
        s_cmp_ge_u32 {sMM}, 6
        s_cselect_b32 {sB}, 1, 0
        s_cselect_b32 {sT2}, 6, 0
        s_sub_u32 {sS}, {sMM}, {sT2}
        s_mul_i32 {sT0}, {sS}, 43
        s_cmp_eq_u32 {sS}, 5
        s_cselect_b32 {sT1}, 1, 0
        s_sub_u32 {sT0}, {sT0}, {sT1}
        s_add_u32 {sT0}, {sT0}, {s.sW}
        s_lshl_b32 {sT0}, {sT0}, 13
        s_lshl_b32 {sKb}, {sB}, 4
        s_add_u32 {sKb}, {sKb}, {sHkv}
        s_lshl_b32 {sKb}, {sKb}, 21
        s_add_u32 {sKb}, {sKb}, {sT0}
        s_cmp_lt_u32 {sS}, 4
        s_cselect_b32 {sT0}, 3, 2
        s_cmp_lt_u32 {s.sW}, {sT0}
        s_cselect_b32 {sH6}, 1, 0
        s_lshl_b32 {sLb}, {s.sW}, 14""")
        vKoff, vVoff, vKrd = 4, 8, 12
        vM, vL, vAl, vNm, vA2, vt, vu = 9, 10, 11, 16, 17, 18, 19
        vQ, vS, vP, vT0, vT1 = 20, 36, 44, 48, 52
        vKa, vAcc, vV = 56, 88, 120
        vWoff, vXoff, vXa, vQ2 = 16, 17, 44, 184
        e(f"""v_lshlrev_b32 v{vVoff}, 4, v1
        v_lshlrev_b32 v{vt}, 2, v2
        v_xor_b32 v{vt}, v{vt}, v3
        v_lshlrev_b32 v{vt}, 4, v{vt}
        v_lshl_or_b32 v{vKoff}, v2, 8, v{vt}
        v_xor_b32 v{vKoff+1}, 16, v{vKoff}
        v_xor_b32 v{vKoff+2}, 32, v{vKoff}
        v_xor_b32 v{vKoff+3}, 48, v{vKoff}
        v_lshlrev_b32 v{vWoff}, 4, v3
        v_lshl_or_b32 v{vWoff}, v2, 15, v{vWoff}
        v_bfe_u32 v{vXoff}, v1, 2, 1
        v_mul_u32_u24 v{vXoff}, 1152, v{vXoff}
        v_lshl_add_u32 v{vXoff}, v2, 3, v{vXoff}""")
        def kload(i, j, w=None):
            if j % 4 == 0:
                e(f"s_add_u32 {sT0}, {sKb}, {i*65536 + (j>>2)*4096}\ns_add_u32 m0, {sLb}, {(i&1)*8192 + (j>>2)*4096}")
            if w is not None: e(f"s_waitcnt vmcnt({w-1})")
            e(f"buffer_load_dwordx4 v{vKoff+(j&3)}, {sK}, {sT0} offen offset:{(j&3)*1024} nt lds")
        def vload(i, j, w=None):
            if j % 4 == 0: e(f"s_add_u32 {sT1}, {sKb}, {i*65536 + (j>>2)*4096}")
            if w is not None: e(f"s_waitcnt vmcnt({w-1})")
            e(f"buffer_load_dwordx4 {s.q(vV+(i&1)*32+4*j)}, v{vVoff}, {sV}, {sT1} offen offset:{(j&3)*1024} nt")
        NPRE = s.NPRE
        e(f"s_cmp_ge_u32 {s.sW}, 6\ns_cbranch_scc1 L_A_w67")
        e(f"""s_mul_i32 {sT0}, {sS}, 96
        s_lshl_b32 {sT1}, {s.sW}, 4
        s_add_u32 {sT0}, {sT0}, {sT1}
        s_lshl_b32 {sT1}, {sT0}, 1
        s_lshl_b32 {sT0}, {sT0}, 13
        s_lshl_b32 {sT2}, {sHkv}, 1
        s_add_u32 {sT2}, {sT2}, {sB}
        s_lshl_b32 {sT2}, {sT2}, 8
        s_add_u32 {sT2}, {sT2}, {sT0}
        s_waitcnt lgkmcnt(0)""")
        s.wsfix()
        for jj in range(4):
            e(f"buffer_load_dwordx4 {s.q(vKa+4*jj)}, v{vWoff}, s[24:27], {sT2} offen nt")
            e(f"buffer_load_dwordx4 {s.q(vKa+16+4*jj)}, v{vWoff}, {sWQ}, {sT2} offen nt")
            if jj < 3: e(f"s_add_u32 {sT2}, {sT2}, 8192")
        e(f"buffer_load_dwordx2 {s.q(vXa,2)}, v{vXoff}, {s.sX}, {sT1} offen")
        if s.early:
            for j in range(NPRE): kload(0, j)
        s.st(1)
        e(f"v_bfe_u32 v{vt}, v1, 4, 1\nv_lshlrev_b32 v{vt}, 9, v{vt}\nv_lshl_add_u32 v{vt}, v3, 5, v{vt}")
        e(f"s_lshl_b32 {sT2}, {s.sW}, 10\ns_add_u32 {sT2}, {sT2}, {L_PQ}\nv_add_u32 v{vt}, {sT2}, v{vt}")
        if s.early: e(f"s_waitcnt vmcnt({NPRE})")
        else:
            e("s_waitcnt vmcnt(0)")
            for j in range(NPRE): kload(0, j)
        s.vlike(vAcc, vXa, [vKa+4*j for j in range(4)], (vT0, vT1), True)
        s.vlike(vQ2, vXa, [vKa+16+4*j for j in range(4)], (vT0, vT1), True)
        s.gather0(vAcc, vS)
        e(f"ds_write_b128 v{vt}, {s.q(vS)} offset:6144\nds_write_b128 v{vt}, {s.q(vS+4)} offset:6160")
        s.gather0(vQ2, vQ)
        e(f"ds_write_b128 v{vt}, {s.q(vQ)}\nds_write_b128 v{vt}, {s.q(vQ+4)} offset:16\ns_waitcnt lgkmcnt(0)")
        e("s_branch L_A_b1")
        e("L_A_w67:")
        e("s_waitcnt lgkmcnt(0)"); s.wsfix(); e(f"s_cmp_eq_u32 {s.sW}, 7\ns_cbranch_scc1 L_A_svc")
        s.code_prefetch(vt, vKa)
        for j in range(NPRE): kload(0, j)
        e("L_A_b1:")
        s.st(2)
        e("s_barrier")
        for j in range(NPRE, 8): kload(0, j, W[0])
        for j in range(8): vload(0, j, W[0])
        for j in range(8): kload(1, j, W[1])
        for j in range(8): vload(1, j, W[1])
        e("s_branch L_A_b2")
        e("L_A_svc:\ns_setprio 3")
        vE, vZ, vSn = vKa, vKa+1, vKa+4
        sQA, sAP = "s65", "s66"
        e(f"""v_mov_b32 v{vZ}, 0
        buffer_load_dword v{vE}, v{vZ}, {s.sWS}, 0 offen sc1
        v_mov_b32 v{vSn}, -1
        v_mov_b32 v{vSn+1}, -1
        v_mov_b32 v{vSn+2}, -1
        v_mov_b32 v{vSn+3}, -1
        s_mul_i32 {sT0}, {sHkv}, 12
        s_add_u32 {sT1}, {sT0}, {sMM}
        s_lshl_b32 {sQA}, {sT1}, 10
        s_add_u32 {sQA}, {sQA}, {WS_QA}
        buffer_store_dwordx4 {s.q(vSn)}, v{vVoff}, {s.sWS}, {sQA} offen sc1
        s_add_u32 s75, {sQA}, {WS_QB-WS_QA}
        buffer_store_dwordx4 {s.q(vSn)}, v{vVoff}, {s.sWS}, s75 offen sc1
        s_add_u32 {sT1}, {sT1}, 64
        s_lshl_b32 {sT1}, {sT1}, 7
        s_add_u32 {sT1}, {sT1}, {WS_FLAG}
        s_mov_b32 s67, 0x9e3779b1
        s_waitcnt vmcnt(0)
        v_mul_lo_u32 v{vE}, v{vE}, s67
        v_add_u32 v{vE}, 0x7f4a7c15, v{vE}
        s_mov_b64 exec, 1
        buffer_store_dword v{vE}, v{vZ}, {s.sWS}, {sT1} offen sc1
        s_mov_b64 exec, -1""")
        s.st(1)
        sF, sP0, sP1 = "s67", "s69", "s73"
        e(f"""v_min_u32 v{vt}, 11, v1
        v_lshlrev_b32 v{vt}, 7, v{vt}
        s_add_u32 {sF}, {sT0}, 64
        s_lshl_b32 {sF}, {sF}, 7
        s_add_u32 {sF}, {sF}, {WS_FLAG}
        s_lshl_b32 {sP0}, {sT0}, 10
        s_lshl_b32 {sT2}, {sB}, 9
        s_add_u32 {sP0}, {sP0}, {sT2}
        s_add_u32 {sP0}, {sP0}, {WS_QA}
        s_add_u32 {sP1}, {sP0}, 4096""")
        for j in range(8): kload(0, j)
        e("s_barrier")
        s.st(2)
        vR = vAcc
        e(f"v_add_u32 v{vu}, {L_PQ}, v{vVoff}")
        for t in range(6): e(f"ds_read_b128 {s.q(vQ2+4*t)}, v{vu} offset:{6144+t*1024}")
        for t in range(6): e(f"ds_read_b128 {s.q(vR+4*t)}, v{vu} offset:{t*1024}")
        sum6 = lambda r=vR: s.sum6(r)
        e("s_waitcnt lgkmcnt(6)")
        sum6(vQ2)
        for k in range(4): e(f"v_min_u32 v{vQ2+k}, -2, v{vQ2+k}")
        e(f"buffer_store_dwordx4 {s.q(vQ2)}, v{vVoff}, {s.sWS}, s75 offen sc1")
        e("s_waitcnt lgkmcnt(0)")
        sum6()
        for k in range(4): e(f"v_min_u32 v{vR+k}, -2, v{vR+k}")
        e(f"buffer_store_dwordx4 {s.q(vR)}, v{vVoff}, {s.sWS}, {sQA} offen sc1")
        s.spin_init()
        e(f"buffer_load_dword v{vu}, v{vt}, {s.sWS}, {sF} offen sc1")
        for j in range(8): vload(0, j)
        e(f"s_waitcnt vmcnt(8)\ns_branch L_A_vc")
        e(f"L_A_vf:\nbuffer_load_dword v{vu}, v{vt}, {s.sWS}, {sF} offen sc1\ns_waitcnt vmcnt(0)\nL_A_vc:\nv_cmp_ne_u32 vcc, v{vu}, v{vE}")
        s.spin_retry("L_A_vf")
        s.st(3)
        e(f"""v_lshrrev_b32 v{vt}, 5, v1
        v_mul_u32_u24 v{vt}, 6144, v{vt}
        v_and_b32 v{vu}, 31, v1
        v_lshl_add_u32 v{vt}, v{vu}, 4, v{vt}""")
        def qap():
            for t in range(6): e(f"buffer_load_dwordx4 {s.q(vR+4*t)}, v{vt}, {s.sWS}, {sP0 if t<4 else sP1} offen offset:{(t&3)*1024} sc1")
        qap()
        for j in range(8): kload(1, j)
        e("s_waitcnt vmcnt(8)\ns_branch L_A_pc\nL_A_pq:")
        qap()
        e("s_waitcnt vmcnt(0)\nL_A_pc:")
        s.sentinel_check(range(vR, vR+24), vu)
        s.spin_retry("L_A_pq")
        s.st(4)
        sum6()
        e(f"""v_cvt_pk_bf16_f32 v{vR}, v{vR}, v{vR+1}
        v_cvt_pk_bf16_f32 v{vR+1}, v{vR+2}, v{vR+3}
        v_lshlrev_b32 v{vt}, 3, v1
        v_add_u32 v{vt}, {L_QOP}, v{vt}
        ds_write_b64 v{vt}, {s.q(vR,2)}
        s_setprio 0
        s_lshl_b32 s75, {sMM}, 7
        s_add_u32 s75, s75, {sF}
        v_lshlrev_b32 v{vt}, 12, v2
        v_lshl_add_u32 v{vu}, v3, 4, v{vt}
        s_lshl_b32 {sAP}, {sHkv}, 14
        s_add_u32 {sAP}, {sAP}, {WS_AP}
        s_lshl_b32 {sT2}, {sS}, 1
        s_add_u32 {sT2}, {sT2}, {sB}
        s_lshl_b32 s67, {sT2}, 8
        s_add_u32 s67, s67, {sAP}
        buffer_store_dwordx4 {s.q(vSn)}, v{vu}, {s.sWS}, s67 offen sc1
        s_lshl_b32 s67, {sT2}, 2
        s_add_u32 s67, s67, {sAP}
        buffer_store_dword v{vSn}, v{vt}, {s.sWS}, s67 offen offset:3072 sc1""")
        for j in range(8): vload(1, j, s.WS)
        e(f"""s_waitcnt vmcnt(8)
        s_mov_b64 exec, 1
        buffer_store_dword v{vE}, v{vZ}, {s.sWS}, s75 offen offset:64 sc1
        s_mov_b64 exec, -1
        s_waitcnt lgkmcnt(0)""")
        e("L_A_b2:")
        e(f"""v_xor_b32 v{vt}, v2, v3
        v_lshlrev_b32 v{vt}, 4, v{vt}
        v_and_b32 v{vu}, 3, v3
        v_lshl_or_b32 v{vt}, v{vu}, 10, v{vt}
        v_lshrrev_b32 v{vu}, 2, v3
        v_lshl_or_b32 v{vt}, v{vu}, 8, v{vt}
        v_add_u32 v{vKrd}, {sLb}, v{vt}
        v_xor_b32 v{vKrd+1}, 64, v{vKrd}
        v_xor_b32 v{vKrd+2}, 0x80, v{vKrd}
        v_xor_b32 v{vKrd+3}, 0xc0, v{vKrd}
        v_and_b32 v{vu}, 1, v{vu}
        v_lshlrev_b32 v{vu}, 8, v{vu}
        v_lshl_add_u32 v{vu}, v2, 4, v{vu}
        v_add_u32 v{vu}, {L_QOP}, v{vu}""")
        s.st(5)
        e("s_barrier")
        s.st(6)
        for kk in range(4): e(f"ds_read_b128 {s.q(vQ+4*kk)}, v{vu} offset:{kk*64}")
        def cond_wait(n_if_not6):
            l = s.lab("L_cw")
            e(f"s_cmp_lg_u32 {sH6}, 0\ns_cbranch_scc1 {l}\ns_waitcnt vmcnt({n_if_not6})\n{l}:")
        for i in range(6):
            if i == 5: e(f"s_cmp_eq_u32 {sH6}, 0\ns_cbranch_scc1 L_A_fin")
            e(f"s_waitcnt vmcnt({24 if i < 5 else 8})")
            if i == 4: cond_wait(8)
            for blk in range(2):
                for kk in range(4):
                    e(f"ds_read_b128 {s.q(vKa+16*blk+4*kk)}, v{vKrd+kk} offset:{(i&1)*8192+blk*4096}")
            e("s_waitcnt lgkmcnt(0)")
            for kk in range(4):
                for blk in range(2):
                    c = "0" if kk == 0 else s.q(vS+4*blk)
                    e(f"v_mfma_f32_16x16x32_bf16 {s.q(vS+4*blk)}, {s.q(vKa+16*blk+4*kk)}, {s.q(vQ+4*kk)}, {c}")
            if i + 2 < 5:
                for j in range(8): kload(i+2, j, W[i+2])
            elif i + 2 == 5:
                l = s.lab("L_k5"); e(f"s_cmp_eq_u32 {sH6}, 0\ns_cbranch_scc1 {l}")
                for j in range(8): kload(5, j)
                e(f"{l}:")
            if s.mimic:
                for k in range(4): e(f"v_cvt_pk_bf16_f32 v{vP+k}, v{vS+2*k}, v{vS+2*k+1}")
                for k in range(4): e(f"v_lshlrev_b32 v{vS+2*k}, 16, v{vP+k}\nv_and_b32 v{vS+2*k+1}, 0xffff0000, v{vP+k}")
                for k in range(8): e(f"v_mul_f32 v{vS+k}, {hex(f2u(128**-0.5))}, v{vS+k}")
                for k in range(4): e(f"v_cvt_pk_bf16_f32 v{vP+k}, v{vS+2*k}, v{vS+2*k+1}")
                for k in range(4): e(f"v_lshlrev_b32 v{vS+2*k}, 16, v{vP+k}\nv_and_b32 v{vS+2*k+1}, 0xffff0000, v{vP+k}")
            sC = s.sC if not s.mimic else "s68"
            if s.mimic and i == 0: e(f"s_mov_b32 s68, {hex(f2u(math.log2(math.e)))}")
            e(f"v_max3_f32 v{vt}, v{vS}, v{vS+1}, v{vS+2}\nv_max3_f32 v{vt}, v{vt}, v{vS+3}, v{vS+4}\nv_max3_f32 v{vt}, v{vt}, v{vS+5}, v{vS+6}")
            if i == 0: e(f"v_max_f32 v{vt}, v{vt}, v{vS+7}")
            else: e(f"v_max3_f32 v{vt}, v{vt}, v{vS+7}, v{vM}")
            s.xreduce("v_max_f32", vt, vu)
            e(f"v_mul_f32 v{vNm}, {sC}, v{vt}")
            if i > 0: e(f"v_fma_f32 v{vAl}, v{vM}, {sC}, -v{vNm}\nv_exp_f32 v{vAl}, v{vAl}")
            e(f"v_mov_b32 v{vM}, v{vt}")
            for k in range(8): e(f"v_fma_f32 v{vS+k}, v{vS+k}, {sC}, -v{vNm}")
            if i > 0:
                e(f"v_mov_b32_dpp v{vA2}, v{vAl} row_newbcast:0 row_mask:0x5 bank_mask:0xf\nv_mov_b32_dpp v{vA2}, v{vAl} row_newbcast:4 row_mask:0xa bank_mask:0xf")
            for k in range(8): e(f"v_exp_f32 v{vS+k}, v{vS+k}")
            if i > 0:
                for k in range(8): e(f"v_mul_f32 v{vAcc+4*k}, v{vA2}, v{vAcc+4*k}")
            for k in range(4): e(f"v_cvt_pk_bf16_f32 v{vP+k}, v{vS+2*k}, v{vS+2*k+1}")
            e(f"v_add_f32 v{vS}, v{vS}, v{vS+1}\nv_add_f32 v{vS+2}, v{vS+2}, v{vS+3}\nv_add_f32 v{vS+4}, v{vS+4}, v{vS+5}\nv_add_f32 v{vS+6}, v{vS+6}, v{vS+7}")
            e(f"v_add_f32 v{vS}, v{vS}, v{vS+2}\nv_add_f32 v{vS+4}, v{vS+4}, v{vS+6}\nv_add_f32 v{vS}, v{vS}, v{vS+4}")
            if i == 0: e(f"v_mov_b32 v{vL}, v{vS}")
            else: e(f"v_fma_f32 v{vL}, v{vL}, v{vAl}, v{vS}")
            e(f"s_waitcnt vmcnt({[24,24,24,16,16,0][i]})")
            if i == 4: cond_wait(0)
            s.vlike(vAcc, vP, [vV+(i&1)*32+4*j for j in range(8)], (vT0, vT1), i == 0)
            if i + 2 < 5:
                for j in range(8): vload(i+2, j, W[i+2])
            elif i + 2 == 5:
                l = s.lab("L_v5"); e(f"s_cmp_eq_u32 {sH6}, 0\ns_cbranch_scc1 {l}")
                for j in range(8): vload(5, j)
                e(f"{l}:")
            if i == 0: s.st(7)
        e("L_A_fin:")
        s.st(8)
        sCm = s.sC if not s.mimic else "s68"
        s.xreduce("v_add_f32", vL, vu)
        e(f"""v_mul_f32 v{vM}, {sCm}, v{vM}
        v_bfe_u32 v{vt}, v1, 4, 1
        v_lshlrev_b32 v{vt}, 9, v{vt}
        v_lshl_add_u32 v{vt}, v3, 5, v{vt}
        s_lshl_b32 {sT2}, {s.sW}, 10
        s_add_u32 {sT2}, {sT2}, {L_OC}
        v_add_u32 v{vt}, {sT2}, v{vt}
        v_bfe_u32 v{vu}, v1, 2, 1
        v_lshlrev_b32 v{vu}, 5, v{vu}
        s_lshl_b32 {sT2}, {s.sW}, 2
        s_add_u32 {sT2}, {sT2}, {L_MS}
        v_add_u32 v{vu}, {sT2}, v{vu}
        ds_write2_b32 v{vu}, v{vM}, v{vL} offset0:0 offset1:16""")
        s.gather0(vAcc, vS)
        e(f"ds_write_b128 v{vt}, {s.q(vS)}\nds_write_b128 v{vt}, {s.q(vS+4)} offset:16")
        e(f"""s_lshl_b32 {sT2}, {s.sW}, 8
        s_add_u32 {sT2}, {sT2}, {L_OC}
        v_lshl_add_u32 v{vt}, v1, 2, {sT2}
        s_lshr_b32 {sT2}, {s.sW}, 1
        s_lshl_b32 {sT2}, {sT2}, 5
        s_add_u32 {sT2}, {sT2}, {L_MS}
        v_and_b32 v{vu}, 7, v1
        v_lshl_add_u32 v{vu}, v{vu}, 2, {sT2}
        s_lshl_b32 {sT0}, {sHkv}, 2
        s_add_u32 {sT0}, {sT0}, {s.sW}
        s_lshl_b32 {sT0}, {sT0}, 12
        s_add_u32 {sT0}, {sT0}, {WS_AP}
        s_lshl_b32 {sT2}, {sS}, 1
        s_add_u32 {sT2}, {sT2}, {sB}
        s_lshl_b32 {sT1}, {sT2}, 2
        s_add_u32 {sT1}, {sT1}, {sT0}
        s_lshl_b32 {sT2}, {sT2}, 8
        s_add_u32 {sT0}, {sT0}, {sT2}
        s_waitcnt lgkmcnt(0)
        s_barrier""")
        s.st(9)
        e(f"s_cmp_ge_u32 {s.sW}, 4\ns_cbranch_scc1 L_A_done")
        e(f"ds_read2_b32 {s.q(vP,2)}, v{vu} offset0:0 offset1:16")
        for k in range(8): e(f"ds_read_b32 v{vS+k}, v{vt} offset:{k*1024}")
        e("s_waitcnt lgkmcnt(8)")
        D = "row_mask:0xf bank_mask:0xf"
        e(f"""v_max_f32_dpp v{vM}, v{vP}, v{vP} quad_perm:[1,0,3,2] {D}
        v_max_f32_dpp v{vM}, v{vM}, v{vM} quad_perm:[2,3,0,1] {D}
        v_max_f32_dpp v{vM}, v{vM}, v{vM} row_half_mirror {D}
        v_sub_f32 v{vP}, v{vP}, v{vM}
        v_exp_f32 v{vP}, v{vP}
        v_mul_f32 v{vL}, v{vP}, v{vP+1}
        v_add_f32_dpp v{vL}, v{vL}, v{vL} quad_perm:[1,0,3,2] {D}
        v_add_f32_dpp v{vL}, v{vL}, v{vL} quad_perm:[2,3,0,1] {D}
        v_add_f32_dpp v{vL}, v{vL}, v{vL} row_half_mirror {D}
        v_rcp_f32 v{vAl}, v{vL}
        v_log_f32 v{vL}, v{vL}
        v_lshlrev_b32 v{vt}, 2, v1
        v_mul_f32 v{vP}, v{vP}, v{vAl}
        v_add_f32 v{vL}, v{vL}, v{vM}
        s_waitcnt lgkmcnt(0)
        v_mul_f32_dpp v{vA2}, v{vP}, v{vS} row_newbcast:0 {D}""")
        for k in range(1, 8): e(f"v_fmac_f32_dpp v{vA2}, v{vP}, v{vS+k} row_newbcast:{k} {D}")
        e(f"""v_min_u32 v{vL}, -2, v{vL}
        v_min_u32 v{vA2}, -2, v{vA2}
        buffer_store_dword v{vA2}, v{vt}, {s.sWS}, {sT0} offen sc1
        s_mov_b64 exec, 1
        buffer_store_dword v{vL}, v{vt}, {s.sWS}, {sT1} offen offset:3072 sc1
        s_mov_b64 exec, -1""")
        e("L_A_done:")
        s.st(10)
        s.stamps_out(11)
        e("s_endpgm")

    def roleB(s):
        e = s.e
        sWQ, sUK, sCK, sUV, sWO2, sWO, sG, sOUT = "s[12:15]","s[16:19]","s[20:23]","s[24:27]","s[28:31]","s[32:35]","s[36:39]","s[40:43]"
        e("L_B:"); s.inB = True
        s.post = list(s.common_post)
        s.srd(12, 7, 4718592); s.srd(16, 8, 4194304); s.srd(20, 6, 16777216); s.srd(24, 9, 4194304)
        s.srd(28, 10, 4718592); s.srd(32, 4, 4718592); s.srd(36, 11, 1152); s.srd(40, 12, 2304)
        for p in s.post: e(p)
        s.lane_common(); s.consts()
        sH, sHalf, sJ, sAb, sSp, sCb, sT0, sT1, sT2, sT3, sHo, sTl = "s57","s58","s59","s60","s61","s62","s49","s50","s51","s52","s63","s64"
        e(f"""s_and_b32 {sT0}, s2, 7
        s_lshr_b32 {sT1}, s2, 3
        s_lshr_b32 {sH}, {sT1}, 1
        s_lshl_b32 {sT2}, {sT0}, 2
        s_add_u32 {sH}, {sH}, {sT2}
        s_and_b32 {sHalf}, {sT1}, 1
        s_lshl_b32 {sJ}, {sH}, 1
        s_add_u32 {sJ}, {sJ}, {sHalf}
        s_and_b32 {sAb}, {sT0}, 1
        s_lshr_b32 {sSp}, {sT0}, 1
        s_lshl_b32 {sSp}, {sSp}, 3
        s_add_u32 {sSp}, {sSp}, {sT1}
        s_lshl_b32 {sCb}, {sAb}, 23
        s_lshl_b32 {sT2}, {sSp}, 18
        s_add_u32 {sCb}, {sCb}, {sT2}
        s_lshl_b32 {sT2}, {s.sW}, 13
        s_add_u32 {sCb}, {sCb}, {sT2}
        s_lshl_b32 {sHo}, {sH}, 8""")
        vL16, vt, vu, vD, vUo = 4, 5, 6, 7, 8
        vG0, vG1, vTag = 12, 13, 14
        vCrd, vTr = 16, 20
        vMq, vLq, vMp, vAq, vAp, vNm, vPw, vPr, vXw, vXq, vXp = 24,25,26,27,28,29,30,31,9,10,11
        vS, vT0, vT1 = 32, 36, 40
        vP = 44
        vCa = 60
        vO = 92
        vUV = 124
        vQ = 156
        vWq, vXa = 156, 44
        e(f"""v_lshlrev_b32 v{vL16}, 4, v1
        s_and_b32 {sT2}, {s.sW}, 1
        s_mul_i32 {sT2}, {sT2}, 48
        v_xor_b32 v{vD}, {sT2}, v{vL16}
        v_xor_b32 v{vt}, v2, v3
        v_lshlrev_b32 v{vt}, 4, v{vt}
        v_lshl_or_b32 v{vUo}, v2, 13, v{vt}
        v_lshrrev_b32 v{vt}, 5, v1
        v_lshlrev_b32 v{vt}, 15, v{vt}
        v_and_b32 v{vu}, 31, v1
        v_lshl_add_u32 v{vXw}, v{vu}, 4, v{vt}""")
        def uk_dma(w=None):
            e(f"""s_lshl_b32 {sT0}, {sHalf}, 8
            s_lshl_b32 {sT1}, {s.sW}, 5
            s_add_u32 {sT0}, {sT0}, {sT1}
            s_lshl_b32 {sT0}, {sT0}, 13
            s_add_u32 {sT0}, {sT0}, {sHo}
            s_lshl_b32 {sT1}, {s.sW}, 13
            s_add_u32 {sT1}, {sT1}, {R1}""")
            for j in range(8):
                e(f"s_add_u32 m0, {sT1}, {j*1024}\nv_xor_b32 v{vu}, {(j&3)<<6}, v{vUo}")
                if w: e(f"s_waitcnt vmcnt({w-1})")
                e(f"buffer_load_dwordx4 v{vu}, {sUK}, {sT0} offen nt lds")
                if j < 7: e(f"s_add_u32 {sT0}, {sT0}, 32768")
        def tile_dma(soff, slot_s, w=None):
            for j in range(8):
                if j == 0: e(f"s_mov_b32 m0, {slot_s}")
                if j == 4: e(f"s_add_u32 m0, {slot_s}, 4096\ns_add_u32 {sT3}, {soff}, 4096")
                e(f"v_xor_b32 v{vu}, {(4*(j&3)+2*(j>>2))<<4}, v{vD}")
                if w: e(f"s_waitcnt vmcnt({w-1})")
                e(f"buffer_load_dwordx4 v{vu}, {sCK}, {soff if j<4 else sT3} offen offset:{(j&3)*1024} nt lds")
        def uv_load(w=None):
            e(f"""v_lshrrev_b32 v{vt}, 3, v1
            v_lshlrev_b32 v{vt}, 16, v{vt}
            v_and_b32 v{vu}, 7, v1
            v_lshl_add_u32 v{vt}, v{vu}, 4, v{vt}
            s_lshl_b32 {sT2}, {s.sW}, 19
            s_add_u32 {sT2}, {sT2}, {sHo}
            s_lshl_b32 {sT3}, {sHalf}, 7
            s_add_u32 {sT2}, {sT2}, {sT3}""")
            for j in range(8):
                if w: e(f"s_waitcnt vmcnt({w-1})")
                e(f"buffer_load_dwordx4 {s.q(vUV+4*j)}, v{vt}, {sUV}, {sT2} offen nt")
                if j < 7: e(f"s_add_u32 {sT2}, {sT2}, 8192")
        e("s_waitcnt lgkmcnt(0)"); s.wsfix(); e(f"s_cmp_eq_u32 {s.sW}, 7\ns_cbranch_scc1 L_B_svc")
        e(f"s_setprio 2\ns_cmp_lg_u32 {s.sW}, 6\ns_cbranch_scc1 L_B_w05")
        npf = s.code_prefetch(vt, vCa)
        e(f"""v_and_b32 v{vt}, 31, v1
        v_mul_u32_u24 v{vt}, 36, v{vt}
        v_lshrrev_b32 v{vu}, 5, v1
        v_mul_u32_u24 v{vu}, 1152, v{vu}
        v_add_u32 v{vu}, v{vu}, v{vt}
        buffer_load_dwordx4 {s.q(vQ)}, v{vu}, {s.sX}, 0 offen
        buffer_load_dwordx4 {s.q(vQ+4)}, v{vu}, {s.sX}, 0 offen offset:16
        buffer_load_dword v{vQ+8}, v{vu}, {s.sX}, 0 offen offset:32
        buffer_load_dwordx4 {s.q(vQ+12)}, v{vt}, {sG}, 0 offen
        buffer_load_dwordx4 {s.q(vQ+16)}, v{vt}, {sG}, 0 offen offset:16
        buffer_load_dword v{vQ+20}, v{vt}, {sG}, 0 offen offset:32
        v_mov_b32 v{vS}, 0
        s_waitcnt vmcnt(0)""")
        for k in range(9): e(f"v_dot2c_f32_bf16 v{vS}, v{vQ+k}, v{vQ+12+k}")
        s.dppreduce("v_add_f32", vS, (8, 4, 2, 1))
        s.xreduce("v_add_f32", vS, vt, (16,))
        e(f"""v_mul_f32 v{vS}, {hex(f2u(-math.log2(math.e)))}, v{vS}
        v_exp_f32 v{vS}, v{vS}
        v_lshrrev_b32 v{vt}, 5, v1
        v_add_f32 v{vS}, 1.0, v{vS}
        v_rcp_f32 v{vS}, v{vS}
        v_lshlrev_b32 v{vt}, 2, v{vt}
        v_add_u32 v{vt}, {L_GT}, v{vt}
        ds_write_b32 v{vt}, v{vS}""")
        vSn = vCa + 4
        for k in range(4): e(f"v_mov_b32 v{vSn+k}, -1")
        e(f"""v_and_b32 v{vu}, 31, v1
        v_lshlrev_b32 v{vu}, 8, v{vu}
        s_lshl_b32 {sT0}, {sAb}, 5
        s_add_u32 {sT0}, {sT0}, {sSp}
        s_lshl_b32 {sT0}, {sT0}, 2
        s_add_u32 {sT0}, {sT0}, {WS_BST}
        buffer_store_dword v{vSn}, v{vu}, {s.sWS}, {sT0} offen sc1
        v_lshrrev_b32 v{vt}, 2, v1
        v_lshlrev_b32 v{vt}, 12, v{vt}
        v_and_b32 v{vu}, 3, v1
        v_lshl_add_u32 v{vt}, v{vu}, 4, v{vt}
        s_lshl_b32 {sT0}, {sJ}, 6
        s_add_u32 {sT0}, {sT0}, {WS_OP}""")
        for i in range(5):
            if i == 4: e("s_mov_b32 exec_hi, 0")
            e(f"buffer_store_dwordx4 {s.q(vSn)}, v{vt}, {s.sWS}, {sT0} offen sc1")
            if i < 4: e(f"s_add_u32 {sT0}, {sT0}, 65536")
        e("s_mov_b64 exec, -1")
        uk_dma()
        e("s_branch L_B_w06\nL_B_w05:")
        uk_dma(s.BW[0])
        e("L_B_w06:")
        e(f"s_setprio 1\ns_lshl_b32 {sT2}, {s.sW}, 13")
        tile_dma(sCb, sT2, s.BW[1])
        e("s_setprio 0")
        uv_load(s.BW[2])
        s.st(1)
        e("s_branch L_B_b2")
        e("L_B_svc:\ns_setprio 3")
        vE, vZ, vSn, vR = vCa, vCa+1, vCa+4, vQ
        sQB, sQS = "s65", "s66"
        e(f"""v_mov_b32 v{vZ}, 0
        buffer_load_dword v{vE}, v{vZ}, {s.sWS}, 0 offen sc1
        v_mov_b32 v{vSn}, -1
        v_mov_b32 v{vSn+1}, -1
        v_mov_b32 v{vSn+2}, -1
        v_mov_b32 v{vSn+3}, -1
        v_and_b32 v{vu}, 31, v1
        s_lshl_b32 {sQS}, {sJ}, 9
        s_add_u32 {sQS}, {sQS}, {WS_QABS}
        buffer_store_dwordx4 {s.q(vSn)}, v{vXw}, {s.sWS}, {sQS} offen sc1""")
        e(f"""s_lshl_b32 {sT1}, {sJ}, 7
        s_add_u32 {sT1}, {sT1}, {WS_FLAG}
        s_mov_b32 {sT2}, 0x9e3779b1
        s_waitcnt vmcnt(0)
        v_mul_lo_u32 v{vTag}, v{vE}, {sT2}
        v_add_u32 v{vTag}, 0x7f4a7c15, v{vTag}
        v_mov_b32 v{vt}, {L_GT+8}
        s_mov_b64 exec, 1
        buffer_store_dword v{vTag}, v{vZ}, {s.sWS}, {sT1} offen sc1
        ds_write_b32 v{vt}, v{vTag}
        s_mov_b64 exec, -1""")
        s.st(1)
        uk_dma()
        e(f"""v_lshlrev_b32 v{vt}, 7, v1
        v_min_u32 v{vXq}, 11, v1
        v_lshlrev_b32 v{vXq}, 7, v{vXq}
        s_mov_b32 {sQB}, {WS_FLAG}
        s_lshr_b32 {sT0}, {sH}, 1
        s_mul_i32 {sT0}, {sT0}, 12
        s_add_u32 {sT0}, {sT0}, 64
        s_lshl_b32 {sT0}, {sT0}, 7
        s_add_u32 {sT0}, {sT0}, {WS_FLAG}""")
        s.spin_init()
        e(f"""L_B_vf:
        buffer_load_dword v{vu}, v{vt}, {s.sWS}, {sQB} offen sc1
        buffer_load_dword v{vXp}, v{vXq}, {s.sWS}, {sT0} offen sc1
        s_waitcnt vmcnt(0)
        v_cmp_ne_u32 vcc, v{vu}, v{vTag}
        v_cmp_ne_u32 s[54:55], v{vXp}, v{vTag}
        s_or_b64 vcc, vcc, s[54:55]""")
        s.spin_retry("L_B_vf")
        s.st(3)
        e(f"""s_mul_i32 {sT0}, {sH}, 6144
        s_add_u32 {sT0}, {sT0}, {WS_QB}
        s_add_u32 {sT1}, {sT0}, 4096
        L_B_pq:""")
        for t in range(6): e(f"buffer_load_dwordx4 {s.q(vR+4*t)}, v{vL16}, {s.sWS}, {sT0 if t<4 else sT1} offen offset:{(t&3)*1024} sc1")
        e("s_waitcnt vmcnt(0)")
        s.sentinel_check(range(vR, vR+24), vu)
        s.spin_retry("L_B_pq")
        s.st(2)
        s.sum6(vR)
        e(f"""v_cvt_pk_bf16_f32 v{vR}, v{vR}, v{vR+1}
        v_cvt_pk_bf16_f32 v{vR+1}, v{vR+2}, v{vR+3}
        v_lshlrev_b32 v{vt}, 3, v1
        v_add_u32 v{vt}, {L_QOP}, v{vt}
        ds_write_b64 v{vt}, {s.q(vR,2)}""")
        e("L_B_b2:")
        e(f"""v_bfe_u32 v{vu}, v1, 2, 1
        v_lshlrev_b32 v{vXq}, 9, v{vu}
        v_lshlrev_b32 v{vu}, 8, v{vu}
        v_lshl_add_u32 v{vu}, v2, 4, v{vu}
        v_add_u32 v{vu}, {L_QOP}, v{vu}
        v_xor_b32 v{vt}, v2, v3
        v_lshlrev_b32 v{vt}, 4, v{vt}
        v_lshl_or_b32 v{vt}, v3, 8, v{vt}
        s_lshl_b32 {sT2}, {s.sW}, 13
        s_add_u32 {sT2}, {sT2}, {R1}
        v_add_u32 v{vCrd}, {sT2}, v{vt}
        v_xor_b32 v{vCrd+1}, 64, v{vCrd}
        v_xor_b32 v{vCrd+2}, 0x80, v{vCrd}
        v_xor_b32 v{vCrd+3}, 0xc0, v{vCrd}
        v_lshl_add_u32 v{vXq}, v2, 3, v{vXq}
        s_lshl_b32 {sT2}, {s.sW}, 6
        s_add_u32 {sT2}, {sT2}, {L_QS}
        v_add_u32 v{vXq}, {sT2}, v{vXq}""")
        e(f"v_mov_b32 v{vt}, {L_GT}\ns_waitcnt lgkmcnt(0)")
        s.st(4)
        e("s_barrier")
        for kk in range(4): e(f"ds_read_b128 {s.q(vP+4*kk)}, v{vu} offset:{kk*64}")
        e(f"ds_read_b128 {s.q(vG0)}, v{vt}")
        e("s_waitcnt vmcnt(16)")
        for blk in range(2):
            for kk in range(4): e(f"ds_read_b128 {s.q(vCa+16*blk+4*kk)}, v{vCrd+kk} offset:{blk*4096}")
        e("s_waitcnt lgkmcnt(0)")
        for kk in range(4):
            for blk in range(2):
                c = "0" if kk == 0 else s.q(vS+4*blk)
                e(f"v_mfma_f32_16x16x32_bf16 {s.q(vS+4*blk)}, {s.q(vCa+16*blk+4*kk)}, {s.q(vP+4*kk)}, {c}")
        for k in range(4): e(f"v_cvt_pk_bf16_f32 v{vT1+k}, v{vS+2*k}, v{vS+2*k+1}")
        e(f"ds_write_b64 v{vXq}, {s.q(vT1,2)}\nds_write_b64 v{vXq}, {s.q(vT1+2,2)} offset:32\ns_waitcnt lgkmcnt(0)\ns_barrier")
        l = s.lab("L_nq")
        e(f"s_cmp_lg_u32 {s.sW}, 7\ns_cbranch_scc1 {l}")
        e(f"v_add_u32 v{vt}, {L_QS}, v{vL16}\nds_read_b128 {s.q(vT0)}, v{vt}\ns_waitcnt lgkmcnt(0)")
        for k in range(4): e(f"v_min_u32 v{vT0+k}, -2, v{vT0+k}")
        e(f"buffer_store_dwordx4 {s.q(vT0)}, v{vXw}, {s.sWS}, {sQS} offen sc1\ns_lshl_b32 {sT2}, {s.sW}, 13")
        tile_dma(sCb, sT2)
        uv_load()
        e(f"s_setprio 0\n{l}:")
        s.st(5)
        e(f"s_add_u32 {sT0}, {sCb}, 65536\ns_lshl_b32 {sT2}, {s.sW}, 13\ns_add_u32 {sT2}, {sT2}, {R1}")
        tile_dma(sT0, sT2)
        e(f"""s_lshl_b32 {sT0}, {sAb}, 15
        s_lshl_b32 {sT1}, {s.sW}, 12
        s_add_u32 {sT0}, {sT0}, {sT1}
        s_add_u32 {sT0}, {sT0}, {WS_QABS}""")
        def qpoll():
            for q_ in range(4): e(f"buffer_load_dwordx4 {s.q(vCa+4*q_)}, v{vL16}, {s.sWS}, {sT0} offen offset:{q_*1024} sc1")
        e(f"""s_lshl_b32 {sT2}, {s.sW}, 6
        s_and_b32 {sT2}, {sT2}, 0xff
        v_xor_b32 v{vt}, {sT2}, v{vL16}
        s_add_u32 {sT1}, {sT1}, {X}
        v_add_u32 v{vt}, {sT1}, v{vt}""")
        s.spin_init()
        e("L_B_qp:")
        qpoll()
        e("s_waitcnt vmcnt(0)")
        s.sentinel_check(range(vCa, vCa+16), vu)
        s.spin_retry("L_B_qp")
        for q_ in range(4):
            if q_: e(f"v_xor_b32 v{vu}, {q_<<4}, v{vt}")
            e(f"ds_write_b128 v{vu if q_ else vt}, {s.q(vCa+4*q_)} offset:{q_*1024}")
        e(f"""s_lshr_b32 {sT0}, {s.sW}, 2
        s_and_b32 {sT1}, {s.sW}, 3
        v_xor_b32 v{vt}, v2, v3
        v_lshlrev_b32 v{vt}, 4, v{vt}
        v_lshl_or_b32 v{vt}, v3, 10, v{vt}
        s_lshl_b32 {sT2}, {sT0}, 14
        s_add_u32 {sT2}, {sT2}, {X}
        v_add_u32 v{vTr}, {sT2}, v{vt}
        v_xor_b32 v{vTr+1}, 64, v{vTr}
        v_xor_b32 v{vTr+2}, 0x80, v{vTr}
        v_xor_b32 v{vTr+3}, 0xc0, v{vTr}
        s_waitcnt lgkmcnt(0)""")
        s.st(6)
        e("s_barrier")
        for kk in range(16): e(f"ds_read_b128 {s.q(vQ+4*kk)}, v{vTr+(kk&3)} offset:{(kk>>2)*256}")
        e(f"""s_mov_b32 {sT3}, 0x78
        v_lshrrev_b32 v{vt}, 2, v3
        v_lshlrev_b32 v{vt}, 1, v{vt}
        v_bfe_u32 v{vt}, {sT3}, v{vt}, 2
        v_and_b32 v{vu}, 3, v3
        v_lshl_or_b32 v{vt}, v{vu}, 2, v{vt}
        v_xor_b32 v{vt}, v{vt}, v2
        v_lshlrev_b32 v{vt}, 4, v{vt}
        v_lshl_or_b32 v{vt}, v3, 10, v{vt}
        s_lshl_b32 {sT2}, {sT1}, 14
        v_add_u32 v{vCrd}, {sT2}, v{vt}
        v_xor_b32 v{vCrd+1}, 64, v{vCrd}
        v_xor_b32 v{vCrd+2}, 0x80, v{vCrd}
        v_xor_b32 v{vCrd+3}, 0xc0, v{vCrd}
        s_lshl_b32 {sT2}, {sT0}, 4
        v_add_u32 v{vt}, {sT2}, v3
        v_mul_u32_u24 v{vPw}, 144, v{vt}
        v_lshl_add_u32 v{vPw}, v2, 3, v{vPw}
        s_lshl_b32 {sT2}, {sT1}, 5
        s_add_u32 {sT2}, {sT2}, {L_PB}
        v_add_u32 v{vPw}, {sT2}, v{vPw}
        v_lshlrev_b32 v{vXq}, 4, v{vt}
        v_add_u32 v{vXq}, {L_MX}, v{vXq}
        s_lshl_b32 {sT2}, {sT1}, 2
        v_add_u32 v{vXw}, {sT2}, v{vXq}
        v_and_b32 v{vt}, 31, v1
        v_lshlrev_b32 v{vXp}, 4, v{vt}
        v_add_u32 v{vXp}, {L_MX}, v{vXp}
        v_mul_u32_u24 v{vPr}, 144, v{vt}
        v_lshrrev_b32 v{vu}, 5, v1
        v_lshl_add_u32 v{vPr}, v{vu}, 4, v{vPr}
        v_add_u32 v{vPr}, {L_PB}, v{vPr}
        s_waitcnt lgkmcnt(0)""")
        e(f"""v_bfe_u32 v{vt}, v1, 2, 2
        v_lshl_add_u32 v{vTr+1}, v{vu}, 3, v{vt}
        v_lshlrev_b32 v{vTr+1}, 10, v{vTr+1}
        v_lshlrev_b32 v{vt}, 2, v{vt}
        v_mad_u32_u24 v{vt}, v{vu}, 3, v{vt}
        v_bfe_u32 v{vu}, v1, 4, 1
        v_lshlrev_b32 v{vu}, 1, v{vu}
        v_bfe_u32 v{vTr+2}, v1, 1, 1
        v_add_u32 v{vu}, v{vu}, v{vTr+2}
        s_lshl_b32 {sT2}, {s.sW}, 3
        v_add_u32 v{vu}, {sT2}, v{vu}
        v_xor_b32 v{vu}, v{vu}, v{vt}
        v_lshl_or_b32 v{vTr}, v{vu}, 4, v{vTr+1}
        v_and_b32 v{vu}, 1, v1
        v_lshl_or_b32 v{vTr}, v{vu}, 3, v{vTr}
        v_xor_b32 v{vTr+1}, 64, v{vTr}
        v_xor_b32 v{vTr+2}, 32, v{vTr}
        v_xor_b32 v{vTr+3}, 0x60, v{vTr}
        v_mov_b32 v{vMq}, 0xff800000
        v_mov_b32 v{vMp}, 0xff800000
        v_mov_b32 v{vLq}, 0""")
        def w_dma(srd, ldsbase):
            e(f"""s_mul_i32 {sT0}, {sJ}, 73728
            s_mul_i32 {sT1}, {s.sW}, 9216
            s_add_u32 {sT0}, {sT0}, {sT1}""")
            for j in range(9):
                if j % 4 == 0:
                    e(f"s_add_u32 m0, {sT1}, {ldsbase + j*1024}")
                    if j: e(f"s_add_u32 {sT0}, {sT0}, 4096")
                e(f"buffer_load_dwordx4 v{vL16}, {srd}, {sT0} offen offset:{(j&3)*1024} nt lds")
        def tile(tl):
            if s.bdet: s.st2(3*tl)
            if tl == 2: e("s_waitcnt vmcnt(8)")
            e("s_barrier")
            if s.bdet: s.st2(3*tl+1)
            def crd(kk): e(f"ds_read_b128 {s.q(vCa+4*(kk&7))}, v{vCrd+(kk&3)} offset:{(kk>>2)*256}")
            for kk in range(8): crd(kk)
            for h4 in range(4):
                e(f"s_waitcnt lgkmcnt({4 if h4 < 3 else 0})")
                for kk in range(4*h4, 4*h4+4):
                    c = "0" if kk == 0 else s.q(vS)
                    e(f"v_mfma_f32_16x16x32_bf16 {s.q(vS)}, {s.q(vCa+4*(kk&7))}, {s.q(vQ+4*kk)}, {c}")
                if h4 < 2:
                    for kk in range(4*h4+8, 4*h4+12): crd(kk)
            e(f"v_max3_f32 v{vt}, v{vS}, v{vS+1}, v{vS+2}\nv_max_f32 v{vt}, v{vt}, v{vS+3}")
            s.xreduce("v_max_f32", vt, vu)
            e(f"ds_write_b32 v{vXw}, v{vt}\ns_waitcnt lgkmcnt(0)\ns_barrier")
            e(f"ds_read_b128 {s.q(vT0)}, v{vXq}\nds_read_b128 {s.q(vT1)}, v{vXp}\ns_waitcnt lgkmcnt(1)")
            e(f"""v_max3_f32 v{vt}, v{vT0}, v{vT0+1}, v{vT0+2}
            v_max3_f32 v{vt}, v{vt}, v{vT0+3}, v{vMq}
            v_mul_f32 v{vNm}, {s.sC}, v{vt}
            v_fma_f32 v{vAq}, v{vMq}, {s.sC}, -v{vNm}
            v_mov_b32 v{vMq}, v{vt}
            v_exp_f32 v{vAq}, v{vAq}""")
            for k in range(4): e(f"v_fma_f32 v{vS+k}, v{vS+k}, {s.sC}, -v{vNm}")
            for k in range(4): e(f"v_exp_f32 v{vS+k}, v{vS+k}")
            e(f"""s_waitcnt lgkmcnt(0)
            v_max3_f32 v{vt}, v{vT1}, v{vT1+1}, v{vT1+2}
            v_cvt_pk_bf16_f32 v{vT0}, v{vS}, v{vS+1}
            v_cvt_pk_bf16_f32 v{vT0+1}, v{vS+2}, v{vS+3}
            v_max3_f32 v{vt}, v{vt}, v{vT1+3}, v{vMp}
            ds_write_b64 v{vPw}, {s.q(vT0,2)}
            v_add_f32 v{vS}, v{vS}, v{vS+1}
            v_add_f32 v{vS+2}, v{vS+2}, v{vS+3}
            v_sub_f32 v{vAp}, v{vMp}, v{vt}
            v_add_f32 v{vS}, v{vS}, v{vS+2}
            v_mul_f32 v{vAp}, {s.sC}, v{vAp}
            v_fma_f32 v{vLq}, v{vLq}, v{vAq}, v{vS}
            v_exp_f32 v{vAp}, v{vAp}
            v_mov_b32 v{vMp}, v{vt}""")
            if tl == 3:
                s.xreduce("v_add_f32", vLq, vu)
                e(f"ds_write_b32 v{vXw}, v{vLq} offset:512")
            if tl > 0:
                for k in range(32): e(f"v_mul_f32 v{vO+k}, v{vAp}, v{vO+k}")
            e("s_waitcnt lgkmcnt(0)\ns_barrier")
            if s.bdet: s.st2(3*tl+2)
            for ks in range(4):
                e(f"ds_read_b128 {s.q(vP+4*ks)}, v{vPr} offset:{ks*32}")
                for mb in range(2):
                    for t in range(2):
                        e(f"ds_read_b64_tr_b16 {s.q(vCa+8*ks+4*mb+2*t,2)}, v{vTr+2*t+mb} offset:{ks*16384+t*4096}")
            for ks in range(4):
                e(f"s_waitcnt lgkmcnt({min(15, 5*(3-ks))})")
                for mb in range(2):
                    c = "0" if (tl == 0 and ks == 0) else s.q(vO+16*mb,16)
                    e(f"v_mfma_f32_32x32x16_bf16 {s.q(vO+16*mb,16)}, {s.q(vCa+8*ks+4*mb)}, {s.q(vP+4*ks)}, {c}")
            e("s_barrier")
            if tl < 2:
                e(f"s_add_u32 {sT0}, {sCb}, {(tl+2)<<16}\ns_lshl_b32 {sT2}, {s.sW}, 13")
                if tl: e(f"s_add_u32 {sT2}, {sT2}, {R1}")
                tile_dma(sT0, sT2)
            if tl == 2:
                l = s.lab("L_wo")
                e(f"s_cmp_eq_u32 {s.sW}, 7\ns_cbranch_scc1 {l}")
                w_dma(sWO2, 0)
                e(f"s_waitcnt vmcnt(9)\ns_branch {l}b\n{l}:\ns_waitcnt vmcnt(0)\n{l}b:")
            if tl == 3:
                l = s.lab("L_wo")
                e(f"s_cmp_lg_u32 {s.sW}, 7\ns_cbranch_scc1 {l}")
                w_dma(sWO2, 0)
                e(f"{l}:")
            if tl < 3:
                for k in range(4): e(f"v_xor_b32 v{vCrd+k}, 0x10000, v{vCrd+k}\nv_xor_b32 v{vTr+k}, 0x10000, v{vTr+k}")
        for tl in range(4): tile(tl)
        s.st(7)
        e(f"""ds_read_b128 {s.q(vT0)}, v{vXp} offset:512
        v_and_b32 v{vt}, 31, v1
        v_mul_u32_u24 v{vt}, 1040, v{vt}
        v_lshrrev_b32 v{vu}, 5, v1
        v_lshl_add_u32 v{vt}, v{vu}, 3, v{vt}
        s_lshl_b32 {sT2}, {s.sW}, 7
        s_add_u32 {sT2}, {sT2}, {L_OS}
        v_add_u32 v{vt}, {sT2}, v{vt}
        s_waitcnt lgkmcnt(0)
        v_add_f32 v{vT0}, v{vT0}, v{vT0+1}
        v_add_f32 v{vT0+2}, v{vT0+2}, v{vT0+3}
        v_add_f32 v{vT0}, v{vT0}, v{vT0+2}
        v_rcp_f32 v{vAp}, v{vT0}
        v_log_f32 v{vLq}, v{vT0}
        v_fma_f32 v{vLq}, v{vMp}, {s.sC}, v{vLq}
        v_min_u32 v{vLq}, -2, v{vLq}""")
        for k in range(32): e(f"v_mul_f32 v{vO+k}, v{vAp}, v{vO+k}")
        for k in range(16): e(f"v_cvt_pk_bf16_f32 v{vCa+k}, v{vO+2*k}, v{vO+2*k+1}")
        for mb in range(2):
            for q4 in range(4): e(f"ds_write_b64 v{vt}, {s.q(vCa+8*mb+2*q4,2)} offset:{mb*64+q4*16}")
        e(f"""s_mul_i32 {sT2}, {s.sW}, 4160
        s_add_u32 {sT2}, {sT2}, {L_OS}
        v_add_u32 v{vt}, {sT2}, v{vL16}
        s_lshl_b32 {sT0}, {s.sW}, 18
        s_lshl_b32 {sT1}, {sAb}, 15
        s_add_u32 {sT0}, {sT0}, {sT1}
        s_lshl_b32 {sT1}, {sSp}, 10
        s_add_u32 {sT0}, {sT0}, {sT1}
        s_add_u32 {sT0}, {sT0}, {WS_BP}
        s_waitcnt lgkmcnt(0)
        s_barrier""")
        for q_ in range(4): e(f"ds_read_b128 {s.q(vCa+4*q_)}, v{vt} offset:{q_*1040}")
        for q_ in range(4):
            e(f"s_waitcnt lgkmcnt({3-q_})\nbuffer_store_dwordx4 {s.q(vCa+4*q_)}, v{vL16}, {s.sWS}, {sT0} offen sc1")
            if q_ < 3: e(f"s_add_u32 {sT0}, {sT0}, 65536")
        e("s_waitcnt vmcnt(0)\ns_barrier")
        l = s.lab("L_ns")
        e(f"""s_cmp_lg_u32 {s.sW}, 7
        s_cbranch_scc1 {l}
        v_and_b32 v{vu}, 31, v1
        v_lshlrev_b32 v{vu}, 8, v{vu}
        s_lshl_b32 {sT0}, {sAb}, 5
        s_add_u32 {sT0}, {sT0}, {sSp}
        s_lshl_b32 {sT0}, {sT0}, 2
        s_add_u32 {sT0}, {sT0}, {WS_BST}
        buffer_store_dword v{vLq}, v{vu}, {s.sWS}, {sT0} offen sc1
        {l}:""")
        s.st(8)
        e(f"v_lshlrev_b32 v{vt}, 2, v1\ns_add_u32 {sT0}, {sHo}, {WS_BST}")
        s.spin_init()
        e(f"""v_min_u32 v{vXq}, 11, v1
        v_lshlrev_b32 v{vXq}, 7, v{vXq}
        s_lshr_b32 {sT1}, {sH}, 1
        s_mul_i32 {sT1}, {sT1}, 12
        s_add_u32 {sT1}, {sT1}, 64
        s_lshl_b32 {sT1}, {sT1}, 7
        s_add_u32 {sT1}, {sT1}, {WS_FLAG}
        L_B_ps:
        buffer_load_dword v{vS}, v{vt}, {s.sWS}, {sT0} offen sc1
        buffer_load_dword v{vu}, v{vXq}, {s.sWS}, {sT1} offen offset:64 sc1
        s_waitcnt vmcnt(0)
        v_cmp_eq_u32 vcc, -1, v{vS}
        v_cmp_ne_u32 s[54:55], v{vu}, v{vTag}
        s_or_b64 vcc, vcc, s[54:55]""")
        s.spin_retry("L_B_ps", 4)
        e(f"""v_lshlrev_b32 v{vu}, 4, v3
        v_lshl_or_b32 v{vu}, v2, 13, v{vu}
        s_lshl_b32 {sT0}, {sH}, 16
        s_lshr_b32 {sT1}, {s.sW}, 2
        s_lshl_b32 {sT2}, {sT1}, 15
        s_add_u32 {sT0}, {sT0}, {sT2}
        s_and_b32 {sT2}, {s.sW}, 3
        s_lshl_b32 {sT2}, {sT2}, 8
        s_add_u32 {sT0}, {sT0}, {sT2}
        s_add_u32 {sT0}, {sT0}, {WS_BP}
        s_add_u32 {sT3}, {sT0}, 4096""")
        for j in range(8): e(f"buffer_load_dwordx4 {s.q(vCa+4*j)}, v{vu}, {s.sWS}, {sT0 if j<4 else sT3} offen offset:{(j&3)*1024} sc1")
        e(f"""s_lshl_b32 {sT3}, {s.sW}, 7
        s_add_u32 {sT3}, {sT3}, {L_WT}
        v_lshl_add_u32 v{vXw}, v1, 1, {sT3}
        s_lshl_b32 {sTl}, {sT1}, 6
        s_add_u32 {sT3}, {sT3}, {sTl}
        v_lshl_add_u32 v{vXq}, v2, 4, {sT3}
        s_lshl_b32 {sT1}, {sT1}, 10
        s_add_u32 {sT1}, {sT1}, {sT2}
        s_add_u32 {sT1}, {sT1}, {L_OCB}
        v_lshl_add_u32 v{vXp}, v3, 4, {sT1}""")
        w_dma(sWO, L_WO)
        e(f"v_mov_b32 v{vt}, v{vS}")
        s.dppreduce("v_max_f32", vt, (8, 4, 2, 1)); s.xreduce("v_max_f32", vt, vu, (16,))
        e(f"v_sub_f32 v{vS}, v{vS}, v{vt}\nv_exp_f32 v{vS}, v{vS}\nv_mov_b32 v{vt}, v{vS}")
        s.dppreduce("v_add_f32", vt, (8, 4, 2, 1)); s.xreduce("v_add_f32", vt, vu, (16,))
        e(f"""v_rcp_f32 v{vt}, v{vt}
        v_mul_f32 v{vS}, v{vS}, v{vt}
        v_cvt_pk_bf16_f32 v{vS}, v{vS}, v{vS}
        ds_write_b16 v{vXw}, v{vS}
        s_waitcnt lgkmcnt(0)
        ds_read_b128 {s.q(vP)}, v{vXq}
        s_waitcnt vmcnt(9) lgkmcnt(0)""")
        s.vlike(vO, vP, [vCa+4*j for j in range(8)], (vT0, vT1), True)
        for k in range(4): e(f"v_cvt_pk_bf16_f32 v{vP+k}, v{vO+8*k}, v{vO+8*k+4}")
        e(f"ds_write_b128 v{vXp}, {s.q(vP)}")
        e(f"""v_bfe_u32 v{vt}, v1, 2, 1
        v_lshlrev_b32 v{vt}, 10, v{vt}
        v_lshl_add_u32 v{vt}, v2, 5, v{vt}
        v_bfe_u32 v{vu}, v1, 3, 1
        v_lshl_add_u32 v{vt}, v{vu}, 4, v{vt}
        s_lshl_b32 {sT0}, {s.sW}, 7
        s_add_u32 {sT0}, {sT0}, {L_OCB}
        v_add_u32 v{vt}, {sT0}, v{vt}
        v_lshrrev_b32 v{vXq}, 5, v1
        v_cmp_eq_u32 vcc, v{vXq}, v{vu}
        v_lshlrev_b32 v{vXq}, 8, v2
        v_and_b32 v{vu}, 7, v1
        v_lshl_add_u32 v{vXq}, v{vu}, 5, v{vXq}
        s_lshl_b32 {sT0}, {s.sW}, 10
        v_add_u32 v{vXq}, {sT0}, v{vXq}
        v_mov_b32 v{vu}, 8192
        v_cndmask_b32 v{vXq}, v{vu}, v{vXq}, vcc
        v_add_u32 v{vXq}, {L_CP}, v{vXq}
        s_waitcnt lgkmcnt(0)
        s_barrier
        ds_read_b128 {s.q(vP)}, v{vt}
        s_waitcnt lgkmcnt(0)""")
        s.vlike(vO, vP, [vUV+4*j for j in range(8)], (vT0, vT1), True)
        s.gather0(vO, vP)
        e(f"ds_write_b128 v{vXq}, {s.q(vP)}\nds_write_b128 v{vXq}, {s.q(vP+4)} offset:16\ns_waitcnt lgkmcnt(0)\ns_barrier")
        l = s.lab("L_nc")
        e(f"""s_cmp_lg_u32 {s.sW}, 0
        s_cbranch_scc1 {l}
        v_lshrrev_b32 v{vu}, 5, v1
        v_and_b32 v{vt}, 31, v1
        v_lshlrev_b32 v{vt}, 4, v{vt}
        v_lshl_add_u32 v{vt}, v{vu}, 12, v{vt}
        v_add_u32 v{vt}, {L_CP}, v{vt}""")
        for p in range(8): e(f"ds_read_b128 {s.q(vCa+4*p)}, v{vt} offset:{p*512}")
        e(f"""v_bfe_u32 v{vu}, v1, 4, 1
        v_cmp_eq_u32 vcc, 0, v{vu}
        v_cndmask_b32 v{vS}, v{vG1}, v{vG0}, vcc
        v_sub_f32 v{vS}, 1.0, v{vS}
        v_cmp_gt_u32 vcc, 32, v1
        v_cndmask_b32 v{vS}, 0, v{vS}, vcc
        v_lshlrev_b32 v{vt}, 3, v1
        v_add_u32 v{vt}, {L_CTX}, v{vt}
        s_waitcnt lgkmcnt(0)""")
        for k in range(4):
            for p in range(4): e(f"v_add_f32 v{vCa+8*p+k}, v{vCa+8*p+k}, v{vCa+8*p+4+k}")
            e(f"v_add_f32 v{vCa+k}, v{vCa+k}, v{vCa+8+k}\nv_add_f32 v{vCa+16+k}, v{vCa+16+k}, v{vCa+24+k}\nv_add_f32 v{vCa+k}, v{vCa+k}, v{vCa+16+k}")
        for k in range(4): s.xreduce("v_add_f32", vCa+k, vu, (32,))
        for k in range(4): e(f"v_mul_f32 v{vCa+k}, v{vS}, v{vCa+k}")
        e(f"""v_cvt_pk_bf16_f32 v{vCa}, v{vCa}, v{vCa+1}
        v_cvt_pk_bf16_f32 v{vCa+1}, v{vCa+2}, v{vCa+3}
        v_cndmask_b32 v{vCa}, 0, v{vCa}, vcc
        v_cndmask_b32 v{vCa+1}, 0, v{vCa+1}, vcc
        ds_write_b64 v{vt}, {s.q(vCa,2)}
        {l}:
        s_waitcnt vmcnt(0) lgkmcnt(0)
        s_barrier""")
        s.st(9)
        e(f"s_cmp_ge_u32 {s.sW}, 6\ns_cbranch_scc1 L_B_red")
        vD6, vWb, vA8, vPl = vO, vQ, vP, vCa
        e(f"""v_min_u32 v{vt}, 2, v3
        v_lshlrev_b32 v{vt}, 7, v{vt}
        v_lshl_add_u32 v{vt}, v2, 3, v{vt}
        v_add_u32 v{vt}, {L_CTX}, v{vt}
        v_lshrrev_b32 v{vu}, 2, v1
        v_mul_u32_u24 v{vu}, 1152, v{vu}
        v_and_b32 v{vXq}, 3, v1
        v_lshl_add_u32 v{vu}, v{vXq}, 3, v{vu}
        s_mul_i32 {sT0}, {s.sW}, 192
        v_add_u32 v{vu}, {sT0}, v{vu}""")
        for q_ in range(4): e(f"ds_read_b64 {s.q(vA8+2*q_,2)}, v{vt} offset:{q_*32}")
        def wtr():
            for ti in range(6):
                for q_ in range(4): e(f"ds_read_b64_tr_b16 {s.q(vWb+8*ti+2*q_,2)}, v{vu} offset:{q_*18432+ti*32}")
        def wmf(init):
            for ks in range(2):
                for ti in range(6):
                    c = "0" if (init and ks == 0) else s.q(vD6+4*ti)
                    e(f"v_mfma_f32_16x16x32_bf16 {s.q(vD6+4*ti)}, {s.q(vA8+4*ks)}, {s.q(vWb+8*ti+4*ks)}, {c}")
        wtr()
        e(f"v_add_u32 v{vu}, {L_WO}, v{vu}\ns_waitcnt lgkmcnt(0)")
        wmf(True)
        wtr()
        vPo, vPs, vGs, vOo = vXq, vXp, vXw, vPw
        e(f"""v_lshlrev_b32 v{vPo}, 8, v3
        v_lshl_add_u32 v{vPo}, v2, 4, v{vPo}
        v_lshlrev_b32 v{vPs}, 2, v3
        v_mov_b32 v{vt}, {OOB}
        v_cmp_gt_u32 s[54:55], 12, v3
        v_cndmask_b32 v{vPo}, v{vt}, v{vPo}, s[54:55]
        v_cndmask_b32 v{vPs}, v{vt}, v{vPs}, s[54:55]
        v_and_b32 v{vt}, 1, v1
        v_cmp_eq_u32 vcc, 0, v{vt}
        v_cndmask_b32 v{vGs}, v{vG1}, v{vG0}, vcc
        v_and_b32 v{vt}, 1, v2
        v_mul_u32_u24 v{vt}, 36, v{vt}
        v_lshrrev_b32 v{vu}, 1, v2
        v_add_u32 v{vt}, v{vt}, v{vu}
        v_lshlrev_b32 v{vt}, 12, v{vt}
        v_lshl_add_u32 v{vOo}, v3, 2, v{vt}
        v_mov_b32 v{vNm}, 0xff800000
        s_lshl_b32 {sT0}, {sJ}, 12
        s_add_u32 {sT0}, {sT0}, {WS_AP}
        s_mul_i32 {sT1}, {s.sW}, {6*4096}
        s_lshl_b32 {sT2}, {sJ}, 6
        s_add_u32 {sT1}, {sT1}, {sT2}
        s_add_u32 {sT1}, {sT1}, {WS_OP}
        s_add_u32 {sT2}, {sT1}, 8192
        s_add_u32 {sT3}, {sT1}, 16384
        s_waitcnt lgkmcnt(0)""")
        s.spin_init()
        if s.hop1 in ("two", "any"):
            e(f"L_B_h0:\nbuffer_load_dword v{vS}, v{vPs}, {s.sWS}, {sT0} offen offset:3072 sc1\ns_waitcnt vmcnt(0)")
            if s.hop1 == "two":
                e(f"v_cmp_eq_u32 vcc, -1, v{vS}")
            else:
                e(f"v_cmp_eq_u32 vcc, -1, v{vS}\ns_cmp_eq_u64 vcc, s[54:55]\ns_cselect_b64 vcc, vcc, 0")
            s.spin_retry("L_B_h0", 2)
        e("L_B_h1:")
        e(f"buffer_load_dword v{vS}, v{vPs}, {s.sWS}, {sT0} offen offset:3072 sc1")
        for q_ in range(4): e(f"buffer_load_dwordx4 {s.q(vPl+4*q_)}, v{vPo}, {s.sWS}, {sT0} offen offset:{q_*64} sc1")
        e("s_waitcnt vmcnt(0)")
        s.sentinel_check([vS] + list(range(vPl, vPl+16)), vu)
        s.spin_retry("L_B_h1", 0)
        s.st(10)
        e(f"v_cndmask_b32 v{vS}, v{vNm}, v{vS}, s[54:55]")
        e(f"v_max_f32_dpp v{vt}, v{vS}, v{vS} row_ror:2 row_mask:0xf bank_mask:0xf")
        s.dppreduce("v_max_f32", vt, (4, 8))
        e(f"v_sub_f32 v{vS}, v{vS}, v{vt}\nv_exp_f32 v{vS}, v{vS}")
        e(f"v_add_f32_dpp v{vt}, v{vS}, v{vS} row_ror:2 row_mask:0xf bank_mask:0xf")
        s.dppreduce("v_add_f32", vt, (4, 8))
        e(f"v_rcp_f32 v{vt}, v{vt}\nv_mul_f32 v{vS}, v{vS}, v{vGs}\nv_mul_f32 v{vS}, v{vS}, v{vt}")
        for k in range(16): e(f"v_mul_f32 v{vPl+k}, v{vS}, v{vPl+k}")
        for k in range(8): e(f"v_cvt_pk_bf16_f32 v{vA8+k}, v{vPl+2*k}, v{vPl+2*k+1}")
        wmf(False)
        for ti in range(6): e(f"v_add_f32 v{vD6+4*ti}, v{vD6+4*ti}, v{vD6+4*ti+2}\nv_add_f32 v{vD6+4*ti+1}, v{vD6+4*ti+1}, v{vD6+4*ti+3}")
        for u in range(3):
            a = vD6 + 8*u
            e(f"v_permlane32_swap_b32 v{a}, v{a+4}\nv_permlane32_swap_b32 v{a+1}, v{a+5}")
        for u in range(3):
            a = vD6 + 8*u
            e(f"v_add_f32 v{a}, v{a}, v{a+4}\nv_add_f32 v{a+1}, v{a+1}, v{a+5}")
        for u in range(3):
            a = vD6 + 8*u
            e(f"v_permlane16_swap_b32 v{a}, v{a+1}")
        for u in range(3):
            a = vD6 + 8*u
            e(f"v_add_f32 v{a}, v{a}, v{a+1}\nv_min_u32 v{a}, -2, v{a}")
            e(f"buffer_store_dword v{a}, v{vOo}, {s.sWS}, {[sT1,sT2,sT3][u]} offen sc1")
        e("s_branch L_B_done")
        e("L_B_red:")
        e(f"""s_sub_u32 {sT0}, {s.sW}, 6
        s_lshl_b32 {sT0}, {sT0}, 6
        s_add_u32 {sT0}, {sT0}, {sJ}
        s_cmp_ge_u32 {sT0}, 72
        s_cbranch_scc1 L_B_done
        s_lshl_b32 {sT1}, {sT0}, 12
        s_add_u32 {sT1}, {sT1}, {WS_OP}
        s_lshl_b32 {sT2}, {sT0}, 5
        v_and_b32 v{vt}, 3, v1
        v_lshlrev_b32 v{vt}, 2, v{vt}
        v_and_b32 v{vu}, 1, v2
        v_lshl_add_u32 v{vt}, v{vu}, 1, v{vt}
        v_lshrrev_b32 v{vu}, 1, v2
        v_add_lshl_u32 v{vXq}, v{vt}, v{vu}, 1""")
        s.spin_init()
        if s.hop1 in ("two", "any"):
            e(f"s_lshl_b32 {sT3}, {sJ}, 6\ns_add_u32 {sT3}, {sT3}, {sT1}\nv_mov_b32 v{vt}, 0")
            e(f"L_B_r0:\nbuffer_load_dword v{vS}, v{vt}, {s.sWS}, {sT3} offen sc1\ns_waitcnt vmcnt(0)\nv_cmp_eq_u32 vcc, -1, v{vS}")
            s.spin_retry("L_B_r0", 1)
        e("L_B_h2:")
        for q_ in range(4): e(f"buffer_load_dwordx4 {s.q(vCa+4*q_)}, v{vL16}, {s.sWS}, {sT1} offen offset:{q_*1024} sc1")
        e("s_waitcnt vmcnt(0)")
        s.sentinel_check(range(vCa, vCa+16), vu)
        s.spin_retry("L_B_h2", 0)
        s.st(10)
        for k in range(4): e(f"v_add_f32 v{vCa+k}, v{vCa+k}, v{vCa+4+k}\nv_add_f32 v{vCa+8+k}, v{vCa+8+k}, v{vCa+12+k}")
        for k in range(4): e(f"v_add_f32 v{vCa+k}, v{vCa+k}, v{vCa+8+k}")
        e(f"""v_permlane32_swap_b32 v{vCa}, v{vCa+1}
        v_permlane32_swap_b32 v{vCa+2}, v{vCa+3}
        v_add_f32 v{vCa}, v{vCa}, v{vCa+1}
        v_add_f32 v{vCa+2}, v{vCa+2}, v{vCa+3}
        v_permlane16_swap_b32 v{vCa}, v{vCa+2}
        v_add_f32 v{vCa}, v{vCa}, v{vCa+2}""")
        s.dppreduce("v_add_f32", vCa, (4, 8))
        e(f"""v_cvt_pk_bf16_f32 v{vCa}, v{vCa}, v{vCa}
        buffer_store_short v{vCa}, v{vXq}, {sOUT}, {sT2} offen
        s_cmp_lg_u32 {sT0}, 0
        s_cbranch_scc1 L_B_done
        v_mov_b32 v{vt}, 0
        s_mov_b64 exec, 1
        buffer_store_dword v{vTag}, v{vt}, {s.sWS}, 0 offen sc1
        s_mov_b64 exec, -1""")
        e("L_B_done:")
        s.st(11)
        s.stamps_out(12)
        e("L_end:\ns_endpgm")

    def text(s):
        s.entry(); s.roleA(); s.roleB()
        lines = fix(s.L)
        body = "\n".join(("" if l.endswith(":") else "    ") + l for l in lines)
        body += "\nL_codeend:\n"
        return body

HEADER = """; Fused decode step: out = g * GQA(x) + (1 - g) * latent-KV attention(x), one persistent launch.
"""
def make(path, **kw):
    g = G(**kw)
    body = g.text()
    src = wrap(body, 256, 512, LDS_BYTES, vgpr=256, sgpr=102, accum=256, header=HEADER)
    src = src.replace("  .amdhsa_system_sgpr_workgroup_id_x 1\n", "  .amdhsa_system_sgpr_workgroup_id_x 1\n  .amdhsa_float_denorm_mode_32 3\n")
    open(path, "w").write(src)
    return build(path)

if __name__ == "__main__":
    kw = json.loads(sys.argv[2]) if len(sys.argv) > 2 else {}
    co = make(sys.argv[1], **kw)
    import subprocess
    r = subprocess.run(["llvm-readelf", "-S", co], capture_output=True, text=True).stdout
    print([l for l in r.splitlines() if ".text" in l])
```

```python
import sys, json, math, struct
from asmlib import *
from hazard import fix

def f2u(f): return struct.unpack("<I", struct.pack("<f", f))[0]

WS_E, WS_FLAG, WS_QA, WS_QB, WS_QABS, WS_BST, WS_AP, WS_OP, WS_BP, WS_STAMP = \
    0x0, 0x1000, 0x10000, 0x40000, 0x70000, 0x80000, 0x90000, 0xD0000, 0x200000, 0x400000
OOB = 0x40000000
X = 131072
L_PQ, L_QOP, L_QBOP, L_CNT = X, X + 12288, X + 12800, X + 13312
L_OC, L_MS = X + 16384, X + 24576
L_QS = X + 28672
R1 = 65536
L_PB = X + 16384; L_MX = L_PB + 8704; L_LS = L_MX + 512
L_GT = L_MX + 1024
L_OS = 98304
L_WT = X + 16384; L_OCB = L_WT + 1024; L_CP = L_WT + 4096; L_CTX = L_WT + 12544
L_WO = 73728
LDS_BYTES = 163840

class G:
    def __init__(s, W=(4,4,5,5,6), NPRE=4, WS=12, stamp=False, hop1="full", mimic=False, rot=0, spin=1 << 17, sleep=1, pf=True, wqpol='nt', bdet=False, BW=(8,8,8), early=False, NB=10, W0=2, uvs=4, noB=False, CK=2, t3s=True, dbg='', wsoff=0, qsl=1):
        s.L = []; s.W = list(W) if not isinstance(W, int) else [W]*5; s.NPRE = NPRE; s.WS = WS; s.stamp = stamp; s.hop1 = hop1; s.mimic = mimic; s.rot = rot
        s.spin = spin; s.sleep = sleep; s.nlab = 0; s.pf = pf; s.wqpol = wqpol; s.bdet = bdet; s.BW = BW; s.early = early; s.NB = NB; s.W0 = W0; s.uvs = uvs; s.noB = noB; s.CK = CK; s.t3s = t3s; s.dbg = dbg; s.wsoff = wsoff; s.qsl = qsl; s.inB = False
    def e(s, t):
        for x in t.split("\n"):
            x = x.strip()
            if x: s.L.append(x)
    def lab(s, p="L"):
        s.nlab += 1; return f"{p}_{s.nlab}"
    def st2(s, k):
        s.e(f"s_memrealtime s[{76+2*k}:{77+2*k}]")
    def st(s, k):
        if s.stamp and not (s.bdet and s.inB): s.e(f"s_memrealtime s[{76+2*k}:{77+2*k}]")
    sX, sWS = "s[4:7]", "s[8:11]"
    sW, sLO, sHI, sC, sCnt = "s44", "s45", "s46", "s47", "s48"
    def q(s, r, n=4): return f"v[{r}:{r+n-1}]"

    def spin_init(s): s.e(f"s_mov_b32 {s.sCnt}, {s.spin}")
    def spin_retry(s, label, sleep=None):
        if "nodep" in getattr(s, "dbg", "") and label not in ("L_A_wc", "L_A_wc2", "L_A_wc3", "L_A_wq2", "L_A_ws"): return
        ok = s.lab("L_ok")
        s.e(f"s_cbranch_vccz {ok}")
        s.e(f"s_sub_u32 {s.sCnt}, {s.sCnt}, 1")
        s.e("s_cbranch_scc1 L_end")
        sl = s.sleep if sleep is None else sleep
        if sl: s.e(f"s_sleep {sl}")
        s.e(f"s_branch {label}")
        s.e(f"{ok}:")
    def sentinel_check(s, rs, t):
        rs = list(rs)
        if len(rs) == 1:
            s.e(f"v_cmp_eq_u32 vcc, -1, v{rs[0]}"); return
        if len(rs) == 2: s.e(f"v_max_u32 v{t}, v{rs[0]}, v{rs[1]}"); rs = []
        else: s.e(f"v_max3_u32 v{t}, v{rs[0]}, v{rs[1]}, v{rs[2]}"); rs = rs[3:]
        while len(rs) >= 2: s.e(f"v_max3_u32 v{t}, v{t}, v{rs[0]}, v{rs[1]}"); rs = rs[2:]
        if rs: s.e(f"v_max_u32 v{t}, v{t}, v{rs[0]}")
        s.e(f"v_cmp_eq_u32 vcc, -1, v{t}")
    def xreduce(s, op, v, t, which=(32, 16)):
        for k in which:
            s.e(f"v_mov_b32 v{t}, v{v}")
            s.e(f"v_permlane{k}_swap_b32 v{t}, v{v}")
            s.e(f"{op} v{v}, v{t}, v{v}")
    def dppreduce(s, op, v, rors):
        for r in rors: s.e(f"{op}_dpp v{v}, v{v}, v{v} row_ror:{r} row_mask:0xf bank_mask:0xf")
    def vlike(s, acc, A, rows, T, init):
        nd = len(rows) // 2
        mf = "v_mfma_f32_16x16x32_bf16" if nd == 4 else "v_mfma_f32_16x16x16_bf16"
        def perms(e_):
            sel = s.sHI if e_ & 1 else s.sLO
            for t in range(nd):
                s.e(f"v_perm_b32 v{T[e_&1]+t}, v{rows[2*t+1]+(e_>>1)}, v{rows[2*t]+(e_>>1)}, {sel}")
        perms(0)
        for e_ in range(8):
            if e_ < 7: perms(e_ + 1)
            c = "0" if init else s.q(acc + 4 * e_)
            s.e(f"{mf} {s.q(acc+4*e_)}, {s.q(A, nd)}, {s.q(T[e_&1], nd)}, {c}")
    def sum6(s, r):
        for k in range(4):
            s.e(f"v_add_f32 v{r+k}, v{r+k}, v{r+4+k}\nv_add_f32 v{r+8+k}, v{r+8+k}, v{r+12+k}\nv_add_f32 v{r+16+k}, v{r+16+k}, v{r+20+k}")
        for k in range(4):
            s.e(f"v_add_f32 v{r+k}, v{r+k}, v{r+8+k}\nv_add_f32 v{r+k}, v{r+k}, v{r+16+k}")
    def gather0(s, acc, dst):
        for e_ in range(8): s.e(f"v_mov_b32 v{dst+e_}, v{acc+4*e_}")
    def srd(s, base, slot, size):
        s.e(f"s_load_dwordx2 s[{base}:{base+1}], s[0:1], {slot*8}")
        s.post.append(f"s_mov_b32 s{base+2}, {size}"); s.post.append(f"s_mov_b32 s{base+3}, 0x20000")
    def consts(s):
        s.e(f"s_mov_b32 {s.sLO}, 0x05040100\ns_mov_b32 {s.sHI}, 0x07060302")
        s.e(f"s_mov_b32 {s.sC}, {hex(f2u(128**-0.5*math.log2(math.e)))}")
    def code_prefetch(s, vt, vd):
        if not s.pf: return 0
        s.e("s_getpc_b64 s[70:71]\nL_pc_%d:" % s.nlab); l = "L_pc_%d" % s.nlab; s.nlab += 1
        s.e(f"s_lshr_b32 s72, s2, 3\ns_and_b32 s72, s72, 7\ns_mul_i32 s72, s72, {s.pfn*1024}")
        s.e(f"s_sub_u32 s70, s70, {l}-{KNAME}\ns_subb_u32 s71, s71, 0")
        s.e(f"v_lshl_add_u32 v{vt}, v1, 4, s72")
        n = s.pfn
        for k in range(n):
            s.e(f"v_min_u32 v{vd+4}, L_codeend-{KNAME}-16, v{vt}")
            s.e(f"global_load_dwordx4 {s.q(vd)}, v{vd+4}, s[70:71]")
            if k + 1 < n: s.e(f"v_add_u32 v{vt}, 1024, v{vt}")
        return n
    pfn = 4
    def stamps_out(s, n):
        if not s.stamp: return
        if s.stamp == "dbg":
            ks = [2, 5, 7, 8, 10] if not s.inB else [4, 6, 7, 8, 9, 10, 11]
            base = 1 if not s.inB else 8
            s.e("s_load_dwordx2 s[70:71], s[0:1], 104\ns_waitcnt lgkmcnt(0)\ns_not_b32 s76, s76\nv_mov_b32 v2, 0\nv_mov_b32 v3, 0")
            s.e("v_writelane_b32 v2, s76, 0")
            for i, k in enumerate(ks): s.e(f"v_writelane_b32 v2, s{76+2*k}, {i+1}\ns_mov_b32 s72, {4*(base+i)}\nv_writelane_b32 v3, s72, {i+1}")
            s.e(f"s_mov_b64 exec, {(1 << (len(ks)+1)) - 1}\nglobal_atomic_umax v3, v2, s[70:71] sc1\ns_waitcnt vmcnt(0)")
            return
        s.e("s_waitcnt lgkmcnt(0)")
        s.e("s_getreg_b32 s74, hwreg(HW_REG_XCC_ID)")
        s.e(f"v_mov_b32 v2, 0")
        for k in range(12): s.e(f"v_writelane_b32 v2, s{76+2*k}, {k}")
        s.e("v_writelane_b32 v2, s74, 12")
        s.e(f"s_lshl_b32 s74, s2, 3\ns_add_u32 s74, s74, {s.sW}\ns_lshl_b32 s74, s74, 6\ns_add_u32 s74, s74, {WS_STAMP}")
        s.e("v_lshlrev_b32 v3, 2, v1\ns_mov_b64 exec, 0xffff")
        s.e(f"buffer_store_dword v2, v3, {s.sWS}, s74 offen\ns_waitcnt vmcnt(0)")

    def entry(s):
        e = s.e
        e("s_cmp_ge_u32 s2, 256\ns_cbranch_scc1 L_end")
        s.post = []
        s.srd(4, 0, 2304); s.srd(8, 14, 0x10000000 - s.wsoff)
        s.common_post = list(s.post)
        if s.stamp:
            for k in range(12): e(f"s_mov_b32 s{76+2*k}, 0")
        s.st(0)
        e("s_cmp_lt_u32 s2, 64\ns_cbranch_scc1 L_B")

    def wsfix(s):
        if s.wsoff: s.e(f"s_add_u32 s8, s8, {s.wsoff}\ns_addc_u32 s9, s9, 0")
    def lane_common(s):
        s.e(f"v_lshrrev_b32 v2, 6, v0\nv_and_b32 v1, 63, v0\nv_readfirstlane_b32 {s.sW}, v2")
        s.e("v_lshrrev_b32 v2, 4, v1\nv_and_b32 v3, 15, v1")

    def roleA(s):
        e = s.e; W = s.W
        sWQ, sK, sV = "s[12:15]", "s[16:19]", "s[20:23]"
        s.post = list(s.common_post)
        s.srd(12, 3, 4718592); s.srd(24, 7, 4718592); s.srd(16, 1, 0x4000000); s.srd(28, 8, 4194304); s.srd(20, 2, 0x4000000)
        for p in s.post: e(p)
        s.lane_common(); s.consts()
        sHkv, sB, sS, sMM, sKb, sLb, sH6, sT0, sT1, sT2, sTag = "s57","s58","s59","s60","s61","s62","s63","s49","s50","s51","s64"
        sHd, sDn = "s52", "s42"
        e(f"""s_sub_u32 {sT0}, s2, 64
        s_and_b32 {sHkv}, {sT0}, 7
        s_lshr_b32 {sMM}, {sT0}, 3
        s_lshl_b32 {sHkv}, {sHkv}, 1
        s_cmp_ge_u32 {sMM}, 12
        s_cselect_b32 {sT1}, 1, 0
        s_cselect_b32 {sT2}, 12, 0
        s_add_u32 {sHkv}, {sHkv}, {sT1}
        s_sub_u32 {sMM}, {sMM}, {sT2}
        s_cmp_ge_u32 {sMM}, 6
        s_cselect_b32 {sB}, 1, 0
        s_cselect_b32 {sT2}, 6, 0
        s_sub_u32 {sS}, {sMM}, {sT2}
        s_mul_i32 {sT0}, {sS}, 42
        s_cmp_eq_u32 {sS}, 5
        s_cselect_b32 {sT1}, 2, 0
        s_add_u32 {sT0}, {sT0}, {sT1}
        s_add_u32 {sT0}, {sT0}, {s.sW}
        s_lshl_b32 {sT0}, {sT0}, 13
        s_lshl_b32 {sKb}, {sB}, 4
        s_add_u32 {sKb}, {sKb}, {sHkv}
        s_lshl_b32 {sKb}, {sKb}, 21
        s_add_u32 {sKb}, {sKb}, {sT0}
        s_cmp_lt_u32 {sS}, 4
        s_cselect_b32 {sT0}, 2, 4
        s_cmp_lt_u32 {s.sW}, {sT0}
        s_cselect_b32 {sH6}, 1, 0
        s_lshl_b32 {sLb}, {s.sW}, 14
        s_lshl_b32 {sHd}, {sHkv}, 1
        s_add_u32 {sHd}, {sHd}, {sB}""")
        vUK, vQB, vUa, vFa = 216, 232, 240, 248
        vKoff, vVoff, vKrd = 4, 8, 12
        vM, vL, vAl, vNm, vA2, vt, vu = 9, 10, 11, 16, 17, 18, 19
        vQ, vS, vP, vT0, vT1 = 20, 36, 44, 48, 52
        vKa, vAcc, vV = 56, 88, 120
        vWoff, vXoff, vXa, vQ2 = 16, 17, 44, 184
        e(f"""v_lshlrev_b32 v{vVoff}, 4, v1
        v_lshlrev_b32 v{vt}, 2, v2
        v_xor_b32 v{vt}, v{vt}, v3
        v_lshlrev_b32 v{vt}, 4, v{vt}
        v_lshl_or_b32 v{vKoff}, v2, 8, v{vt}
        v_xor_b32 v{vKoff+1}, 16, v{vKoff}
        v_xor_b32 v{vKoff+2}, 32, v{vKoff}
        v_xor_b32 v{vKoff+3}, 48, v{vKoff}
        v_lshlrev_b32 v{vWoff}, 4, v3
        v_lshl_or_b32 v{vWoff}, v2, 15, v{vWoff}
        v_bfe_u32 v{vXoff}, v1, 2, 1
        v_mul_u32_u24 v{vXoff}, 1152, v{vXoff}
        v_lshl_add_u32 v{vXoff}, v2, 3, v{vXoff}
        v_mov_b32 v{vFa}, {L_CNT}
        v_mov_b32 v{vKa+1}, 0
        s_mov_b32 {sDn}, 0""")
        def kload(i, j, w=None):
            if j % 4 == 0:
                e(f"s_add_u32 {sT0}, {sKb}, {i*65536 + (j>>2)*4096}\ns_add_u32 m0, {sLb}, {(i&1)*8192 + (j>>2)*4096}")
            if w is not None: e(f"s_waitcnt vmcnt({w-1})")
            e(f"buffer_load_dwordx4 v{vKoff+(j&3)}, {sK}, {sT0} offen offset:{(j&3)*1024} nt lds")
        def vload(i, j, w=None):
            if j % 4 == 0: e(f"s_add_u32 {sT1}, {sKb}, {i*65536 + (j>>2)*4096}")
            if w is not None: e(f"s_waitcnt vmcnt({w-1})")
            e(f"buffer_load_dwordx4 {s.q(vV+(i&1)*32+4*j)}, v{vVoff}, {sV}, {sT1} offen offset:{(j&3)*1024} nt")
        NPRE = s.NPRE; NB = s.NB
        seq = [(kload,0,j) for j in range(8)] + [(vload,0,j) for j in range(8)] + [(kload,1,j) for j in range(8)] + [(vload,1,j) for j in range(8)]
        def issue(a, b):
            for n_ in range(a, b):
                fn, i, j = seq[n_]
                if n_ == a and j % 4:
                    if fn is kload: e(f"s_add_u32 {sT0}, {sKb}, {i*65536 + (j>>2)*4096}\ns_add_u32 m0, {sLb}, {(i&1)*8192 + (j>>2)*4096}")
                    else: e(f"s_add_u32 {sT1}, {sKb}, {i*65536 + (j>>2)*4096}")
                fn(i, j, s.W0 if n_ < NB else W[i])
                if "prog2" in s.dbg and n_ in (7, 15, 23): s.st({7: 1, 15: 3, 23: 2}[n_])
                if n_ >= 7 and (n_ - 7) % s.CK == 0 and n_ < 31 and "nock" not in s.dbg:
                    l = s.lab("L_ck")
                    e(f"s_cmp_lg_u32 {sDn}, 0\ns_cbranch_scc1 {l}\ns_call_b64 s[40:41], L_A_chk\n{l}:")
        def ukload():
            e(f"""s_lshl_b32 {sT2}, {sS}, 3
            s_add_u32 {sT2}, {sT2}, {s.sW}
            s_lshl_b32 {sT2}, {sT2}, 17
            s_lshl_b32 {sT1}, {sHd}, 8
            s_add_u32 {sT2}, {sT2}, {sT1}""")
            for j in range(4):
                e(f"buffer_load_dwordx4 {s.q(vUK+4*j)}, v{vWoff}, s[28:31], {sT2} offen nt")
                if j < 3: e(f"s_add_u32 {sT2}, {sT2}, 8192")
        e(f"s_cmp_ge_u32 {s.sW}, 6\ns_cbranch_scc1 L_A_w67")
        e(f"""s_mul_i32 {sT0}, {sS}, 96
        s_lshl_b32 {sT1}, {s.sW}, 4
        s_add_u32 {sT0}, {sT0}, {sT1}
        s_lshl_b32 {sT1}, {sT0}, 1
        s_lshl_b32 {sT0}, {sT0}, 13
        s_lshl_b32 {sT2}, {sHd}, 8
        s_add_u32 {sT2}, {sT2}, {sT0}
        s_waitcnt lgkmcnt(0)""")
        s.wsfix()
        e(f"s_setprio 3\nbuffer_load_dwordx2 {s.q(vXa,2)}, v{vXoff}, {s.sX}, {sT1} offen")
        for jj in range(4):
            e(f"buffer_load_dwordx4 {s.q(vKa+4*jj)}, v{vWoff}, s[24:27], {sT2} offen nt")
            e(f"s_add_u32 {sT2}, {sT2}, {8192 if jj < 3 else (-3*8192) & 0xffffffff}")
        e("s_setprio 0\ns_barrier")
        for jj in range(4):
            e(f"buffer_load_dwordx4 {s.q(vKa+16+4*jj)}, v{vWoff}, {sWQ}, {sT2} offen nt")
            if jj < 3: e(f"s_add_u32 {sT2}, {sT2}, 8192")
        s.st(1)
        e(f"v_bfe_u32 v{vt}, v1, 4, 1\nv_lshlrev_b32 v{vt}, 9, v{vt}\nv_lshl_add_u32 v{vt}, v3, 5, v{vt}")
        e(f"s_lshl_b32 {sT2}, {s.sW}, 10\ns_add_u32 {sT2}, {sT2}, {L_PQ}\nv_add_u32 v{vt}, {sT2}, v{vt}\nv_mov_b32 v{vu}, 1")
        e("s_waitcnt vmcnt(4)")
        s.vlike(vAcc, vXa, [vKa+4*j for j in range(4)], (vT0, vT1), True)
        s.gather0(vAcc, vS)
        e(f"ds_write_b128 v{vt}, {s.q(vS)} offset:6144\nds_write_b128 v{vt}, {s.q(vS+4)} offset:6160\ns_waitcnt lgkmcnt(0)")
        e(f"s_mov_b64 exec, 1\nds_add_u32 v{vFa}, v{vu}\ns_mov_b64 exec, -1")
        s.st(3)
        ukload()
        for j in range(NPRE): kload(0, j)
        e(f"s_waitcnt vmcnt({4+NPRE})")
        s.vlike(vAcc, vXa, [vKa+16+4*j for j in range(4)], (vT0, vT1), True)
        s.gather0(vAcc, vS)
        e(f"ds_write_b128 v{vt}, {s.q(vS)}\nds_write_b128 v{vt}, {s.q(vS+4)} offset:16\ns_waitcnt lgkmcnt(0)")
        e(f"s_mov_b64 exec, 1\nds_add_u32 v{vFa}, v{vu} offset:8\ns_mov_b64 exec, -1")
        e("s_branch L_A_b1")
        e("L_A_w67:")
        e("s_waitcnt lgkmcnt(0)"); s.wsfix(); e(f"s_cmp_eq_u32 {s.sW}, 7\ns_cbranch_scc1 L_A_svc")
        e("s_barrier")
        s.code_prefetch(vt, vKa)
        ukload()
        for j in range(NPRE): kload(0, j)
        e("L_A_b1:")
        s.st(2)
        issue(NPRE, 32)
        s.st(5)
        s.spin_init()
        e(f"""L_A_wq:
        s_cmp_lg_u32 {sDn}, 0
        s_cbranch_scc1 L_A_wq2
        s_call_b64 s[40:41], L_A_chk
        s_sub_u32 {s.sCnt}, {s.sCnt}, 1
        s_cbranch_scc1 L_end
        s_branch L_A_wq
        L_A_wq2:
        ds_read_b32 v{vt}, v{vFa} offset:12
        s_waitcnt lgkmcnt(0)
        v_cmp_eq_u32 vcc, 0, v{vt}""")
        s.spin_retry("L_A_wq2", 1)
        e("s_branch L_A_main")
        e("L_A_svc:\ns_setprio 3")
        vE, vZ, vSn = vKa, vKa+1, vKa+4
        sQA, sAP = "s65", "s66"
        e(f"""buffer_load_dword v{vE}, v{vZ}, {s.sWS}, 0 offen sc1
        ds_write2_b32 v{vFa}, v{vZ}, v{vZ} offset0:0 offset1:1
        ds_write2_b32 v{vFa}, v{vZ}, v{vZ} offset0:2 offset1:3
        v_mov_b32 v{vSn}, -1
        v_mov_b32 v{vSn+1}, -1
        v_mov_b32 v{vSn+2}, -1
        v_mov_b32 v{vSn+3}, -1
        s_mul_i32 {sT0}, {sHkv}, 12
        s_add_u32 {sT1}, {sT0}, {sMM}
        s_lshl_b32 {sQA}, {sT1}, 10
        s_add_u32 {sQA}, {sQA}, {WS_QA}
        buffer_store_dwordx4 {s.q(vSn)}, v{vVoff}, {s.sWS}, {sQA} offen sc1
        s_add_u32 s75, {sQA}, {WS_QB-WS_QA}
        buffer_store_dwordx4 {s.q(vSn)}, v{vVoff}, {s.sWS}, s75 offen sc1
        v_bfe_u32 v{vt}, v1, 4, 1
        v_lshlrev_b32 v{vt}, 15, v{vt}
        v_lshl_add_u32 v{vt}, v3, 4, v{vt}
        s_lshl_b32 {sT2}, {sHd}, 2
        s_add_u32 {sT2}, {sT2}, {sS}
        s_lshl_b32 {sT2}, {sT2}, 8
        s_add_u32 {sT2}, {sT2}, {WS_QABS}
        s_cmp_ge_u32 {sS}, 4
        s_cbranch_scc1 L_A_nc
        s_mov_b32 exec_hi, 0
        buffer_store_dwordx4 {s.q(vSn)}, v{vt}, {s.sWS}, {sT2} offen sc1
        s_mov_b64 exec, -1
        L_A_nc:
        s_add_u32 {sT1}, {sT1}, 64
        s_lshl_b32 {sT1}, {sT1}, 7
        s_add_u32 {sT1}, {sT1}, {WS_FLAG}
        s_mov_b32 s67, 0x9e3779b1
        s_waitcnt lgkmcnt(0)
        s_barrier
        s_waitcnt vmcnt(0)
        v_mul_lo_u32 v{vE}, v{vE}, s67
        v_add_u32 v{vE}, 0x7f4a7c15, v{vE}
        s_mov_b64 exec, 1
        buffer_store_dword v{vE}, v{vZ}, {s.sWS}, {sT1} offen sc1
        s_mov_b64 exec, -1""")
        s.st(1)
        sF, sP0, sP1 = "s67", "s69", "s73"
        e(f"""v_min_u32 v{vt}, 11, v1
        v_lshlrev_b32 v{vt}, 7, v{vt}
        s_add_u32 {sF}, {sT0}, 64
        s_lshl_b32 {sF}, {sF}, 7
        s_add_u32 {sF}, {sF}, {WS_FLAG}
        s_lshl_b32 {sP0}, {sT0}, 10
        s_lshl_b32 {sT2}, {sB}, 9
        s_add_u32 {sP0}, {sP0}, {sT2}
        s_add_u32 {sP0}, {sP0}, {WS_QA}
        s_add_u32 {sP1}, {sP0}, 4096
        s_mul_i32 s53, {sHd}, 6144
        s_add_u32 s53, s53, {WS_QB}
        s_add_u32 s54, s53, 4096""")
        e(f"buffer_load_dword v{vA2}, v{vt}, {s.sWS}, {sF} offen sc1")
        s.spin_init()
        e(f"L_A_wc:\nds_read_b32 v{vu}, v{vFa}\ns_waitcnt lgkmcnt(0)\nv_cmp_ne_u32 vcc, 6, v{vu}")
        s.spin_retry("L_A_wc", 0)
        s.st(2)
        vR = vAcc
        e(f"v_add_u32 v{vM}, {L_PQ}, v{vVoff}")
        for t in range(6): e(f"ds_read_b128 {s.q(vQ2+4*t)}, v{vM} offset:{6144+t*1024}")
        sum6 = lambda r=vR: s.sum6(r)
        e("s_waitcnt lgkmcnt(0)")
        sum6(vQ2)
        for k in range(4): e(f"v_min_u32 v{vQ2+k}, -2, v{vQ2+k}")
        e(f"buffer_store_dwordx4 {s.q(vQ2)}, v{vVoff}, {s.sWS}, s75 offen sc1")
        e(f"s_waitcnt vmcnt(1)\ns_branch L_A_vc")
        e(f"L_A_vf:\nbuffer_load_dword v{vA2}, v{vt}, {s.sWS}, {sF} offen sc1\ns_waitcnt vmcnt(0)\nL_A_vc:\nv_cmp_ne_u32 vcc, v{vA2}, v{vE}")
        s.spin_retry("L_A_vf")
        s.st(3)
        def qbp():
            for t in range(6): e(f"buffer_load_dwordx4 {s.q(vQ2+4*t)}, v{vVoff}, {s.sWS}, {'s53' if t<4 else 's54'} offen offset:{(t&3)*1024} sc1")
        def qap():
            for t in range(6): e(f"buffer_load_dwordx4 {s.q(vR+4*t)}, v{vL}, {s.sWS}, {sP0 if t<4 else sP1} offen offset:{(t&3)*1024} sc1")
        qbp()
        ukload()
        e(f"L_A_wc2:\nds_read_b32 v{vu}, v{vFa} offset:8\ns_waitcnt lgkmcnt(0)\nv_cmp_ne_u32 vcc, 6, v{vu}")
        s.spin_retry("L_A_wc2", 0)
        for t in range(6): e(f"ds_read_b128 {s.q(vR+4*t)}, v{vM} offset:{t*1024}")
        e(f"""v_lshrrev_b32 v{vL}, 5, v1
        v_mul_u32_u24 v{vL}, 6144, v{vL}
        v_and_b32 v{vu}, 31, v1
        v_lshl_add_u32 v{vL}, v{vu}, 4, v{vL}
        v_lshlrev_b32 v{vM}, 3, v1
        v_add_u32 v{vM}, {L_QOP}, v{vM}
        s_waitcnt lgkmcnt(0)""")
        sum6()
        for k in range(4): e(f"v_min_u32 v{vR+k}, -2, v{vR+k}")
        e(f"buffer_store_dwordx4 {s.q(vR)}, v{vVoff}, {s.sWS}, {sQA} offen sc1")
        e("s_waitcnt vmcnt(5)\ns_branch L_A_bc\nL_A_bq:")
        qbp()
        e("s_waitcnt vmcnt(0)\nL_A_bc:")
        s.sentinel_check(range(vQ2, vQ2+24), vu)
        s.spin_retry("L_A_bq")
        s.st(4)
        sum6(vQ2)
        e(f"""v_cvt_pk_bf16_f32 v{vQ2}, v{vQ2}, v{vQ2+1}
        v_cvt_pk_bf16_f32 v{vQ2+1}, v{vQ2+2}, v{vQ2+3}
        ds_write_b64 v{vM}, {s.q(vQ2,2)} offset:512
        v_mov_b32 v{vt}, 1
        s_waitcnt lgkmcnt(0)
        ds_write_b32 v{vFa}, v{vt} offset:4""")
        qap()
        for j in range(2): kload(0, j)
        e("s_call_b64 s[40:41], L_A_qfn")
        for j in range(2, 8): kload(0, j)
        e("s_waitcnt vmcnt(8)\ns_branch L_A_pc\nL_A_pq:")
        qap()
        e("s_waitcnt vmcnt(0)\nL_A_pc:")
        s.sentinel_check(range(vR, vR+24), vu)
        s.spin_retry("L_A_pq")
        s.st(5)
        sum6()
        e(f"""v_cvt_pk_bf16_f32 v{vR}, v{vR}, v{vR+1}
        v_cvt_pk_bf16_f32 v{vR+1}, v{vR+2}, v{vR+3}
        ds_write_b64 v{vM}, {s.q(vR,2)}
        v_mov_b32 v{vt}, 1
        s_waitcnt lgkmcnt(0)
        ds_write_b32 v{vFa}, v{vt} offset:12""")
        for j in range(8): vload(0, j, s.WS)
        for j in range(8): kload(1, j, s.WS)
        e(f"""s_setprio 0
        s_lshl_b32 s75, {sMM}, 7
        s_add_u32 s75, s75, {sF}
        v_lshlrev_b32 v{vt}, 12, v2
        v_lshl_add_u32 v{vu}, v3, 4, v{vt}
        s_lshl_b32 {sAP}, {sHkv}, 14
        s_add_u32 {sAP}, {sAP}, {WS_AP}
        s_lshl_b32 {sT2}, {sS}, 1
        s_add_u32 {sT2}, {sT2}, {sB}
        s_lshl_b32 s67, {sT2}, 8
        s_add_u32 s67, s67, {sAP}
        buffer_store_dwordx4 {s.q(vSn)}, v{vu}, {s.sWS}, s67 offen sc1
        s_lshl_b32 s67, {sT2}, 2
        s_add_u32 s67, s67, {sAP}
        buffer_store_dword v{vSn}, v{vt}, {s.sWS}, s67 offen offset:3072 sc1""")
        for j in range(8): vload(1, j, s.WS)
        e(f"""s_waitcnt vmcnt(8)
        s_mov_b64 exec, 1
        buffer_store_dword v{vE}, v{vZ}, {s.sWS}, s75 offen offset:64 sc1
        s_mov_b64 exec, -1""")
        e("s_branch L_A_main")
        e(f"""L_A_chk:
        ds_read_b32 v{vt}, v{vFa} offset:4
        s_waitcnt lgkmcnt(0)
        v_readfirstlane_b32 {sDn}, v{vt}
        s_cmp_lg_u32 {sDn}, 0
        s_cbranch_scc1 L_A_qfn
        s_setpc_b64 s[40:41]
        L_A_qfn:""")
        s.st(6)
        e(f"""s_cmp_ge_u32 {sS}, 4
        s_cbranch_scc1 L_A_nqa
        v_lshlrev_b32 v{vt}, 4, v3
        v_add_u32 v{vt}, {L_QBOP}, v{vt}
        ds_read_b128 {s.q(vQB)}, v{vt}
        ds_read_b128 {s.q(vQB+4)}, v{vt} offset:256
        v_and_b32 v{vu}, 1, v1
        v_cmp_eq_u32 vcc, 0, v{vu}
        v_lshlrev_b32 v{vu}, 15, v{vu}
        v_lshl_add_u32 v{vu}, v2, 3, v{vu}
        s_lshl_b32 {sT2}, {sHd}, 2
        s_add_u32 {sT2}, {sT2}, {sS}
        s_lshl_b32 {sT2}, {sT2}, 3
        s_add_u32 {sT2}, {sT2}, {s.sW}
        s_lshl_b32 {sT2}, {sT2}, 5
        s_add_u32 {sT2}, {sT2}, {WS_QABS}
        s_waitcnt vmcnt(8) lgkmcnt(0)""")
        for k in range(4):
            for bb in range(2):
                for j in range(4):
                    c = "0" if k == 0 else f"v{vUa+4*bb+j}"
                    e(f"v_dot2_f32_bf16 v{vUa+4*bb+j}, v{vUK+4*j+k}, v{vQB+4*bb+k}, {c}")
        for r in (8, 4, 2, 1):
            for k in range(8): e(f"v_add_f32_dpp v{vUa+k}, v{vUa+k}, v{vUa+k} row_ror:{r} row_mask:0xf bank_mask:0xf")
        for k in range(4): e(f"v_cvt_pk_bf16_f32 v{vQB+k}, v{vUa+2*k}, v{vUa+2*k+1}")
        e(f"""v_cndmask_b32 v{vQB}, v{vQB+2}, v{vQB}, vcc
        v_cndmask_b32 v{vQB+1}, v{vQB+3}, v{vQB+1}, vcc
        s_mov_b32 exec_lo, 0x00030003
        s_mov_b32 exec_hi, 0x00030003
        v_min_u32 v{vQB}, -2, v{vQB}
        v_min_u32 v{vQB+1}, -2, v{vQB+1}
        buffer_store_dwordx2 {s.q(vQB,2)}, v{vu}, {s.sWS}, {sT2} offen sc1
        s_mov_b64 exec, -1
        L_A_nqa:""")
        s.st(11)
        e("s_setpc_b64 s[40:41]")
        e("L_A_main:")
        e(f"""v_xor_b32 v{vt}, v2, v3
        v_lshlrev_b32 v{vt}, 4, v{vt}
        v_and_b32 v{vu}, 3, v3
        v_lshl_or_b32 v{vt}, v{vu}, 10, v{vt}
        v_lshrrev_b32 v{vu}, 2, v3
        v_lshl_or_b32 v{vt}, v{vu}, 8, v{vt}
        v_add_u32 v{vKrd}, {sLb}, v{vt}
        v_xor_b32 v{vKrd+1}, 64, v{vKrd}
        v_xor_b32 v{vKrd+2}, 0x80, v{vKrd}
        v_xor_b32 v{vKrd+3}, 0xc0, v{vKrd}
        v_and_b32 v{vu}, 1, v{vu}
        v_lshlrev_b32 v{vu}, 8, v{vu}
        v_lshl_add_u32 v{vu}, v2, 4, v{vu}
        v_add_u32 v{vu}, {L_QOP}, v{vu}""")
        for kk in range(4): e(f"ds_read_b128 {s.q(vQ+4*kk)}, v{vu} offset:{kk*64}")
        def cond_wait(n_if_not6):
            l = s.lab("L_cw")
            e(f"s_cmp_lg_u32 {sH6}, 0\ns_cbranch_scc1 {l}\ns_waitcnt vmcnt({n_if_not6})\n{l}:")
        mark = len(s.L)
        for i in range(6):
            if i == 5: e(f"s_cmp_eq_u32 {sH6}, 0\ns_cbranch_scc1 L_A_fin")
            e(f"s_waitcnt vmcnt({24 if i < 5 else 8})")
            if i == 4: cond_wait(8)
            for blk in range(2):
                for kk in range(4):
                    e(f"ds_read_b128 {s.q(vKa+16*blk+4*kk)}, v{vKrd+kk} offset:{(i&1)*8192+blk*4096}")
            e("s_waitcnt lgkmcnt(0)")
            for kk in range(4):
                for blk in range(2):
                    c = "0" if kk == 0 else s.q(vS+4*blk)
                    e(f"v_mfma_f32_16x16x32_bf16 {s.q(vS+4*blk)}, {s.q(vKa+16*blk+4*kk)}, {s.q(vQ+4*kk)}, {c}")
            if i + 2 < 5:
                for j in range(8): kload(i+2, j, W[i+2])
            elif i + 2 == 5:
                l = s.lab("L_k5"); e(f"s_cmp_eq_u32 {sH6}, 0\ns_cbranch_scc1 {l}")
                for j in range(8): kload(5, j)
                e(f"{l}:")
            if s.mimic:
                for k in range(4): e(f"v_cvt_pk_bf16_f32 v{vP+k}, v{vS+2*k}, v{vS+2*k+1}")
                for k in range(4): e(f"v_lshlrev_b32 v{vS+2*k}, 16, v{vP+k}\nv_and_b32 v{vS+2*k+1}, 0xffff0000, v{vP+k}")
                for k in range(8): e(f"v_mul_f32 v{vS+k}, {hex(f2u(128**-0.5))}, v{vS+k}")
                for k in range(4): e(f"v_cvt_pk_bf16_f32 v{vP+k}, v{vS+2*k}, v{vS+2*k+1}")
                for k in range(4): e(f"v_lshlrev_b32 v{vS+2*k}, 16, v{vP+k}\nv_and_b32 v{vS+2*k+1}, 0xffff0000, v{vP+k}")
            sC = s.sC if not s.mimic else "s68"
            if s.mimic and i == 0: e(f"s_mov_b32 s68, {hex(f2u(math.log2(math.e)))}")
            e(f"v_max3_f32 v{vt}, v{vS}, v{vS+1}, v{vS+2}\nv_max3_f32 v{vt}, v{vt}, v{vS+3}, v{vS+4}\nv_max3_f32 v{vt}, v{vt}, v{vS+5}, v{vS+6}")
            if i == 0: e(f"v_max_f32 v{vt}, v{vt}, v{vS+7}")
            else: e(f"v_max3_f32 v{vt}, v{vt}, v{vS+7}, v{vM}")
            s.xreduce("v_max_f32", vt, vu)
            e(f"v_mul_f32 v{vNm}, {sC}, v{vt}")
            if i > 0: e(f"v_fma_f32 v{vAl}, v{vM}, {sC}, -v{vNm}\nv_exp_f32 v{vAl}, v{vAl}")
            e(f"v_mov_b32 v{vM}, v{vt}")
            for k in range(8): e(f"v_fma_f32 v{vS+k}, v{vS+k}, {sC}, -v{vNm}")
            if i > 0:
                e(f"v_mov_b32_dpp v{vA2}, v{vAl} row_newbcast:0 row_mask:0x5 bank_mask:0xf\nv_mov_b32_dpp v{vA2}, v{vAl} row_newbcast:4 row_mask:0xa bank_mask:0xf")
            for k in range(8): e(f"v_exp_f32 v{vS+k}, v{vS+k}")
            if i > 0:
                for k in range(8): e(f"v_mul_f32 v{vAcc+4*k}, v{vA2}, v{vAcc+4*k}")
            for k in range(4): e(f"v_cvt_pk_bf16_f32 v{vP+k}, v{vS+2*k}, v{vS+2*k+1}")
            e(f"v_add_f32 v{vS}, v{vS}, v{vS+1}\nv_add_f32 v{vS+2}, v{vS+2}, v{vS+3}\nv_add_f32 v{vS+4}, v{vS+4}, v{vS+5}\nv_add_f32 v{vS+6}, v{vS+6}, v{vS+7}")
            e(f"v_add_f32 v{vS}, v{vS}, v{vS+2}\nv_add_f32 v{vS+4}, v{vS+4}, v{vS+6}\nv_add_f32 v{vS}, v{vS}, v{vS+4}")
            if i == 0: e(f"v_mov_b32 v{vL}, v{vS}")
            else: e(f"v_fma_f32 v{vL}, v{vL}, v{vAl}, v{vS}")
            e(f"s_waitcnt vmcnt({[24,24,24,16,16,0][i]})")
            if i == 4: cond_wait(0)
            s.vlike(vAcc, vP, [vV+(i&1)*32+4*j for j in range(8)], (vT0, vT1), i == 0)
            if i + 2 < 5:
                for j in range(8): vload(i+2, j, W[i+2])
            elif i + 2 == 5:
                l = s.lab("L_v5"); e(f"s_cmp_eq_u32 {sH6}, 0\ns_cbranch_scc1 {l}")
                for j in range(8): vload(5, j)
                e(f"{l}:")
            if i == 0: s.st(7)
        if "nocomp" in s.dbg: s.L[mark:] = [x for x in s.L[mark:] if not x.startswith(("v_", "ds_"))]
        if "nopv" in s.dbg: s.L[mark:] = [x for x in s.L[mark:] if not x.startswith(("v_perm_b32",))]
        if "nods" in s.dbg: s.L[mark:] = [x for x in s.L[mark:] if not x.startswith(("ds_",))]
        e("L_A_fin:")
        s.st(8)
        sCm = s.sC if not s.mimic else "s68"
        s.xreduce("v_add_f32", vL, vu)
        e(f"""v_mul_f32 v{vM}, {sCm}, v{vM}
        v_bfe_u32 v{vt}, v1, 4, 1
        v_lshlrev_b32 v{vt}, 9, v{vt}
        v_lshl_add_u32 v{vt}, v3, 5, v{vt}
        s_lshl_b32 {sT2}, {s.sW}, 10
        s_add_u32 {sT2}, {sT2}, {L_OC}
        v_add_u32 v{vt}, {sT2}, v{vt}
        v_bfe_u32 v{vu}, v1, 2, 1
        v_lshlrev_b32 v{vu}, 5, v{vu}
        s_lshl_b32 {sT2}, {s.sW}, 2
        s_add_u32 {sT2}, {sT2}, {L_MS}
        v_add_u32 v{vu}, {sT2}, v{vu}
        ds_write2_b32 v{vu}, v{vM}, v{vL} offset0:0 offset1:16""")
        s.gather0(vAcc, vS)
        e(f"ds_write_b128 v{vt}, {s.q(vS)}\nds_write_b128 v{vt}, {s.q(vS+4)} offset:16")
        e(f"""s_lshl_b32 {sT2}, {s.sW}, 8
        s_add_u32 {sT2}, {sT2}, {L_OC}
        v_lshl_add_u32 v{vt}, v1, 2, {sT2}
        s_lshr_b32 {sT2}, {s.sW}, 1
        s_lshl_b32 {sT2}, {sT2}, 5
        s_add_u32 {sT2}, {sT2}, {L_MS}
        v_and_b32 v{vu}, 7, v1
        v_lshl_add_u32 v{vu}, v{vu}, 2, {sT2}
        s_lshl_b32 {sT0}, {sHkv}, 2
        s_add_u32 {sT0}, {sT0}, {s.sW}
        s_lshl_b32 {sT0}, {sT0}, 12
        s_add_u32 {sT0}, {sT0}, {WS_AP}
        s_lshl_b32 {sT2}, {sS}, 1
        s_add_u32 {sT2}, {sT2}, {sB}
        s_lshl_b32 {sT1}, {sT2}, 2
        s_add_u32 {sT1}, {sT1}, {sT0}
        s_lshl_b32 {sT2}, {sT2}, 8
        s_add_u32 {sT0}, {sT0}, {sT2}
        s_waitcnt lgkmcnt(0)
        s_barrier""")
        s.st(9)
        e(f"s_cmp_ge_u32 {s.sW}, 4\ns_cbranch_scc1 L_A_done")
        e(f"ds_read2_b32 {s.q(vP,2)}, v{vu} offset0:0 offset1:16")
        for k in range(8): e(f"ds_read_b32 v{vS+k}, v{vt} offset:{k*1024}")
        e("s_waitcnt lgkmcnt(8)")
        D = "row_mask:0xf bank_mask:0xf"
        e(f"""v_max_f32_dpp v{vM}, v{vP}, v{vP} quad_perm:[1,0,3,2] {D}
        v_max_f32_dpp v{vM}, v{vM}, v{vM} quad_perm:[2,3,0,1] {D}
        v_max_f32_dpp v{vM}, v{vM}, v{vM} row_half_mirror {D}
        v_sub_f32 v{vP}, v{vP}, v{vM}
        v_exp_f32 v{vP}, v{vP}
        v_mul_f32 v{vL}, v{vP}, v{vP+1}
        v_add_f32_dpp v{vL}, v{vL}, v{vL} quad_perm:[1,0,3,2] {D}
        v_add_f32_dpp v{vL}, v{vL}, v{vL} quad_perm:[2,3,0,1] {D}
        v_add_f32_dpp v{vL}, v{vL}, v{vL} row_half_mirror {D}
        v_rcp_f32 v{vAl}, v{vL}
        v_log_f32 v{vL}, v{vL}
        v_lshlrev_b32 v{vt}, 2, v1
        v_mul_f32 v{vP}, v{vP}, v{vAl}
        v_add_f32 v{vL}, v{vL}, v{vM}
        s_waitcnt lgkmcnt(0)
        v_mul_f32_dpp v{vA2}, v{vP}, v{vS} row_newbcast:0 {D}""")
        for k in range(1, 8): e(f"v_fmac_f32_dpp v{vA2}, v{vP}, v{vS+k} row_newbcast:{k} {D}")
        e(f"""v_min_u32 v{vL}, -2, v{vL}
        v_min_u32 v{vA2}, -2, v{vA2}
        buffer_store_dword v{vA2}, v{vt}, {s.sWS}, {sT0} offen sc1
        s_mov_b64 exec, 1
        buffer_store_dword v{vL}, v{vt}, {s.sWS}, {sT1} offen offset:3072 sc1
        s_mov_b64 exec, -1""")
        e("L_A_done:")
        s.st(10)
        s.stamps_out(11)
        e("s_endpgm")

    def roleB(s):
        e = s.e
        sWQ, sUK, sCK, sUV, sWO2, sWO, sG, sOUT = "s[12:15]","s[16:19]","s[20:23]","s[24:27]","s[28:31]","s[32:35]","s[36:39]","s[40:43]"
        e("L_B:"); s.inB = True
        if s.noB: e("s_endpgm")
        s.post = list(s.common_post)
        s.srd(20, 6, 16777216); s.srd(24, 9, 4194304)
        s.srd(28, 10, 4718592); s.srd(32, 4, 4718592); s.srd(36, 11, 1152); s.srd(40, 12, 2304)
        for p in s.post: e(p)
        s.lane_common(); s.consts()
        sH, sHalf, sJ, sAb, sSp, sCb, sT0, sT1, sT2, sT3, sHo, sTl = "s57","s58","s59","s60","s61","s62","s49","s50","s51","s52","s63","s64"
        e(f"""s_and_b32 {sT0}, s2, 7
        s_lshr_b32 {sT1}, s2, 3
        s_lshr_b32 {sH}, {sT1}, 1
        s_lshl_b32 {sT2}, {sT0}, 2
        s_add_u32 {sH}, {sH}, {sT2}
        s_and_b32 {sHalf}, {sT1}, 1
        s_lshl_b32 {sJ}, {sH}, 1
        s_add_u32 {sJ}, {sJ}, {sHalf}
        s_and_b32 {sAb}, {sT0}, 1
        s_lshr_b32 {sSp}, {sT0}, 1
        s_lshl_b32 {sSp}, {sSp}, 3
        s_add_u32 {sSp}, {sSp}, {sT1}
        s_lshl_b32 {sCb}, {sAb}, 23
        s_lshl_b32 {sT2}, {sSp}, 18
        s_add_u32 {sCb}, {sCb}, {sT2}
        s_lshl_b32 {sT2}, {s.sW}, 13
        s_add_u32 {sCb}, {sCb}, {sT2}
        s_lshl_b32 {sHo}, {sH}, 8""")
        vL16, vt, vu, vD, vUo = 4, 5, 6, 7, 8
        vG0, vG1, vTag = 12, 13, 14
        vCrd, vTr = 16, 20
        vMq, vLq, vMp, vAq, vAp, vNm, vPw, vPr, vXw, vXq, vXp = 24,25,26,27,28,29,30,31,9,10,11
        vS, vT0, vT1, vT3 = 32, 40, 252, 220
        vP = 44
        vCa = 60
        vO = 92
        vUV = 124
        vQ = 156
        vWq, vXa = 156, 44
        e(f"""v_lshlrev_b32 v{vL16}, 4, v1
        s_and_b32 {sT2}, {s.sW}, 1
        s_mul_i32 {sT2}, {sT2}, 48
        v_xor_b32 v{vD}, {sT2}, v{vL16}""")
        def tile_dma(soff, slot_s, w=None):
            for j in range(8):
                if j == 0: e(f"s_mov_b32 m0, {slot_s}")
                if j == 4: e(f"s_add_u32 m0, {slot_s}, 4096\ns_add_u32 {sT3}, {soff}, 4096")
                e(f"v_xor_b32 v{vu}, {(4*(j&3)+2*(j>>2))<<4}, v{vD}")
                if w: e(f"s_waitcnt vmcnt({w-1})")
                e(f"buffer_load_dwordx4 v{vu}, {sCK}, {soff if j<4 else sT3} offen offset:{(j&3)*1024} nt lds")
        def tile_reg(soff, dst, w=None):
            for j in range(8):
                if j == 4: e(f"s_add_u32 {sT3}, {soff}, 4096")
                e(f"v_xor_b32 v{vu}, {(4*(j&3)+2*(j>>2))<<4}, v{vD}")
                if w: e(f"s_waitcnt vmcnt({w-1})")
                e(f"buffer_load_dwordx4 {s.q(dst+4*j)}, v{vu}, {sCK}, {soff if j<4 else sT3} offen offset:{(j&3)*1024} nt")
        def uv_setup():
            e(f"""v_lshrrev_b32 v{vUo}, 3, v1
            v_lshlrev_b32 v{vUo}, 16, v{vUo}
            v_and_b32 v{vu}, 7, v1
            v_lshl_add_u32 v{vUo}, v{vu}, 4, v{vUo}
            s_lshl_b32 {sTl}, {s.sW}, 19
            s_add_u32 {sTl}, {sTl}, {sHo}
            s_lshl_b32 {sT3}, {sHalf}, 7
            s_add_u32 {sTl}, {sTl}, {sT3}""")
        t3n = [0]
        def t3_load(n):
            for _ in range(n):
                j = t3n[0]; t3n[0] += 1
                if j % 4 == 0: e(f"s_add_u32 {sTl}, {sCb}, {3*65536 + (j>>2)*4096}")
                e(f"v_xor_b32 v{vUo}, {(4*(j&3)+2*(j>>2))<<4}, v{vD}")
                e(f"buffer_load_dwordx4 {s.q(vT3+4*j)}, v{vUo}, {sCK}, {sTl} offen offset:{(j&3)*1024} nt")
        uvn = [0]
        def uv_load(n):
            for _ in range(n):
                j = uvn[0]; uvn[0] += 1
                e(f"buffer_load_dwordx4 {s.q(vUV+4*j)}, v{vUo}, {sUV}, {sTl} offen nt")
                if j < 7: e(f"s_add_u32 {sTl}, {sTl}, 8192")
        e("s_waitcnt lgkmcnt(0)"); s.wsfix(); e(f"s_cmp_eq_u32 {s.sW}, 7\ns_cbranch_scc1 L_B_svc")
        e(f"s_setprio 2\ns_cmp_lg_u32 {s.sW}, 6\ns_cbranch_scc1 L_B_w05")
        npf = s.code_prefetch(vt, vCa)
        e(f"""v_and_b32 v{vt}, 31, v1
        v_mul_u32_u24 v{vt}, 36, v{vt}
        v_lshrrev_b32 v{vu}, 5, v1
        v_mul_u32_u24 v{vu}, 1152, v{vu}
        v_add_u32 v{vu}, v{vu}, v{vt}
        buffer_load_dwordx4 {s.q(vQ)}, v{vu}, {s.sX}, 0 offen
        buffer_load_dwordx4 {s.q(vQ+4)}, v{vu}, {s.sX}, 0 offen offset:16
        buffer_load_dword v{vQ+8}, v{vu}, {s.sX}, 0 offen offset:32
        buffer_load_dwordx4 {s.q(vQ+12)}, v{vt}, {sG}, 0 offen
        buffer_load_dwordx4 {s.q(vQ+16)}, v{vt}, {sG}, 0 offen offset:16
        buffer_load_dword v{vQ+20}, v{vt}, {sG}, 0 offen offset:32
        v_mov_b32 v{vS}, 0
        s_waitcnt vmcnt(0)""")
        for k in range(9): e(f"v_dot2c_f32_bf16 v{vS}, v{vQ+k}, v{vQ+12+k}")
        s.dppreduce("v_add_f32", vS, (8, 4, 2, 1))
        s.xreduce("v_add_f32", vS, vt, (16,))
        e(f"""v_mul_f32 v{vS}, {hex(f2u(-math.log2(math.e)))}, v{vS}
        v_exp_f32 v{vS}, v{vS}
        v_add_f32 v{vS}, 1.0, v{vS}
        v_rcp_f32 v{vG0}, v{vS}""")
        def first_loads(bw, prio=True):
            e(f"s_lshl_b32 {sT2}, {s.sW}, 13")
            tile_dma(sCb, sT2, bw[0])
            e(f"s_add_u32 {sT0}, {sCb}, 65536\ns_add_u32 {sT2}, {sT2}, {R1}")
            tile_dma(sT0, sT2, bw[1])
            if prio: e("s_setprio 1")
            e(f"s_add_u32 {sT0}, {sCb}, {2*65536}")
            tile_reg(sT0, vUV, bw[2])
            if prio: e("s_setprio 0")
            if not s.t3s:
                e(f"s_add_u32 {sT0}, {sCb}, {3*65536}")
                tile_reg(sT0, vT3, bw[2])
        e("L_B_w05:")
        first_loads(s.BW)
        s.st(1)
        e("s_branch L_B_bv")
        e("L_B_svc:\ns_setprio 3")
        vE, vZ, vSn = vCa, vCa+1, vCa+4
        e(f"""v_mov_b32 v{vZ}, 0
        buffer_load_dword v{vE}, v{vZ}, {s.sWS}, 0 offen sc1
        v_mov_b32 v{vSn}, -1
        v_mov_b32 v{vSn+1}, -1
        v_mov_b32 v{vSn+2}, -1
        v_mov_b32 v{vSn+3}, -1
        v_and_b32 v{vu}, 31, v1
        v_lshlrev_b32 v{vu}, 8, v{vu}
        s_lshl_b32 {sT0}, {sAb}, 5
        s_add_u32 {sT0}, {sT0}, {sSp}
        s_lshl_b32 {sT0}, {sT0}, 2
        s_add_u32 {sT0}, {sT0}, {WS_BST}
        buffer_store_dword v{vSn}, v{vu}, {s.sWS}, {sT0} offen sc1
        v_lshrrev_b32 v{vt}, 2, v1
        v_lshlrev_b32 v{vt}, 12, v{vt}
        v_and_b32 v{vu}, 3, v1
        v_lshl_add_u32 v{vt}, v{vu}, 4, v{vt}
        s_lshl_b32 {sT0}, {sJ}, 6
        s_add_u32 {sT0}, {sT0}, {WS_OP}""")
        for i in range(5):
            if i == 4: e("s_mov_b32 exec_hi, 0")
            e(f"buffer_store_dwordx4 {s.q(vSn)}, v{vt}, {s.sWS}, {sT0} offen sc1")
            if i < 4: e(f"s_add_u32 {sT0}, {sT0}, 65536")
        e(f"""s_mov_b64 exec, -1
        s_lshl_b32 {sT1}, {sJ}, 7
        s_add_u32 {sT1}, {sT1}, {WS_FLAG}
        s_mov_b32 {sT2}, 0x9e3779b1
        s_waitcnt vmcnt(0)
        v_mul_lo_u32 v{vTag}, v{vE}, {sT2}
        v_add_u32 v{vTag}, 0x7f4a7c15, v{vTag}
        s_mov_b64 exec, 1
        buffer_store_dword v{vTag}, v{vZ}, {s.sWS}, {sT1} offen sc1
        s_mov_b64 exec, -1""")
        s.st(1)
        e(f"s_setprio 3\nv_lshlrev_b32 v{vt}, 7, v1\ns_mov_b32 {sT0}, {WS_FLAG}\ns_mov_b32 {sT1}, {WS_FLAG+8192}\ns_mov_b32 {sT2}, {WS_FLAG+16384}\ns_mov_b32 {sT3}, {WS_FLAG+24576}")
        s.spin_init()
        e("L_B_vf:")
        for k, so in enumerate((sT0, sT1, sT2, sT3)): e(f"buffer_load_dword v{vT0+k}, v{vt}, {s.sWS}, {so} offen sc1")
        e("s_waitcnt vmcnt(0)")
        for k in range(4): e(f"v_xor_b32 v{vT0+k}, v{vT0+k}, v{vTag}")
        e(f"v_or3_b32 v{vT0}, v{vT0}, v{vT0+1}, v{vT0+2}\nv_or_b32 v{vT0}, v{vT0}, v{vT0+3}\nv_cmp_ne_u32 vcc, 0, v{vT0}")
        s.spin_retry("L_B_vf")
        s.st(3)
        first_loads((None, None, None), False)
        e("s_setprio 0")
        e("L_B_bv:")
        s.st(4)
        e("s_barrier")
        e(f"""s_lshl_b32 {sT0}, {sAb}, 15
        s_lshl_b32 {sT1}, {s.sW}, 12
        s_add_u32 {sT0}, {sT0}, {sT1}
        s_add_u32 {sT0}, {sT0}, {WS_QABS}""")
        def qpoll():
            for q_ in range(4): e(f"buffer_load_dwordx4 {s.q(vCa+4*q_)}, v{vL16}, {s.sWS}, {sT0} offen offset:{q_*1024} sc1")
        e(f"""s_lshl_b32 {sT2}, {s.sW}, 6
        s_and_b32 {sT2}, {sT2}, 0xff
        v_xor_b32 v{vt}, {sT2}, v{vL16}
        s_add_u32 {sT1}, {sT1}, {X}
        v_add_u32 v{vt}, {sT1}, v{vt}""")
        s.spin_init()
        e("L_B_qp:")
        qpoll()
        e("s_waitcnt vmcnt(0)")
        s.sentinel_check(range(vCa, vCa+16), vu)
        s.spin_retry("L_B_qp", s.qsl)
        for q_ in range(4):
            if q_: e(f"v_xor_b32 v{vu}, {q_<<4}, v{vt}")
            e(f"ds_write_b128 v{vu if q_ else vt}, {s.q(vCa+4*q_)} offset:{q_*1024}")
        e(f"""s_lshr_b32 {sT0}, {s.sW}, 2
        s_and_b32 {sT1}, {s.sW}, 3
        v_xor_b32 v{vt}, v2, v3
        v_lshlrev_b32 v{vt}, 4, v{vt}
        v_lshl_or_b32 v{vt}, v3, 10, v{vt}
        s_lshl_b32 {sT2}, {sT0}, 14
        s_add_u32 {sT2}, {sT2}, {X}
        v_add_u32 v{vTr}, {sT2}, v{vt}
        v_xor_b32 v{vTr+1}, 64, v{vTr}
        v_xor_b32 v{vTr+2}, 0x80, v{vTr}
        v_xor_b32 v{vTr+3}, 0xc0, v{vTr}
        s_waitcnt lgkmcnt(0)""")
        s.st(6)
        e("s_barrier")
        for kk in range(16): e(f"ds_read_b128 {s.q(vQ+4*kk)}, v{vTr+(kk&3)} offset:{(kk>>2)*256}")
        e(f"""s_mov_b32 {sT3}, 0x78
        v_lshrrev_b32 v{vt}, 2, v3
        v_lshlrev_b32 v{vt}, 1, v{vt}
        v_bfe_u32 v{vt}, {sT3}, v{vt}, 2
        v_and_b32 v{vu}, 3, v3
        v_lshl_or_b32 v{vt}, v{vu}, 2, v{vt}
        v_xor_b32 v{vt}, v{vt}, v2
        v_lshlrev_b32 v{vt}, 4, v{vt}
        v_lshl_or_b32 v{vt}, v3, 10, v{vt}
        s_lshl_b32 {sT2}, {sT1}, 14
        v_add_u32 v{vCrd}, {sT2}, v{vt}
        v_xor_b32 v{vCrd+1}, 64, v{vCrd}
        v_xor_b32 v{vCrd+2}, 0x80, v{vCrd}
        v_xor_b32 v{vCrd+3}, 0xc0, v{vCrd}
        s_lshl_b32 {sT2}, {sT0}, 4
        v_add_u32 v{vt}, {sT2}, v3
        v_mul_u32_u24 v{vPw}, 272, v{vt}
        v_lshl_add_u32 v{vPw}, v2, 3, v{vPw}
        s_lshl_b32 {sT2}, {sT1}, 5
        s_add_u32 {sT2}, {sT2}, {L_PB}
        v_add_u32 v{vPw}, {sT2}, v{vPw}
        v_lshlrev_b32 v{vXq}, 4, v{vt}
        v_add_u32 v{vXq}, {L_MX}, v{vXq}
        s_lshl_b32 {sT2}, {sT1}, 2
        v_add_u32 v{vXw}, {sT2}, v{vXq}
        v_and_b32 v{vt}, 31, v1
        v_lshlrev_b32 v{vXp}, 4, v{vt}
        v_add_u32 v{vXp}, {L_MX}, v{vXp}
        v_mul_u32_u24 v{vPr}, 272, v{vt}
        v_lshrrev_b32 v{vu}, 5, v1
        v_lshl_add_u32 v{vPr}, v{vu}, 4, v{vPr}
        v_add_u32 v{vPr}, {L_PB}, v{vPr}
        s_waitcnt lgkmcnt(0)""")
        e(f"""v_bfe_u32 v{vt}, v1, 2, 2
        v_lshl_add_u32 v{vTr+1}, v{vu}, 3, v{vt}
        v_lshlrev_b32 v{vTr+1}, 10, v{vTr+1}
        v_lshlrev_b32 v{vt}, 2, v{vt}
        v_mad_u32_u24 v{vt}, v{vu}, 3, v{vt}
        v_bfe_u32 v{vu}, v1, 4, 1
        v_lshlrev_b32 v{vu}, 1, v{vu}
        v_bfe_u32 v{vTr+2}, v1, 1, 1
        v_add_u32 v{vu}, v{vu}, v{vTr+2}
        s_lshl_b32 {sT2}, {s.sW}, 3
        v_add_u32 v{vu}, {sT2}, v{vu}
        v_xor_b32 v{vu}, v{vu}, v{vt}
        v_lshl_or_b32 v{vTr}, v{vu}, 4, v{vTr+1}
        v_and_b32 v{vu}, 1, v1
        v_lshl_or_b32 v{vTr}, v{vu}, 3, v{vTr}
        v_xor_b32 v{vTr+1}, 64, v{vTr}
        v_xor_b32 v{vTr+2}, 32, v{vTr}
        v_xor_b32 v{vTr+3}, 0x60, v{vTr}""")
        def w_dma(srd, ldsbase, a=0, b=9):
            e(f"""s_mul_i32 s65, {sJ}, 73728
            s_mul_i32 s66, {s.sW}, 9216
            s_add_u32 s65, s65, s66""")
            if a >= 4: e(f"s_add_u32 s65, s65, {(a>>2)*4096}")
            for j in range(a, b):
                if j % 4 == 0 or j == a:
                    e(f"s_add_u32 m0, s66, {ldsbase + (j>>2)*4096}")
                    if j != a: e(f"s_add_u32 s65, s65, 4096")
                e(f"buffer_load_dwordx4 v{vL16}, {srd}, s65 offen offset:{(j&3)*1024} nt lds")
        def tog(r):
            for k in range(4): e(f"v_xor_b32 v{r+k}, 0x10000, v{r+k}")
        def stile(tl):
            if s.bdet: s.st2(5*tl)
            e("s_barrier")
            if s.bdet: s.st2(5*tl+1)
            uv = (lambda n: uv_load(n) if uvn[0] < s.uvs else None) if tl == 1 else (lambda n: t3_load(n)) if (tl == 0 and s.t3s) else (lambda n: None)
            if tl == 0:
                l = s.lab("L_gt")
                e(f"""s_cmp_lt_u32 {s.sW}, 6
                s_cbranch_scc1 {l}
                v_lshrrev_b32 v{vt}, 5, v1
                v_lshlrev_b32 v{vt}, 2, v{vt}
                s_cmp_eq_u32 {s.sW}, 6
                s_cbranch_scc1 {l}a
                v_mov_b32 v{vt}, 8
                v_mov_b32 v{vG0}, v{vTag}
                {l}a:
                v_add_u32 v{vt}, {L_GT}, v{vt}
                ds_write_b32 v{vt}, v{vG0}
                {l}:""")
            def crd(n):
                if n == 16: tog(vCrd)
                kk = n & 15
                e(f"ds_read_b128 {s.q(vCa+4*(n&7))}, v{vCrd+(kk&3)} offset:{(kk>>2)*256}")
                if n == 31: tog(vCrd)
            for n in range(8): crd(n)
            uv(1)
            for h4 in range(8):
                e(f"s_waitcnt lgkmcnt({4 if h4 < 7 else 0})")
                for n in range(4*h4, 4*h4+4):
                    d = vS + 4*(n >> 4)
                    c = "0" if (n & 15) == 0 else s.q(d)
                    e(f"v_mfma_f32_16x16x32_bf16 {s.q(d)}, {s.q(vCa+4*(n&7))}, {s.q(vQ+4*(n&15))}, {c}")
                if h4 < 6:
                    for n in range(4*h4+8, 4*h4+12): crd(n)
                if h4 in (1, 3, 5): uv(1)
            e(f"v_max3_f32 v{vt}, v{vS}, v{vS+1}, v{vS+2}\nv_max3_f32 v{vt}, v{vt}, v{vS+3}, v{vS+4}\nv_max3_f32 v{vt}, v{vt}, v{vS+5}, v{vS+6}\nv_max_f32 v{vt}, v{vt}, v{vS+7}")
            s.xreduce("v_max_f32", vt, vu)
            e(f"ds_write_b32 v{vXw}, v{vt}\ns_waitcnt lgkmcnt(0)\ns_barrier")
            if s.bdet: s.st2(5*tl+2)
            if tl == 0: e(f"v_mov_b32 v{vt}, {L_GT}\nds_read_b128 {s.q(vG0)}, v{vt}")
            e(f"ds_read_b128 {s.q(vT0)}, v{vXq}\nds_read_b128 {s.q(vT1)}, v{vXp}")
            uv(1)
            e("s_waitcnt lgkmcnt(1)")
            e(f"v_max3_f32 v{vt}, v{vT0}, v{vT0+1}, v{vT0+2}")
            if tl == 0: e(f"v_max_f32 v{vMq}, v{vt}, v{vT0+3}\nv_mul_f32 v{vNm}, {s.sC}, v{vMq}")
            else:
                e(f"""v_max3_f32 v{vt}, v{vt}, v{vT0+3}, v{vMq}
                v_mul_f32 v{vNm}, {s.sC}, v{vt}
                v_fma_f32 v{vAq}, v{vMq}, {s.sC}, -v{vNm}
                v_exp_f32 v{vAq}, v{vAq}""")
            for k in range(8): e(f"v_fma_f32 v{vS+k}, v{vS+k}, {s.sC}, -v{vNm}")
            for k in range(8): e(f"v_exp_f32 v{vS+k}, v{vS+k}")
            for k in range(4): e(f"v_cvt_pk_bf16_f32 v{vT0+k}, v{vS+2*k}, v{vS+2*k+1}")
            e(f"ds_write_b64 v{vPw}, {s.q(vT0,2)}\nds_write_b64 v{vPw}, {s.q(vT0+2,2)} offset:128")
            for k in range(4): e(f"v_add_f32 v{vS+k}, v{vS+k}, v{vS+4+k}")
            e(f"v_add_f32 v{vS}, v{vS}, v{vS+1}\nv_add_f32 v{vS+2}, v{vS+2}, v{vS+3}")
            e(f"s_waitcnt lgkmcnt(2)\nv_max3_f32 v{vt}, v{vT1}, v{vT1+1}, v{vT1+2}")
            if tl == 0:
                e(f"v_add_f32 v{vLq}, v{vS}, v{vS+2}\nv_max_f32 v{vMp}, v{vt}, v{vT1+3}")
            else:
                e(f"""v_add_f32 v{vS}, v{vS}, v{vS+2}
                v_max3_f32 v{vt}, v{vt}, v{vT1+3}, v{vMp}
                v_fma_f32 v{vLq}, v{vLq}, v{vAq}, v{vS}
                v_sub_f32 v{vAp}, v{vMp}, v{vt}
                v_mul_f32 v{vAp}, {s.sC}, v{vAp}
                v_exp_f32 v{vAp}, v{vAp}
                v_mov_b32 v{vMp}, v{vt}""")
                s.xreduce("v_add_f32", vLq, vu)
                e(f"ds_write_b32 v{vXw}, v{vLq} offset:512")
                for k in range(32): e(f"v_mul_f32 v{vO+k}, v{vAp}, v{vO+k}")
            e("s_waitcnt lgkmcnt(0)\ns_barrier")
            if s.bdet: s.st2(5*tl+3)
            def prd(ks):
                if ks == 4: tog(vTr)
                e(f"ds_read_b128 {s.q(vP+4*(ks&3))}, v{vPr} offset:{ks*32}")
                for mb in range(2):
                    for t in range(2):
                        e(f"ds_read_b64_tr_b16 {s.q(vCa+8*(ks&3)+4*mb+2*t,2)}, v{vTr+2*t+mb} offset:{(ks&3)*16384+t*4096}")
                if ks == 7: tog(vTr)
            for ks in range(4): prd(ks)
            uv(1)
            for ks in range(8):
                e(f"s_waitcnt lgkmcnt({min(15, 5*(7-ks))})")
                for mb in range(2):
                    c = "0" if (tl == 0 and ks == 0) else s.q(vO+16*mb,16)
                    e(f"v_mfma_f32_32x32x16_bf16 {s.q(vO+16*mb,16)}, {s.q(vCa+8*(ks&3)+4*mb)}, {s.q(vP+4*(ks&3))}, {c}")
                if ks < 4: prd(ks+4)
                if ks in (1, 3): uv(1)
            e("s_barrier")
            if s.bdet: s.st2(5*tl+4)
        stile(0)
        e(f"s_lshl_b32 {sT2}, {s.sW}, 13\nv_add_u32 v{vt}, {sT2}, v{vL16}\nv_add_u32 v{vXw+0 if False else vNm}, {R1}, v{vt}")
        for j in range(8): e(f"ds_write_b128 v{vt}, {s.q(vUV+4*j)} offset:{j*1024}")
        for j in range(8):
            if s.t3s: e(f"s_waitcnt vmcnt({7-j})")
            e(f"ds_write_b128 v{vNm}, {s.q(vT3+4*j)} offset:{j*1024}")
        uv_setup()
        e("s_waitcnt lgkmcnt(0)")
        stile(1)
        s.st(7)
        e(f"""ds_read_b128 {s.q(vT0)}, v{vXp} offset:512
        v_and_b32 v{vt}, 31, v1
        v_mul_u32_u24 v{vt}, 1040, v{vt}
        v_lshrrev_b32 v{vu}, 5, v1
        v_lshl_add_u32 v{vt}, v{vu}, 3, v{vt}
        s_lshl_b32 {sT2}, {s.sW}, 7
        s_add_u32 {sT2}, {sT2}, {L_OS}
        v_add_u32 v{vt}, {sT2}, v{vt}
        s_waitcnt lgkmcnt(0)
        v_add_f32 v{vT0}, v{vT0}, v{vT0+1}
        v_add_f32 v{vT0+2}, v{vT0+2}, v{vT0+3}
        v_add_f32 v{vT0}, v{vT0}, v{vT0+2}
        v_rcp_f32 v{vAp}, v{vT0}
        v_log_f32 v{vLq}, v{vT0}
        v_fma_f32 v{vLq}, v{vMp}, {s.sC}, v{vLq}
        v_min_u32 v{vLq}, -2, v{vLq}""")
        for k in range(32): e(f"v_mul_f32 v{vO+k}, v{vAp}, v{vO+k}")
        for k in range(16): e(f"v_cvt_pk_bf16_f32 v{vCa+k}, v{vO+2*k}, v{vO+2*k+1}")
        for mb in range(2):
            for q4 in range(4): e(f"ds_write_b64 v{vt}, {s.q(vCa+8*mb+2*q4,2)} offset:{mb*64+q4*16}")
        e(f"""s_mul_i32 {sT2}, {s.sW}, 4160
        s_add_u32 {sT2}, {sT2}, {L_OS}
        v_add_u32 v{vt}, {sT2}, v{vL16}
        s_lshl_b32 {sT0}, {s.sW}, 18
        s_lshl_b32 {sT1}, {sAb}, 15
        s_add_u32 {sT0}, {sT0}, {sT1}
        s_lshl_b32 {sT1}, {sSp}, 10
        s_add_u32 {sT0}, {sT0}, {sT1}
        s_add_u32 {sT0}, {sT0}, {WS_BP}
        s_waitcnt lgkmcnt(0)
        s_barrier""")
        for q_ in range(4): e(f"ds_read_b128 {s.q(vCa+4*q_)}, v{vt} offset:{q_*1040}")
        for q_ in range(4):
            e(f"s_waitcnt lgkmcnt({3-q_})\nbuffer_store_dwordx4 {s.q(vCa+4*q_)}, v{vL16}, {s.sWS}, {sT0} offen sc1")
            if q_ < 3: e(f"s_add_u32 {sT0}, {sT0}, 65536")
        nuv = 8 - uvn[0]
        uv_load(nuv)
        e(f"s_waitcnt vmcnt({nuv})\ns_barrier")
        l = s.lab("L_ns")
        e(f"""s_cmp_lg_u32 {s.sW}, 7
        s_cbranch_scc1 {l}
        v_and_b32 v{vu}, 31, v1
        v_lshlrev_b32 v{vu}, 8, v{vu}
        s_lshl_b32 {sT0}, {sAb}, 5
        s_add_u32 {sT0}, {sT0}, {sSp}
        s_lshl_b32 {sT0}, {sT0}, 2
        s_add_u32 {sT0}, {sT0}, {WS_BST}
        buffer_store_dword v{vLq}, v{vu}, {s.sWS}, {sT0} offen sc1
        {l}:""")
        s.st(8)
        w_dma(sWO2, 0, 0, 9)
        e(f"v_lshlrev_b32 v{vt}, 2, v1\ns_add_u32 {sT0}, {sHo}, {WS_BST}")
        s.spin_init()
        e(f"""v_min_u32 v{vXq}, 11, v1
        v_lshlrev_b32 v{vXq}, 7, v{vXq}
        s_lshr_b32 {sT1}, {sH}, 1
        s_mul_i32 {sT1}, {sT1}, 12
        s_add_u32 {sT1}, {sT1}, 64
        s_lshl_b32 {sT1}, {sT1}, 7
        s_add_u32 {sT1}, {sT1}, {WS_FLAG}
        s_mov_b32 s67, 0""")
        def spoll():
            e(f"""buffer_load_dword v{vS}, v{vt}, {s.sWS}, {sT0} offen sc1
            buffer_load_dword v{vu}, v{vXq}, {s.sWS}, {sT1} offen offset:64 sc1""")
        def scheck():
            e(f"""v_cmp_eq_u32 vcc, -1, v{vS}
            v_cmp_ne_u32 s[54:55], v{vu}, v{vTag}
            s_or_b64 vcc, vcc, s[54:55]""")
        for ch in range(3):
            spoll()
            w_dma(sWO, L_WO, 3*ch, 3*ch+3)
            e(f"s_mov_b32 s67, {ch+1}\ns_waitcnt vmcnt(3)")
            scheck()
            e("s_cbranch_vccz L_B_pk" if "nodep" not in s.dbg else "s_branch L_B_pk")
        e("L_B_ps:")
        spoll()
        e("s_waitcnt vmcnt(0)")
        scheck()
        s.spin_retry("L_B_ps", 2)
        e("L_B_pk:")
        e(f"""v_lshlrev_b32 v{vu}, 4, v3
        v_lshl_or_b32 v{vu}, v2, 13, v{vu}
        s_lshl_b32 {sT0}, {sH}, 16
        s_lshr_b32 {sT1}, {s.sW}, 2
        s_lshl_b32 {sT2}, {sT1}, 15
        s_add_u32 {sT0}, {sT0}, {sT2}
        s_and_b32 {sT2}, {s.sW}, 3
        s_lshl_b32 {sT2}, {sT2}, 8
        s_add_u32 {sT0}, {sT0}, {sT2}
        s_add_u32 {sT0}, {sT0}, {WS_BP}
        s_add_u32 {sT3}, {sT0}, 4096""")
        for j in range(8): e(f"buffer_load_dwordx4 {s.q(vCa+4*j)}, v{vu}, {s.sWS}, {sT0 if j<4 else sT3} offen offset:{(j&3)*1024} sc1")
        e(f"""s_lshl_b32 {sT3}, {s.sW}, 7
        s_add_u32 {sT3}, {sT3}, {L_WT}
        v_lshl_add_u32 v{vXw}, v1, 1, {sT3}
        s_lshl_b32 {sTl}, {sT1}, 6
        s_add_u32 {sT3}, {sT3}, {sTl}
        v_lshl_add_u32 v{vXq}, v2, 4, {sT3}
        s_lshl_b32 {sT1}, {sT1}, 10
        s_add_u32 {sT1}, {sT1}, {sT2}
        s_add_u32 {sT1}, {sT1}, {L_OCB}
        v_lshl_add_u32 v{vXp}, v3, 4, {sT1}""")
        e(f"v_mov_b32 v{vt}, v{vS}")
        s.dppreduce("v_max_f32", vt, (8, 4, 2, 1)); s.xreduce("v_max_f32", vt, vu, (16,))
        e(f"v_sub_f32 v{vS}, v{vS}, v{vt}\nv_exp_f32 v{vS}, v{vS}\nv_mov_b32 v{vt}, v{vS}")
        s.dppreduce("v_add_f32", vt, (8, 4, 2, 1)); s.xreduce("v_add_f32", vt, vu, (16,))
        e(f"""v_rcp_f32 v{vt}, v{vt}
        v_mul_f32 v{vS}, v{vS}, v{vt}
        v_cvt_pk_bf16_f32 v{vS}, v{vS}, v{vS}
        ds_write_b16 v{vXw}, v{vS}
        s_waitcnt lgkmcnt(0)
        ds_read_b128 {s.q(vP)}, v{vXq}
        s_waitcnt vmcnt(0) lgkmcnt(0)""")
        s.vlike(vO, vP, [vCa+4*j for j in range(8)], (vT0, vT1), True)
        for k in range(4): e(f"v_cvt_pk_bf16_f32 v{vP+k}, v{vO+8*k}, v{vO+8*k+4}")
        e(f"ds_write_b128 v{vXp}, {s.q(vP)}")
        l = s.lab("L_wr")
        e(f"s_cmp_gt_u32 s67, 1\ns_cbranch_scc1 {l}")
        w_dma(sWO, L_WO, 3, 6)
        e(f"{l}:")
        e(f"""v_bfe_u32 v{vt}, v1, 2, 1
        v_lshlrev_b32 v{vt}, 10, v{vt}
        v_lshl_add_u32 v{vt}, v2, 5, v{vt}
        v_bfe_u32 v{vu}, v1, 3, 1
        v_lshl_add_u32 v{vt}, v{vu}, 4, v{vt}
        s_lshl_b32 {sT0}, {s.sW}, 7
        s_add_u32 {sT0}, {sT0}, {L_OCB}
        v_add_u32 v{vt}, {sT0}, v{vt}
        v_lshrrev_b32 v{vXq}, 5, v1
        v_cmp_eq_u32 vcc, v{vXq}, v{vu}
        v_lshlrev_b32 v{vXq}, 8, v2
        v_and_b32 v{vu}, 7, v1
        v_lshl_add_u32 v{vXq}, v{vu}, 5, v{vXq}
        s_lshl_b32 {sT0}, {s.sW}, 10
        v_add_u32 v{vXq}, {sT0}, v{vXq}
        v_mov_b32 v{vu}, 8192
        v_cndmask_b32 v{vXq}, v{vu}, v{vXq}, vcc
        v_add_u32 v{vXq}, {L_CP}, v{vXq}
        s_waitcnt lgkmcnt(0)
        s_barrier
        ds_read_b128 {s.q(vP)}, v{vt}
        s_waitcnt lgkmcnt(0)""")
        s.vlike(vO, vP, [vUV+4*j for j in range(8)], (vT0, vT1), True)
        s.gather0(vO, vP)
        e(f"ds_write_b128 v{vXq}, {s.q(vP)}\nds_write_b128 v{vXq}, {s.q(vP+4)} offset:16\ns_waitcnt lgkmcnt(0)\ns_barrier")
        l = s.lab("L_wr")
        e(f"s_cmp_gt_u32 s67, 2\ns_cbranch_scc1 {l}")
        w_dma(sWO, L_WO, 6, 9)
        e(f"{l}:")
        l = s.lab("L_nc")
        e(f"""s_cmp_lg_u32 {s.sW}, 0
        s_cbranch_scc1 {l}
        v_lshrrev_b32 v{vu}, 5, v1
        v_and_b32 v{vt}, 31, v1
        v_lshlrev_b32 v{vt}, 4, v{vt}
        v_lshl_add_u32 v{vt}, v{vu}, 12, v{vt}
        v_add_u32 v{vt}, {L_CP}, v{vt}""")
        for p in range(8): e(f"ds_read_b128 {s.q(vCa+4*p)}, v{vt} offset:{p*512}")
        e(f"""v_bfe_u32 v{vu}, v1, 4, 1
        v_cmp_eq_u32 vcc, 0, v{vu}
        v_cndmask_b32 v{vS}, v{vG1}, v{vG0}, vcc
        v_sub_f32 v{vS}, 1.0, v{vS}
        v_cmp_gt_u32 vcc, 32, v1
        v_cndmask_b32 v{vS}, 0, v{vS}, vcc
        v_lshlrev_b32 v{vt}, 3, v1
        v_add_u32 v{vt}, {L_CTX}, v{vt}
        s_waitcnt lgkmcnt(0)""")
        for k in range(4):
            for p in range(4): e(f"v_add_f32 v{vCa+8*p+k}, v{vCa+8*p+k}, v{vCa+8*p+4+k}")
            e(f"v_add_f32 v{vCa+k}, v{vCa+k}, v{vCa+8+k}\nv_add_f32 v{vCa+16+k}, v{vCa+16+k}, v{vCa+24+k}\nv_add_f32 v{vCa+k}, v{vCa+k}, v{vCa+16+k}")
        for k in range(4): s.xreduce("v_add_f32", vCa+k, vu, (32,))
        for k in range(4): e(f"v_mul_f32 v{vCa+k}, v{vS}, v{vCa+k}")
        e(f"""v_cvt_pk_bf16_f32 v{vCa}, v{vCa}, v{vCa+1}
        v_cvt_pk_bf16_f32 v{vCa+1}, v{vCa+2}, v{vCa+3}
        v_cndmask_b32 v{vCa}, 0, v{vCa}, vcc
        v_cndmask_b32 v{vCa+1}, 0, v{vCa+1}, vcc
        ds_write_b64 v{vt}, {s.q(vCa,2)}
        {l}:
        s_waitcnt vmcnt(0) lgkmcnt(0)
        s_barrier""")
        s.st(9)
        e(f"s_cmp_ge_u32 {s.sW}, 6\ns_cbranch_scc1 L_B_red")
        vD6, vWb, vA8, vPl = vO, vQ, vP, vCa
        e(f"""v_min_u32 v{vt}, 2, v3
        v_lshlrev_b32 v{vt}, 7, v{vt}
        v_lshl_add_u32 v{vt}, v2, 3, v{vt}
        v_add_u32 v{vt}, {L_CTX}, v{vt}
        v_lshrrev_b32 v{vu}, 2, v1
        v_mul_u32_u24 v{vu}, 1152, v{vu}
        v_and_b32 v{vXq}, 3, v1
        v_lshl_add_u32 v{vu}, v{vXq}, 3, v{vu}
        s_mul_i32 {sT0}, {s.sW}, 192
        v_add_u32 v{vu}, {sT0}, v{vu}""")
        for q_ in range(4): e(f"ds_read_b64 {s.q(vA8+2*q_,2)}, v{vt} offset:{q_*32}")
        def wtr():
            for ti in range(6):
                for q_ in range(4): e(f"ds_read_b64_tr_b16 {s.q(vWb+8*ti+2*q_,2)}, v{vu} offset:{q_*18432+ti*32}")
        def wmf(init):
            for ks in range(2):
                for ti in range(6):
                    c = "0" if (init and ks == 0) else s.q(vD6+4*ti)
                    e(f"v_mfma_f32_16x16x32_bf16 {s.q(vD6+4*ti)}, {s.q(vA8+4*ks)}, {s.q(vWb+8*ti+4*ks)}, {c}")
        wtr()
        e(f"v_add_u32 v{vu}, {L_WO}, v{vu}\ns_waitcnt lgkmcnt(0)")
        wmf(True)
        wtr()
        vPo, vPs, vGs, vOo = vXq, vXp, vXw, vPw
        e(f"""v_lshlrev_b32 v{vPo}, 8, v3
        v_lshl_add_u32 v{vPo}, v2, 4, v{vPo}
        v_lshlrev_b32 v{vPs}, 2, v3
        v_mov_b32 v{vt}, {OOB}
        v_cmp_gt_u32 s[54:55], 12, v3
        v_cndmask_b32 v{vPo}, v{vt}, v{vPo}, s[54:55]
        v_cndmask_b32 v{vPs}, v{vt}, v{vPs}, s[54:55]
        v_and_b32 v{vt}, 1, v1
        v_cmp_eq_u32 vcc, 0, v{vt}
        v_cndmask_b32 v{vGs}, v{vG1}, v{vG0}, vcc
        v_and_b32 v{vt}, 1, v2
        v_mul_u32_u24 v{vt}, 36, v{vt}
        v_lshrrev_b32 v{vu}, 1, v2
        v_add_u32 v{vt}, v{vt}, v{vu}
        v_lshlrev_b32 v{vt}, 12, v{vt}
        v_lshl_add_u32 v{vOo}, v3, 2, v{vt}
        v_mov_b32 v{vNm}, 0xff800000
        s_lshl_b32 {sT0}, {sJ}, 12
        s_add_u32 {sT0}, {sT0}, {WS_AP}
        s_mul_i32 {sT1}, {s.sW}, {6*4096}
        s_lshl_b32 {sT2}, {sJ}, 6
        s_add_u32 {sT1}, {sT1}, {sT2}
        s_add_u32 {sT1}, {sT1}, {WS_OP}
        s_add_u32 {sT2}, {sT1}, 8192
        s_add_u32 {sT3}, {sT1}, 16384
        s_waitcnt lgkmcnt(0)""")
        s.spin_init()
        if s.hop1 in ("two", "any"):
            e(f"L_B_h0:\nbuffer_load_dword v{vS}, v{vPs}, {s.sWS}, {sT0} offen offset:3072 sc1\ns_waitcnt vmcnt(0)")
            if s.hop1 == "two":
                e(f"v_cmp_eq_u32 vcc, -1, v{vS}")
            else:
                e(f"v_cmp_eq_u32 vcc, -1, v{vS}\ns_cmp_eq_u64 vcc, s[54:55]\ns_cselect_b64 vcc, vcc, 0")
            s.spin_retry("L_B_h0", 2)
        e("L_B_h1:")
        e(f"buffer_load_dword v{vS}, v{vPs}, {s.sWS}, {sT0} offen offset:3072 sc1")
        for q_ in range(4): e(f"buffer_load_dwordx4 {s.q(vPl+4*q_)}, v{vPo}, {s.sWS}, {sT0} offen offset:{q_*64} sc1")
        e("s_waitcnt vmcnt(0)")
        s.sentinel_check([vS] + list(range(vPl, vPl+16)), vu)
        s.spin_retry("L_B_h1", 0)
        s.st(10)
        e(f"v_cndmask_b32 v{vS}, v{vNm}, v{vS}, s[54:55]")
        e(f"v_max_f32_dpp v{vt}, v{vS}, v{vS} row_ror:2 row_mask:0xf bank_mask:0xf")
        s.dppreduce("v_max_f32", vt, (4, 8))
        e(f"v_sub_f32 v{vS}, v{vS}, v{vt}\nv_exp_f32 v{vS}, v{vS}")
        e(f"v_add_f32_dpp v{vt}, v{vS}, v{vS} row_ror:2 row_mask:0xf bank_mask:0xf")
        s.dppreduce("v_add_f32", vt, (4, 8))
        e(f"v_rcp_f32 v{vt}, v{vt}\nv_mul_f32 v{vS}, v{vS}, v{vGs}\nv_mul_f32 v{vS}, v{vS}, v{vt}")
        for k in range(16): e(f"v_mul_f32 v{vPl+k}, v{vS}, v{vPl+k}")
        for k in range(8): e(f"v_cvt_pk_bf16_f32 v{vA8+k}, v{vPl+2*k}, v{vPl+2*k+1}")
        wmf(False)
        for ti in range(6): e(f"v_add_f32 v{vD6+4*ti}, v{vD6+4*ti}, v{vD6+4*ti+2}\nv_add_f32 v{vD6+4*ti+1}, v{vD6+4*ti+1}, v{vD6+4*ti+3}")
        for u in range(3):
            a = vD6 + 8*u
            e(f"v_permlane32_swap_b32 v{a}, v{a+4}\nv_permlane32_swap_b32 v{a+1}, v{a+5}")
        for u in range(3):
            a = vD6 + 8*u
            e(f"v_add_f32 v{a}, v{a}, v{a+4}\nv_add_f32 v{a+1}, v{a+1}, v{a+5}")
        for u in range(3):
            a = vD6 + 8*u
            e(f"v_permlane16_swap_b32 v{a}, v{a+1}")
        for u in range(3):
            a = vD6 + 8*u
            e(f"v_add_f32 v{a}, v{a}, v{a+1}\nv_min_u32 v{a}, -2, v{a}")
            e(f"buffer_store_dword v{a}, v{vOo}, {s.sWS}, {[sT1,sT2,sT3][u]} offen sc1")
        e("s_branch L_B_done")
        e("L_B_red:")
        e(f"""s_sub_u32 {sT0}, {s.sW}, 6
        s_lshl_b32 {sT0}, {sT0}, 6
        s_add_u32 {sT0}, {sT0}, {sJ}
        s_cmp_ge_u32 {sT0}, 72
        s_cbranch_scc1 L_B_done
        s_lshl_b32 {sT1}, {sT0}, 12
        s_add_u32 {sT1}, {sT1}, {WS_OP}
        s_lshl_b32 {sT2}, {sT0}, 5
        v_and_b32 v{vt}, 3, v1
        v_lshlrev_b32 v{vt}, 2, v{vt}
        v_and_b32 v{vu}, 1, v2
        v_lshl_add_u32 v{vt}, v{vu}, 1, v{vt}
        v_lshrrev_b32 v{vu}, 1, v2
        v_add_lshl_u32 v{vXq}, v{vt}, v{vu}, 1""")
        s.spin_init()
        if s.hop1 in ("two", "any"):
            e(f"s_lshl_b32 {sT3}, {sJ}, 6\ns_add_u32 {sT3}, {sT3}, {sT1}\nv_mov_b32 v{vt}, 0")
            e(f"L_B_r0:\nbuffer_load_dword v{vS}, v{vt}, {s.sWS}, {sT3} offen sc1\ns_waitcnt vmcnt(0)\nv_cmp_eq_u32 vcc, -1, v{vS}")
            s.spin_retry("L_B_r0", 1)
        e("L_B_h2:")
        for q_ in range(4): e(f"buffer_load_dwordx4 {s.q(vCa+4*q_)}, v{vL16}, {s.sWS}, {sT1} offen offset:{q_*1024} sc1")
        e("s_waitcnt vmcnt(0)")
        s.sentinel_check(range(vCa, vCa+16), vu)
        s.spin_retry("L_B_h2", 0)
        s.st(10)
        for k in range(4): e(f"v_add_f32 v{vCa+k}, v{vCa+k}, v{vCa+4+k}\nv_add_f32 v{vCa+8+k}, v{vCa+8+k}, v{vCa+12+k}")
        for k in range(4): e(f"v_add_f32 v{vCa+k}, v{vCa+k}, v{vCa+8+k}")
        e(f"""v_permlane32_swap_b32 v{vCa}, v{vCa+1}
        v_permlane32_swap_b32 v{vCa+2}, v{vCa+3}
        v_add_f32 v{vCa}, v{vCa}, v{vCa+1}
        v_add_f32 v{vCa+2}, v{vCa+2}, v{vCa+3}
        v_permlane16_swap_b32 v{vCa}, v{vCa+2}
        v_add_f32 v{vCa}, v{vCa}, v{vCa+2}""")
        s.dppreduce("v_add_f32", vCa, (4, 8))
        e(f"""v_cvt_pk_bf16_f32 v{vCa}, v{vCa}, v{vCa}
        buffer_store_short v{vCa}, v{vXq}, {sOUT}, {sT2} offen
        s_cmp_lg_u32 {sT0}, 0
        s_cbranch_scc1 L_B_done
        v_mov_b32 v{vt}, 0
        s_mov_b64 exec, 1
        buffer_store_dword v{vTag}, v{vt}, {s.sWS}, 0 offen sc1
        s_mov_b64 exec, -1""")
        e("L_B_done:")
        s.st(11)
        s.stamps_out(12)
        e("L_end:\ns_endpgm")

    def text(s):
        s.entry(); s.roleA()
        if "now" in s.dbg.split(","): s.L = [x for x in s.L if not (x.startswith("buffer_load") and any(t in x for t in ("s[24:27]", "s[12:15]", "s[28:31]")))]
        if "nouk" in s.dbg.split(","): s.L = [x for x in s.L if not (x.startswith("buffer_load") and "s[28:31]" in x)]
        if "nows" in s.dbg.split(","): s.L = [x for x in s.L if not (x.startswith("buffer_") and x.endswith("sc1"))]
        if "nost" in s.dbg.split(","): s.L = [x for x in s.L if not (x.startswith("buffer_store") and x.endswith("sc1"))]
        if "plainA" in s.dbg.split(","): s.L = [(x[:-4] if (x.startswith("buffer_store") and x.endswith("sc1")) else x) for x in s.L]
        nA = len(s.L)
        s.roleB()
        if "nostall" in s.dbg.split(","):
            s.L = [x for x in s.L if not (x.startswith("buffer_store") and "s74" not in x)]
        for key, pat in (("nobp1", "@BP1"), ("noq", "@Q"), ("noap", "@AP")):
            if key in s.dbg.split(","): s.L = [x for x in s.L if pat not in x]
        s.L = [x.split(" ;@")[0] for x in s.L]
        if "nosc1" in s.dbg.split(","):
            s.L = [x for x in s.L if not (x.startswith("buffer_store") and x.endswith("sc1"))]
        if "plainB" in s.dbg.split(","):
            cut = max(i for i, x in enumerate(s.L) if x == "L_B_h1:")
            s.L = s.L[:nA] + [(x[:-4] if (x.startswith("buffer_store") and x.endswith("sc1")) else x) for x in s.L[nA:cut]] + s.L[cut:]
        lines = fix(s.L)
        body = "\n".join(("" if l.endswith(":") else "    ") + l for l in lines)
        body += "\nL_codeend:\n"
        return body

HEADER = """; Fused decode step: out = g * GQA(x) + (1 - g) * latent-KV attention(x), one persistent launch.
"""
def make(path, **kw):
    g = G(**kw)
    body = g.text()
    src = wrap(body, 256, 512, LDS_BYTES, vgpr=256, sgpr=102, accum=256, header=HEADER)
    src = src.replace("  .amdhsa_system_sgpr_workgroup_id_x 1\n", "  .amdhsa_system_sgpr_workgroup_id_x 1\n  .amdhsa_float_denorm_mode_32 3\n")
    open(path, "w").write(src)
    return build(path)

if __name__ == "__main__":
    kw = json.loads(sys.argv[2]) if len(sys.argv) > 2 else {}
    co = make(sys.argv[1], **kw)
    import subprocess
    r = subprocess.run(["llvm-readelf", "-S", co], capture_output=True, text=True).stdout
    print([l for l in r.splitlines() if ".text" in l])
```

```python
import sys, json, math
from asmlib import *
from hazard import fix
import gen as base
from gen import f2u, OOB, X, R1, LDS_BYTES, HEADER

WS_E, WS_F1, WS_FQ, WS_F2, WS_QAB, WS_QABS, WS_BS1, WS_BS2, WS_AP, WS_OP, WS_BP2, WS_BP1, WS_STAMP = \
    0x0, 0x1000, 0x10000, 0x18000, 0x500000, 0x80000, 0x90000, 0x94000, 0xA0000, 0xE0000, 0x140000, 0x200000, 0x400000
L_PQ, L_QOP, L_QBOP, L_CNT, L_QS = X, X + 12288, X + 12800, X + 13312, X + 13824
L_OC, L_MS = X + 16384, X + 24576
L_PB = X + 16384; L_MX = L_PB + 8704; L_GT = L_MX + 1024
L_OS = 98304
L_OCB = X + 16384; L_CP = L_OCB + 2048; L_CTX = L_CP + 8448
L_WO = 73728
DM = "row_mask:0xf bank_mask:0xf"

class G4(base.G):
    def __init__(s, hmap=0, force=None, pp=True, g7=4, s1=False, c1=3, bd2=False, swz=True, **kw):
        super().__init__(**kw); s.hmap = hmap; s.force = force; s.pp = pp; s.g7 = g7; s.s1 = s1; s.c1 = c1; s.bd2 = bd2; s.swz = swz
    def st(s, k):
        if s.bd2 and s.inB and k != 0: return
        super().st(k)
    def sd(s, k):
        if s.bd2: s.st2(k)
    def fl(s, sLoc, lines):
        if s.force == "sc1": s.e(lines.replace("@", "sc1")); return
        l = s.lab("L_fl")
        s.e(f"s_cmp_lg_u32 {sLoc}, 0\ns_cbranch_scc1 {l}")
        s.e(lines.replace("@", "sc1")); s.e(f"s_branch {l}d\n{l}:"); s.e(lines.replace("@", "")); s.e(f"{l}d:")
    def tagcalc(s, vE, vTag, st):
        s.e(f"s_mov_b32 {st}, 0x9e3779b1\ns_getreg_b32 s43, hwreg(HW_REG_XCC_ID, 0, 4)\ns_waitcnt vmcnt(0)")
        s.e(f"v_mul_lo_u32 v{vTag}, v{vE}, {st}\nv_add_u32 v{vTag}, 0x7f4a7c15, v{vTag}\nv_mov_b32 v{vTag+1}, s43")
    def red8(s, op, d, a):
        s.e(f"{op}_dpp v{d}, v{a}, v{a} quad_perm:[1,0,3,2] {DM}\n{op}_dpp v{d}, v{d}, v{d} quad_perm:[2,3,0,1] {DM}\n{op}_dpp v{d}, v{d}, v{d} row_half_mirror {DM}")
    def red4(s, op, d, a):
        s.e(f"{op}_dpp v{d}, v{a}, v{a} quad_perm:[1,0,3,2] {DM}\n{op}_dpp v{d}, v{d}, v{d} quad_perm:[2,3,0,1] {DM}")

    def roleA(s):
        e = s.e; W = s.W
        sWQ, sK, sV = "s[12:15]", "s[16:19]", "s[20:23]"
        s.post = list(s.common_post)
        s.srd(24, 7, 4718592); s.srd(12, 3, 4718592); s.srd(16, 1, 0x4000000); s.srd(28, 8, 4194304); s.srd(20, 2, 0x4000000)
        for p in s.post: e(p)
        s.lane_common(); s.consts()
        sGi, sB, sS, sMM, sKb, sLb, sH6, sT0, sT1, sT2, sHd, sDn = "s57","s58","s59","s60","s61","s62","s63","s49","s50","s51","s52","s42"
        e(f"""s_sub_u32 {sT0}, s2, 64
        s_and_b32 {sHd}, {sT0}, 7
        s_lshr_b32 {sMM}, {sT0}, 3
        s_cmp_ge_u32 {sMM}, 12
        s_cselect_b32 {sT1}, 1, 0
        s_cselect_b32 {sT2}, 12, 0
        s_sub_u32 {sMM}, {sMM}, {sT2}
        s_lshl_b32 {sGi}, {sHd}, 1
        s_add_u32 {sGi}, {sGi}, {sT1}""")
        if s.hmap == 0: e(f"s_mov_b32 {sHd}, {sGi}")
        else: e(f"s_lshl_b32 {sT1}, {sT1}, 3\ns_add_u32 {sHd}, {sHd}, {sT1}")
        e(f"""s_cmp_ge_u32 {sMM}, 6
        s_cselect_b32 {sB}, 1, 0
        s_cselect_b32 {sT2}, 6, 0
        s_sub_u32 {sS}, {sMM}, {sT2}
        s_lshl_b32 {sKb}, {sB}, 4
        s_add_u32 {sKb}, {sKb}, {sHd}
        s_lshl_b32 {sKb}, {sKb}, 21
        s_lshl_b32 {sHd}, {sHd}, 1
        s_add_u32 {sHd}, {sHd}, {sB}""")
        vKoff, vVoff, vKrd = 4, 8, 12
        vM, vL, vAl, vNm, vA2, vt, vu = 9, 10, 11, 16, 17, 18, 19
        vQ, vS, vP, vT0, vT1 = 20, 36, 44, 48, 52
        vKa, vAcc, vV = 56, 88, 120
        vWoff, vXoff, vXa, vQ2 = 16, 17, 44, 184
        vUK, vQB, vUa, vFa = 216, 232, 240, 248
        e(f"""v_lshlrev_b32 v{vWoff}, 4, v3
        v_lshl_or_b32 v{vWoff}, v2, 15, v{vWoff}
        v_bfe_u32 v{vXoff}, v1, 2, 1
        v_mul_u32_u24 v{vXoff}, 1152, v{vXoff}
        v_lshl_add_u32 v{vXoff}, v2, 3, v{vXoff}
        v_lshlrev_b32 v{vVoff}, 4, v1
        v_mov_b32 v{vFa}, {L_CNT}
        v_mov_b32 v{vKa+1}, 0""")
        def late_setup():
            e(f"""s_mul_i32 {sT0}, {sS}, 42
            s_cmp_eq_u32 {sS}, 5
            s_cselect_b32 {sT1}, 2, 0
            s_add_u32 {sT0}, {sT0}, {sT1}
            s_add_u32 {sT0}, {sT0}, {s.sW}
            s_lshl_b32 {sT0}, {sT0}, 13
            s_add_u32 {sKb}, {sKb}, {sT0}
            s_cmp_lt_u32 {sS}, 4
            s_cselect_b32 {sT0}, {2 + (5 - s.g7)}, {4 + (5 - s.g7)}
            s_cmp_lt_u32 {s.sW}, {sT0}
            s_cselect_b32 {sH6}, 6, 5
            s_cmp_eq_u32 {s.sW}, 7
            s_cselect_b32 {sH6}, {s.g7}, {sH6}
            s_lshl_b32 {sLb}, {s.sW}, 14
            s_mov_b32 {sDn}, 0
            v_lshlrev_b32 v{vt}, 2, v2
            v_xor_b32 v{vt}, v{vt}, v3
            v_lshlrev_b32 v{vt}, 4, v{vt}
            v_lshl_or_b32 v{vKoff}, v2, 8, v{vt}
            v_xor_b32 v{vKoff+1}, 16, v{vKoff}
            v_xor_b32 v{vKoff+2}, 32, v{vKoff}
            v_xor_b32 v{vKoff+3}, 48, v{vKoff}""")
        goff = lambda i: i*65536 - (8192*(5 - s.g7) if i == 5 else 0)
        def kload(i, j, w=None, force=False):
            if j % 4 == 0 or force:
                e(f"s_add_u32 {sT0}, {sKb}, {goff(i) + (j>>2)*4096}\ns_add_u32 m0, {sLb}, {(i&1)*8192 + (j>>2)*4096}")
            if w is not None: e(f"s_waitcnt vmcnt({w-1})")
            e(f"buffer_load_dwordx4 v{vKoff+(j&3)}, {sK}, {sT0} offen offset:{(j&3)*1024} nt lds")
        def vload(i, j, w=None, force=False):
            if j % 4 == 0 or force: e(f"s_add_u32 {sT1}, {sKb}, {goff(i) + (j>>2)*4096}")
            if w is not None: e(f"s_waitcnt vmcnt({w-1})")
            e(f"buffer_load_dwordx4 {s.q(vV+(i&1)*32+4*j)}, v{vVoff}, {sV}, {sT1} offen offset:{(j&3)*1024} nt")
        NPRE, NB = s.NPRE, s.NB
        seq = [(kload,0,j) for j in range(8)] + [(vload,0,j) for j in range(8)] + [(kload,1,j) for j in range(8)] + [(vload,1,j) for j in range(8)]
        def issue(a, b, wf, ck):
            for n_ in range(a, b):
                fn, i, j = seq[n_]
                fn(i, j, wf(n_, i), n_ == a)
                if ck and n_ >= 7 and (n_ - 7) % s.CK == 0 and n_ < 31:
                    l = s.lab("L_ck")
                    e(f"s_cmp_lg_u32 {sDn}, 0\ns_cbranch_scc1 {l}\ns_call_b64 s[40:41], L_A_chk\n{l}:")
        def ukload():
            e(f"""s_lshl_b32 {sT2}, {sS}, 3
            s_add_u32 {sT2}, {sT2}, {s.sW}
            s_lshl_b32 {sT2}, {sT2}, 17
            s_lshl_b32 {sT1}, {sHd}, 8
            s_add_u32 {sT2}, {sT2}, {sT1}""")
            for j in range(4):
                e(f"buffer_load_dwordx4 {s.q(vUK+4*j)}, v{vWoff}, s[28:31], {sT2} offen nt")
                if j < 3: e(f"s_add_u32 {sT2}, {sT2}, 8192")
        e(f"s_cmp_ge_u32 {s.sW}, 6\ns_cbranch_scc1 L_A_w67")
        e(f"""s_mul_i32 {sT0}, {sS}, 96
        s_lshl_b32 {sT1}, {s.sW}, 4
        s_add_u32 {sT0}, {sT0}, {sT1}
        s_lshl_b32 {sT1}, {sT0}, 1
        s_lshl_b32 {sT0}, {sT0}, 13
        s_lshl_b32 {sT2}, {sHd}, 8
        s_add_u32 {sT2}, {sT2}, {sT0}
        s_setprio 3
        s_waitcnt lgkmcnt(0)""")
        e(f"buffer_load_dwordx2 {s.q(vXa,2)}, v{vXoff}, {s.sX}, {sT1} offen")
        for jj in range(4):
            e(f"buffer_load_dwordx4 {s.q(vKa+4*jj)}, v{vWoff}, s[24:27], {sT2} offen nt")
            e(f"s_add_u32 {sT2}, {sT2}, {8192 if jj < 3 else (-3*8192) & 0xffffffff}")
        e("s_setprio 1")
        for jj in range(4):
            e(f"buffer_load_dwordx4 {s.q(vKa+16+4*jj)}, v{vWoff}, {sWQ}, {sT2} offen nt")
            if jj < 3: e(f"s_add_u32 {sT2}, {sT2}, 8192")
        e("s_setprio 0")
        late_setup()
        e("s_barrier")
        s.st(1)
        e(f"v_bfe_u32 v{vt}, v1, 4, 1\nv_lshlrev_b32 v{vt}, 9, v{vt}\nv_lshl_add_u32 v{vt}, v3, 5, v{vt}")
        e(f"s_lshl_b32 {sT2}, {s.sW}, 10\ns_add_u32 {sT2}, {sT2}, {L_PQ}\nv_add_u32 v{vt}, {sT2}, v{vt}\nv_mov_b32 v{vu}, 1")
        e("s_waitcnt vmcnt(4)")
        s.vlike(vAcc, vXa, [vKa+4*j for j in range(4)], (vT0, vT1), True)
        s.gather0(vAcc, vS)
        e(f"ds_write_b128 v{vt}, {s.q(vS)} offset:6144\nds_write_b128 v{vt}, {s.q(vS+4)} offset:6160\ns_waitcnt lgkmcnt(0)")
        e(f"s_mov_b64 exec, 1\nds_add_u32 v{vFa}, v{vu}\ns_mov_b64 exec, -1")
        s.st(3)
        ukload(); issue(0, NPRE, lambda n, i: None, False)
        e(f"s_waitcnt vmcnt({4+NPRE})")
        s.vlike(vAcc, vXa, [vKa+16+4*j for j in range(4)], (vT0, vT1), True)
        s.gather0(vAcc, vS)
        e(f"ds_write_b128 v{vt}, {s.q(vS)}\nds_write_b128 v{vt}, {s.q(vS+4)} offset:16\ns_waitcnt lgkmcnt(0)")
        e(f"s_mov_b64 exec, 1\nds_add_u32 v{vFa}, v{vu} offset:12\ns_mov_b64 exec, -1\ns_branch L_A_b1")
        e("L_A_w67:")
        late_setup()
        e(f"s_waitcnt lgkmcnt(0)\ns_cmp_eq_u32 {s.sW}, 7\ns_cbranch_scc1 L_A_svc\ns_barrier")
        s.code_prefetch(vt, vKa)
        ukload(); issue(0, NPRE, lambda n, i: None, False)
        e("L_A_b1:")
        s.st(2)
        issue(NPRE, 32, lambda n, i: s.W0 if n < NB else W[i], True)
        s.st(5)
        s.spin_init()
        e(f"""L_A_wq:
        s_cmp_lg_u32 {sDn}, 0
        s_cbranch_scc1 L_A_wq2
        s_call_b64 s[40:41], L_A_chk
        s_sub_u32 {s.sCnt}, {s.sCnt}, 1
        s_cbranch_scc1 L_end
        s_branch L_A_wq
        L_A_wq2:
        ds_read_b32 v{vt}, v{vFa} offset:16
        s_waitcnt lgkmcnt(0)
        v_cmp_eq_u32 vcc, 0, v{vt}""")
        s.spin_retry("L_A_wq2", 1)
        e(f"v_readfirstlane_b32 {sDn}, v{vt}\ns_branch L_A_main")
        vZ, vTag, vSn, vR = vKa+1, vKa+2, vKa+4, vAcc
        sA, sQS, sLoc, sTag, sQ = "s65", "s66", "s67", "s64", "s56"
        def sretry(label):
            ok = s.lab("L_ok")
            if "nodep" in s.dbg: return
            e(f"s_cbranch_scc0 {ok}\ns_sub_u32 {s.sCnt}, {s.sCnt}, 1\ns_cbranch_scc1 L_end\ns_branch {label}\n{ok}:")
        def ldswait(label, off, n):
            e(f"{label}:\nds_read_b32 v{vu}, v{vFa} offset:{off}\ns_waitcnt lgkmcnt(0)\nv_cmp_ne_u32 vcc, {n}, v{vu}")
            s.spin_retry(label, 0)
        vPb, vPa, vG = 184, 192, vV
        def sumpub(dst, ldsoff):
            for t in range(6): e(f"ds_read_b128 {s.q(vR+4*t)}, v{vL} offset:{ldsoff+t*1024}")
            e("s_waitcnt lgkmcnt(0)")
            s.sum6(vR)
            for k in range(4): e(f"v_mov_b32 v{dst+2*k}, v{vR+k}\nv_mov_b32 v{dst+2*k+1}, v{vTag}")
        def pub(src, off, flag):
            return "\n".join(f"buffer_store_dwordx4 {s.q(src+4*p)}, v{vVoff}, {s.sWS}, {sQ} offen offset:{off+1024*p} {flag}" for p in range(2))
        def gather(voff, so, off0):
            e(f"s_mov_b32 {sT1}, {so}")
            for t in range(6):
                for p in range(2): e(f"buffer_load_dwordx4 {s.q(vG+8*t+4*p)}, v{voff}, {s.sWS}, {sT1} offen offset:{off0 + p*1024} sc1")
                if t < 5: e(f"s_add_u32 {sT1}, {sT1}, 4096")
        def tagcheck():
            for k in range(24): e(f"v_xor_b32 v{vG+2*k+1}, v{vG+2*k+1}, v{vTag}")
            e(f"v_or3_b32 v{vu}, v{vG+1}, v{vG+3}, v{vG+5}")
            for k in range(3, 23, 2): e(f"v_or3_b32 v{vu}, v{vu}, v{vG+2*k+1}, v{vG+2*k+3}")
            e(f"v_or_b32 v{vu}, v{vu}, v{vG+47}\nv_cmp_ne_u32 vcc, 0, v{vu}")
        def gsum(off):
            for k in range(4):
                r = lambda t: vG + 8*t + 2*k
                e(f"v_add_f32 v{r(0)}, v{r(0)}, v{r(1)}\nv_add_f32 v{r(2)}, v{r(2)}, v{r(3)}\nv_add_f32 v{r(4)}, v{r(4)}, v{r(5)}\nv_add_f32 v{r(0)}, v{r(0)}, v{r(2)}\nv_add_f32 v{r(0)}, v{r(0)}, v{r(4)}")
            e(f"v_cvt_pk_bf16_f32 v{vG}, v{vG}, v{vG+2}\nv_cvt_pk_bf16_f32 v{vG+1}, v{vG+4}, v{vG+6}\nds_write_b64 v{vAl}, {s.q(vG,2)} offset:{off}")
        e(f"""L_A_svc:
        s_setprio 3
        s_load_dword {sTag}, s[8:9], 0
        ds_write2_b32 v{vFa}, v{vZ}, v{vZ} offset0:0 offset1:1
        ds_write2_b32 v{vFa}, v{vZ}, v{vZ} offset0:2 offset1:3
        ds_write_b32 v{vFa}, v{vZ} offset:16
        s_mul_i32 {sT0}, {sGi}, 12
        s_add_u32 {sA}, {sT0}, {sMM}
        s_lshl_b32 {sT1}, {sA}, 7
        s_add_u32 {sT1}, {sT1}, {WS_F1 + 64*128}
        s_getreg_b32 s43, hwreg(HW_REG_XCC_ID, 0, 4)
        s_waitcnt lgkmcnt(0)
        s_mul_i32 {sTag}, {sTag}, 0x9e3779b1
        s_add_u32 {sTag}, {sTag}, 0x7f4a7c15
        v_mov_b32 v{vTag}, {sTag}
        v_mov_b32 v{vTag+1}, s43
        s_mov_b64 exec, 1
        buffer_store_dwordx2 {s.q(vTag,2)}, v{vZ}, {s.sWS}, {sT1} offen sc1
        s_mov_b64 exec, -1
        s_barrier
        v_mov_b32 v{vSn}, -1
        v_mov_b32 v{vSn+1}, -1
        v_mov_b32 v{vSn+2}, -1
        v_mov_b32 v{vSn+3}, -1
        s_lshl_b32 {sQ}, {sA}, 12
        s_add_u32 {sQ}, {sQ}, {WS_QAB}
        v_bfe_u32 v{vM}, v1, 4, 1
        v_lshlrev_b32 v{vM}, 15, v{vM}
        v_lshl_add_u32 v{vM}, v3, 4, v{vM}
        v_add_u32 v{vL}, {L_PQ}, v{vVoff}
        s_lshl_b32 {sQS}, {sHd}, 2
        s_add_u32 {sQS}, {sQS}, {sS}
        s_lshl_b32 {sQS}, {sQS}, 8
        s_add_u32 {sQS}, {sQS}, {WS_QABS}
        v_min_u32 v{vt}, 15, v1
        s_add_u32 {sT2}, {sT0}, 64
        v_add_u32 v{vu}, {sT2}, v{vt}
        s_lshl_b32 {sT2}, {sGi}, 2
        s_sub_u32 {sT2}, {sT2}, 12
        v_add_u32 v{vAl}, {sT2}, v{vt}
        v_cmp_gt_u32 vcc, 12, v{vt}
        v_cndmask_b32 v{vt}, v{vAl}, v{vu}, vcc
        v_lshlrev_b32 v{vQ}, 7, v{vt}
        s_mov_b32 s68, {WS_F1}
        s_lshl_b32 {sT0}, {sT0}, 12
        s_add_u32 {sT0}, {sT0}, {WS_QAB}
        s_mul_i32 s74, {sB}, {6*4096}
        s_add_u32 s74, s74, {sT0}
        s_lshl_b32 {sT2}, {sB}, 9
        s_add_u32 s75, {sT0}, {sT2}
        v_lshrrev_b32 v{vA2}, 5, v1
        v_mul_u32_u24 v{vA2}, {6*4096}, v{vA2}
        v_and_b32 v{vu}, 31, v1
        v_lshl_add_u32 v{vA2}, v{vu}, 4, v{vA2}
        v_lshlrev_b32 v{vAl}, 3, v1
        v_add_u32 v{vAl}, {L_QOP}, v{vAl}
        s_mov_b32 {sLoc}, 1""")
        s.st(1)
        ukload()
        s.spin_init()
        ldswait("L_A_wc", 0, 6)
        sumpub(vPb, 6144)
        e(pub(vPb, 2048, ""))
        s.st(2)
        def flagstep(after):
            if "nodep" in s.dbg: e(f"s_mov_b32 {sLoc}, 2"); return
            l = s.lab("L_fs")
            e(f"""s_cmp_lg_u32 {sLoc}, 1
            s_cbranch_scc1 {l}
            v_cmp_ne_u32 s[54:55], v{vS}, v{vTag}
            s_cmp_lg_u64 s[54:55], 0
            s_cbranch_scc1 {l}
            v_cmp_ne_u32 s[54:55], v{vS+1}, v{vTag+1}
            s_cmp_eq_u64 s[54:55], 0
            s_cselect_b32 {sLoc}, {2 if s.force != "sc1" else 0}, 0
            s_cmp_lg_u32 {sLoc}, 0
            s_cbranch_scc1 {l}""")
            e(after)
            e(f"{l}:")
        fload = f"buffer_load_dwordx2 {s.q(vS,2)}, v{vQ}, {s.sWS}, s68 offen sc1"
        e(f"L_A_bq:\n{fload}")
        gather(vVoff, "s74", 2048)
        e("s_waitcnt vmcnt(0)")
        flagstep(pub(vPb, 2048, "sc1"))
        tagcheck()
        s.spin_retry("L_A_bq", 0)
        s.st(4)
        gsum(512)
        e(f"v_mov_b32 v{vt}, 1\ns_waitcnt lgkmcnt(0)\nds_write_b32 v{vFa}, v{vt} offset:4")
        e("s_call_b64 s[40:41], L_A_qfn")
        ldswait("L_A_wc2", 12, 6)
        sumpub(vPa, 0)
        e(f"s_cmp_lg_u32 {sLoc}, 1\ns_cbranch_scc1 L_A_lk\nL_A_vf:\n{fload}\ns_waitcnt vmcnt(0)")
        flagstep(pub(vPb, 2048, "sc1"))
        e(f"s_cmp_eq_u32 {sLoc}, 1")
        sretry("L_A_vf")
        e("L_A_lk:")
        s.fl(sLoc, pub(vPa, 0, "@"))
        s.st(3)
        e(f"""v_lshlrev_b32 v{vt}, 12, v2
        v_lshl_add_u32 v{vu}, v3, 4, v{vt}
        s_lshr_b32 s53, {sHd}, 1
        s_lshl_b32 s53, s53, 14
        s_add_u32 s53, s53, {WS_AP}
        s_lshl_b32 {sT2}, {sS}, 1
        s_add_u32 {sT2}, {sT2}, {sB}
        s_lshl_b32 s54, {sT2}, 2
        s_add_u32 s54, s54, s53
        s_lshl_b32 {sT2}, {sT2}, 8
        s_add_u32 s53, s53, {sT2}""")
        s.fl(sLoc, f"""buffer_store_dwordx4 {s.q(vSn)}, v{vu}, {s.sWS}, s53 offen @
        buffer_store_dword v{vSn}, v{vt}, {s.sWS}, s54 offen offset:3072 @""")
        issue(0, 8, lambda n, i: None, False)
        e(f"s_cmp_ge_u32 {sS}, 4\ns_cbranch_scc1 L_A_nq2")
        e(f"L_A_ws:\nds_read_b32 v{vu}, v{vFa} offset:8\ns_waitcnt lgkmcnt(0)\nv_cmp_ne_u32 vcc, 8, v{vu}")
        s.spin_retry("L_A_ws", 0)
        e(f"v_add_u32 v{vt}, {L_QS}, v{vVoff}\ns_mov_b32 exec_hi, 0\nds_read_b128 {s.q(vQ2)}, v{vt}\ns_waitcnt lgkmcnt(0)")
        for k in range(4): e(f"v_min_u32 v{vQ2+k}, -2, v{vQ2+k}")
        e(f"buffer_store_dwordx4 {s.q(vQ2)}, v{vM}, {s.sWS}, {sQS} offen sc1\ns_mov_b64 exec, -1\nL_A_nq2:")
        s.st(5)
        e("L_A_aq:")
        gather(vA2, "s75", 0)
        e("s_waitcnt vmcnt(0)")
        tagcheck()
        s.spin_retry("L_A_aq", 0)
        gsum(0)
        e(f"s_or_b32 {sDn}, {sLoc}, 1\nv_mov_b32 v{vt}, {sDn}\ns_waitcnt lgkmcnt(0)\nds_write_b32 v{vFa}, v{vt} offset:16\ns_setprio 0")
        issue(8, 32, lambda n, i: s.WS, False)
        e(f"s_lshl_b32 {sT2}, {sA}, 7\ns_add_u32 {sT2}, {sT2}, {WS_F2}\ns_waitcnt vmcnt(24)\ns_mov_b64 exec, 1")
        s.fl(sLoc, f"buffer_store_dword v{vTag}, v{vZ}, {s.sWS}, {sT2} offen @")
        e("s_mov_b64 exec, -1\ns_branch L_A_main")
        e(f"""L_A_chk:
        ds_read_b32 v{vt}, v{vFa} offset:4
        s_waitcnt lgkmcnt(0)
        v_readfirstlane_b32 {sDn}, v{vt}
        s_cmp_lg_u32 {sDn}, 0
        s_cbranch_scc1 L_A_qfn
        s_setpc_b64 s[40:41]
        L_A_qfn:""")
        s.st(6)
        e(f"""s_cmp_ge_u32 {sS}, 4
        s_cbranch_scc1 L_A_nqa
        v_lshlrev_b32 v{vt}, 4, v3
        v_add_u32 v{vt}, {L_QBOP}, v{vt}
        ds_read_b128 {s.q(vQB)}, v{vt}
        ds_read_b128 {s.q(vQB+4)}, v{vt} offset:256
        v_and_b32 v{vu}, 1, v1
        v_cmp_eq_u32 vcc, 0, v{vu}
        v_lshlrev_b32 v{vu}, 8, v{vu}
        v_lshl_add_u32 v{vu}, v2, 3, v{vu}
        s_lshl_b32 {sT2}, {s.sW}, 5
        s_add_u32 {sT2}, {sT2}, {L_QS}
        v_add_u32 v{vu}, {sT2}, v{vu}
        v_mov_b32 v{vt}, 1
        s_waitcnt vmcnt(8) lgkmcnt(0)""")
        for k in range(4):
            for bb in range(2):
                for j in range(4):
                    c = "0" if k == 0 else f"v{vUa+4*bb+j}"
                    e(f"v_dot2_f32_bf16 v{vUa+4*bb+j}, v{vUK+4*j+k}, v{vQB+4*bb+k}, {c}")
        for r in (8, 4, 2, 1):
            for k in range(8): e(f"v_add_f32_dpp v{vUa+k}, v{vUa+k}, v{vUa+k} row_ror:{r} {DM}")
        for k in range(4): e(f"v_cvt_pk_bf16_f32 v{vQB+k}, v{vUa+2*k}, v{vUa+2*k+1}")
        e(f"""v_cndmask_b32 v{vQB}, v{vQB+2}, v{vQB}, vcc
        v_cndmask_b32 v{vQB+1}, v{vQB+3}, v{vQB+1}, vcc
        ds_write_b64 v{vu}, {s.q(vQB,2)}
        s_waitcnt lgkmcnt(0)
        s_mov_b64 exec, 1
        ds_add_u32 v{vFa}, v{vt} offset:8
        s_mov_b64 exec, -1
        L_A_nqa:""")
        s.st(11)
        e("s_setpc_b64 s[40:41]")
        e("L_A_main:")
        e(f"""v_xor_b32 v{vt}, v2, v3
        v_lshlrev_b32 v{vt}, 4, v{vt}
        v_and_b32 v{vu}, 3, v3
        v_lshl_or_b32 v{vt}, v{vu}, 10, v{vt}
        v_lshrrev_b32 v{vu}, 2, v3
        v_lshl_or_b32 v{vt}, v{vu}, 8, v{vt}
        v_add_u32 v{vKrd}, {sLb}, v{vt}
        v_xor_b32 v{vKrd+1}, 64, v{vKrd}
        v_xor_b32 v{vKrd+2}, 0x80, v{vKrd}
        v_xor_b32 v{vKrd+3}, 0xc0, v{vKrd}
        v_and_b32 v{vu}, 1, v{vu}
        v_lshlrev_b32 v{vu}, 8, v{vu}
        v_lshl_add_u32 v{vu}, v2, 4, v{vu}
        v_add_u32 v{vu}, {L_QOP}, v{vu}""")
        for kk in range(4): e(f"ds_read_b128 {s.q(vQ+4*kk)}, v{vu} offset:{kk*64}")
        def cond_wait(g, n):
            l = s.lab("L_cw")
            e(f"s_cmp_lg_u32 {sH6}, {g}\ns_cbranch_scc1 {l}\ns_waitcnt vmcnt({n})\n{l}:")
        def cond_issue(fn, i):
            if i > 5: return
            if i < s.g7:
                for j in range(8): fn(i, j, W[i])
                return
            l = s.lab("L_ci"); e(f"s_cmp_le_u32 {sH6}, {i}\ns_cbranch_scc1 {l}")
            for j in range(8): fn(i, j, W[i] if i < 5 else None)
            e(f"{l}:")
        sC = s.sC
        for i in range(6):
            if i >= s.g7: e(f"s_cmp_le_u32 {sH6}, {i}\ns_cbranch_scc1 L_A_fin")
            e(f"s_waitcnt vmcnt({24 if i < 5 else 8})")
            if s.g7 - 1 <= i < 5: cond_wait(i + 1, 8)
            for blk in range(2):
                for kk in range(4):
                    e(f"ds_read_b128 {s.q(vKa+16*blk+4*kk)}, v{vKrd+kk} offset:{(i&1)*8192+blk*4096}")
            e("s_waitcnt lgkmcnt(0)")
            for kk in range(4):
                for blk in range(2):
                    c = "0" if kk == 0 else s.q(vS+4*blk)
                    e(f"v_mfma_f32_16x16x32_bf16 {s.q(vS+4*blk)}, {s.q(vKa+16*blk+4*kk)}, {s.q(vQ+4*kk)}, {c}")
            cond_issue(kload, i + 2)
            e(f"v_max3_f32 v{vt}, v{vS}, v{vS+1}, v{vS+2}\nv_max3_f32 v{vt}, v{vt}, v{vS+3}, v{vS+4}\nv_max3_f32 v{vt}, v{vt}, v{vS+5}, v{vS+6}")
            if i == 0: e(f"v_max_f32 v{vt}, v{vt}, v{vS+7}")
            else: e(f"v_max3_f32 v{vt}, v{vt}, v{vS+7}, v{vM}")
            s.xreduce("v_max_f32", vt, vu)
            e(f"v_mul_f32 v{vNm}, {sC}, v{vt}")
            if i > 0: e(f"v_fma_f32 v{vAl}, v{vM}, {sC}, -v{vNm}\nv_exp_f32 v{vAl}, v{vAl}")
            e(f"v_mov_b32 v{vM}, v{vt}")
            for k in range(8): e(f"v_fma_f32 v{vS+k}, v{vS+k}, {sC}, -v{vNm}")
            if i > 0:
                e(f"v_mov_b32_dpp v{vA2}, v{vAl} row_newbcast:0 row_mask:0x5 bank_mask:0xf\nv_mov_b32_dpp v{vA2}, v{vAl} row_newbcast:4 row_mask:0xa bank_mask:0xf")
            for k in range(8): e(f"v_exp_f32 v{vS+k}, v{vS+k}")
            if i > 0:
                for k in range(8): e(f"v_mul_f32 v{vAcc+4*k}, v{vA2}, v{vAcc+4*k}")
            for k in range(4): e(f"v_cvt_pk_bf16_f32 v{vP+k}, v{vS+2*k}, v{vS+2*k+1}")
            e(f"v_add_f32 v{vS}, v{vS}, v{vS+1}\nv_add_f32 v{vS+2}, v{vS+2}, v{vS+3}\nv_add_f32 v{vS+4}, v{vS+4}, v{vS+5}\nv_add_f32 v{vS+6}, v{vS+6}, v{vS+7}")
            e(f"v_add_f32 v{vS}, v{vS}, v{vS+2}\nv_add_f32 v{vS+4}, v{vS+4}, v{vS+6}\nv_add_f32 v{vS}, v{vS}, v{vS+4}")
            if i == 0: e(f"v_mov_b32 v{vL}, v{vS}")
            else: e(f"v_fma_f32 v{vL}, v{vL}, v{vAl}, v{vS}")
            e(f"s_waitcnt vmcnt({0 if i == 5 else 16 if i + 2 >= s.g7 else 24})")
            if s.g7 - 1 <= i < 5: cond_wait(i + 1, 0)
            s.vlike(vAcc, vP, [vV+(i&1)*32+4*j for j in range(8)], (vT0, vT1), i == 0)
            cond_issue(vload, i + 2)
            if i == 0: s.st(7)
        e("L_A_fin:")
        s.st(8)
        s.xreduce("v_add_f32", vL, vu)
        e(f"""v_mul_f32 v{vM}, {sC}, v{vM}
        v_bfe_u32 v{vt}, v1, 4, 1
        v_lshlrev_b32 v{vt}, 9, v{vt}
        v_lshl_add_u32 v{vt}, v3, 5, v{vt}
        s_lshl_b32 {sT2}, {s.sW}, 10
        s_add_u32 {sT2}, {sT2}, {L_OC}
        v_add_u32 v{vt}, {sT2}, v{vt}
        v_bfe_u32 v{vu}, v1, 2, 1
        v_lshlrev_b32 v{vu}, 5, v{vu}
        s_lshl_b32 {sT2}, {s.sW}, 2
        s_add_u32 {sT2}, {sT2}, {L_MS}
        v_add_u32 v{vu}, {sT2}, v{vu}
        ds_write2_b32 v{vu}, v{vM}, v{vL} offset0:0 offset1:16""")
        s.gather0(vAcc, vS)
        e(f"ds_write_b128 v{vt}, {s.q(vS)}\nds_write_b128 v{vt}, {s.q(vS+4)} offset:16")
        e(f"""s_lshl_b32 {sT2}, {s.sW}, 8
        s_add_u32 {sT2}, {sT2}, {L_OC}
        v_lshl_add_u32 v{vt}, v1, 2, {sT2}
        s_lshr_b32 {sT2}, {s.sW}, 1
        s_lshl_b32 {sT2}, {sT2}, 5
        s_add_u32 {sT2}, {sT2}, {L_MS}
        v_and_b32 v{vu}, 7, v1
        v_lshl_add_u32 v{vu}, v{vu}, 2, {sT2}
        s_lshr_b32 {sT0}, {sHd}, 1
        s_lshl_b32 {sT0}, {sT0}, 2
        s_add_u32 {sT0}, {sT0}, {s.sW}
        s_lshl_b32 {sT0}, {sT0}, 12
        s_add_u32 {sT0}, {sT0}, {WS_AP}
        s_lshl_b32 {sT2}, {sS}, 1
        s_add_u32 {sT2}, {sT2}, {sB}
        s_lshl_b32 {sT1}, {sT2}, 2
        s_add_u32 {sT1}, {sT1}, {sT0}
        s_lshl_b32 {sT2}, {sT2}, 8
        s_add_u32 {sT0}, {sT0}, {sT2}
        s_and_b32 {sDn}, {sDn}, 2
        s_waitcnt lgkmcnt(0)
        s_barrier""")
        s.st(9)
        e(f"s_cmp_ge_u32 {s.sW}, 4\ns_cbranch_scc1 L_A_done")
        e(f"ds_read2_b32 {s.q(vP,2)}, v{vu} offset0:0 offset1:16")
        for k in range(8): e(f"ds_read_b32 v{vS+k}, v{vt} offset:{k*1024}")
        e("s_waitcnt lgkmcnt(8)")
        s.red8("v_max_f32", vM, vP)
        e(f"v_sub_f32 v{vP}, v{vP}, v{vM}\nv_exp_f32 v{vP}, v{vP}\nv_mul_f32 v{vL}, v{vP}, v{vP+1}")
        s.red8("v_add_f32", vL, vL)
        e(f"""v_rcp_f32 v{vAl}, v{vL}
        v_log_f32 v{vL}, v{vL}
        v_lshlrev_b32 v{vt}, 2, v1
        v_mul_f32 v{vP}, v{vP}, v{vAl}
        v_add_f32 v{vL}, v{vL}, v{vM}
        s_waitcnt lgkmcnt(0)
        v_mul_f32_dpp v{vA2}, v{vP}, v{vS} row_newbcast:0 {DM}""")
        for k in range(1, 8): e(f"v_fmac_f32_dpp v{vA2}, v{vP}, v{vS+k} row_newbcast:{k} {DM}")
        e(f"v_min_u32 v{vL}, -2, v{vL}\nv_min_u32 v{vA2}, -2, v{vA2}")
        s.fl(sDn, f"""buffer_store_dword v{vA2}, v{vt}, {s.sWS}, {sT0} offen @
        s_mov_b64 exec, 1
        buffer_store_dword v{vL}, v{vt}, {s.sWS}, {sT1} offen offset:3072 @
        s_mov_b64 exec, -1""")
        e("L_A_done:")
        s.st(10)
        s.stamps_out(11)
        e("s_endpgm")

    def roleB(s):
        e = s.e
        sCK, sUV, sWO2, sWO, sG, sOUT = "s[20:23]","s[24:27]","s[28:31]","s[32:35]","s[36:39]","s[40:43]"
        sOUT = "s[12:15]"
        e("L_B:"); s.inB = True
        if s.noB: e("s_endpgm")
        s.post = list(s.common_post)
        s.srd(20, 6, 16777216); s.srd(24, 9, 4194304)
        s.srd(28, 10, 4718592); s.srd(32, 4, 4718592); s.srd(36, 11, 1152); s.srd(12, 12, 2304)
        for p in s.post: e(p)
        s.lane_common(); s.consts()
        sH, sHalf, sJ, sAb, sXq, sCb, sHo, sTl, sX8, sY, sFb, sLoc = "s57","s58","s59","s60","s61","s62","s63","s64","s16","s17","s18","s19"
        sT0, sT1, sT2, sT3, sCh = "s49","s50","s51","s52","s67"
        e(f"""s_and_b32 {sX8}, s2, 7
        s_lshr_b32 {sY}, s2, 3
        s_and_b32 {sAb}, {sX8}, 1
        s_lshr_b32 {sXq}, {sX8}, 1
        s_lshl_b32 {sCb}, {sAb}, 23
        s_lshl_b32 {sT2}, {sXq}, 21
        s_add_u32 {sCb}, {sCb}, {sT2}
        s_lshl_b32 {sT2}, {sY}, 18
        s_add_u32 {sCb}, {sCb}, {sT2}
        s_lshl_b32 {sT2}, {s.sW}, 13
        s_add_u32 {sCb}, {sCb}, {sT2}
        s_lshl_b32 {sFb}, {sX8}, 3
        s_add_u32 {sFb}, {sFb}, {sY}
        s_and_b32 {sHalf}, {sY}, 1""")
        if s.hmap == 0: e(f"s_mov_b32 {sJ}, {sFb}")
        else: e(f"s_lshr_b32 {sT0}, {sY}, 2\ns_lshl_b32 {sT0}, {sT0}, 3\ns_add_u32 {sT0}, {sT0}, {sX8}\ns_lshl_b32 {sT0}, {sT0}, 2\ns_and_b32 {sJ}, {sY}, 3\ns_add_u32 {sJ}, {sJ}, {sT0}")
        e(f"s_lshr_b32 {sH}, {sJ}, 1\ns_lshl_b32 {sHo}, {sH}, 8")
        vL16, vt, vu, vD, vUo = 4, 5, 6, 7, 8
        vG0, vG1, vTag = 12, 13, 14
        vCrd, vTr = 16, 20
        vMq, vLq, vMp, vAq, vAp, vNm, vPw, vPr, vXw, vXq, vXp = 24,25,26,27,28,29,30,31,9,10,11
        vS, vT0, vT1, vT3 = 32, 40, 252, 220
        vP, vCa, vO, vUV, vQ = 44, 60, 92, 124, 156
        e(f"""v_lshlrev_b32 v{vL16}, 4, v1
        s_and_b32 {sT2}, {s.sW}, 1
        s_mul_i32 {sT2}, {sT2}, 48
        v_xor_b32 v{vD}, {sT2}, v{vL16}""")
        def tile_ld(soff, slot_s=None, dst=None, w=None):
            for j in range(8):
                if j == 0 and slot_s: e(f"s_mov_b32 m0, {slot_s}")
                if j == 4:
                    if slot_s: e(f"s_add_u32 m0, {slot_s}, 4096")
                    e(f"s_add_u32 {sT3}, {soff}, 4096")
                e(f"v_xor_b32 v{vu}, {(4*(j&3)+2*(j>>2))<<4}, v{vD}")
                if w: e(f"s_waitcnt vmcnt({w-1})")
                if slot_s: e(f"buffer_load_dwordx4 v{vu}, {sCK}, {soff if j<4 else sT3} offen offset:{(j&3)*1024} nt lds")
                else: e(f"buffer_load_dwordx4 {s.q(dst+4*j)}, v{vu}, {sCK}, {soff if j<4 else sT3} offen offset:{(j&3)*1024} nt")
        t3n = [0]
        def t3_load(n):
            for _ in range(n):
                j = t3n[0]; t3n[0] += 1
                if j % 4 == 0: e(f"s_add_u32 {sTl}, {sCb}, {3*65536 + (j>>2)*4096}")
                e(f"v_xor_b32 v{vUo}, {(4*(j&3)+2*(j>>2))<<4}, v{vD}")
                e(f"buffer_load_dwordx4 {s.q(vT3+4*j)}, v{vUo}, {sCK}, {sTl} offen offset:{(j&3)*1024} nt")
        uvn = [0]
        def uv_load(n):
            for _ in range(n):
                j = uvn[0]; uvn[0] += 1
                e(f"buffer_load_dwordx4 {s.q(vUV+4*j)}, v{vUo}, {sUV}, {sTl} offen nt")
                if j < 7: e(f"s_add_u32 {sTl}, {sTl}, 8192")
        def first_loads(bw, prio=True):
            e(f"s_lshl_b32 {sT2}, {s.sW}, 13")
            tile_ld(sCb, sT2, None, bw[0])
            e(f"s_add_u32 {sT0}, {sCb}, 65536\ns_add_u32 {sT2}, {sT2}, {R1}")
            tile_ld(sT0, sT2, None, bw[1])
            if prio: e("s_setprio 1")
            e(f"s_add_u32 {sT0}, {sCb}, {2*65536}")
            tile_ld(sT0, None, vUV, bw[2])
            if prio: e("s_setprio 0")
            if not s.t3s:
                e(f"s_add_u32 {sT0}, {sCb}, {3*65536}")
                tile_ld(sT0, None, vT3, bw[2])
        e(f"s_waitcnt lgkmcnt(0)\ns_cmp_eq_u32 {s.sW}, 7\ns_cbranch_scc1 L_B_svc")
        e(f"s_setprio 2\ns_cmp_lg_u32 {s.sW}, 6\ns_cbranch_scc1 L_B_w05")
        s.code_prefetch(vt, vCa)
        e(f"""v_and_b32 v{vt}, 31, v1
        v_mul_u32_u24 v{vt}, 36, v{vt}
        v_lshrrev_b32 v{vu}, 5, v1
        v_mul_u32_u24 v{vu}, 1152, v{vu}
        v_add_u32 v{vu}, v{vu}, v{vt}
        buffer_load_dwordx4 {s.q(vQ)}, v{vu}, {s.sX}, 0 offen
        buffer_load_dwordx4 {s.q(vQ+4)}, v{vu}, {s.sX}, 0 offen offset:16
        buffer_load_dword v{vQ+8}, v{vu}, {s.sX}, 0 offen offset:32
        buffer_load_dwordx4 {s.q(vQ+12)}, v{vt}, {sG}, 0 offen
        buffer_load_dwordx4 {s.q(vQ+16)}, v{vt}, {sG}, 0 offen offset:16
        buffer_load_dword v{vQ+20}, v{vt}, {sG}, 0 offen offset:32
        v_mov_b32 v{vS}, 0
        s_waitcnt vmcnt(0)""")
        for k in range(9): e(f"v_dot2c_f32_bf16 v{vS}, v{vQ+k}, v{vQ+12+k}")
        s.dppreduce("v_add_f32", vS, (8, 4, 2, 1))
        s.xreduce("v_add_f32", vS, vt, (16,))
        e(f"""v_mul_f32 v{vS}, {hex(f2u(-math.log2(math.e)))}, v{vS}
        v_exp_f32 v{vS}, v{vS}
        v_add_f32 v{vS}, 1.0, v{vS}
        v_rcp_f32 v{vG0}, v{vS}
        L_B_w05:""")
        first_loads(s.BW)
        s.st(1)
        e("s_branch L_B_bv")
        vE, vZ, vSn = vCa, vCa+1, vCa+4
        e(f"""L_B_svc:
        s_setprio 3
        v_mov_b32 v{vZ}, 0
        s_load_dword s64, s[8:9], 0
        v_mov_b32 v{vSn}, -1
        v_mov_b32 v{vSn+1}, -1
        v_mov_b32 v{vSn+2}, -1
        v_mov_b32 v{vSn+3}, -1
        s_lshl_b32 {sT0}, {sFb}, 12
        s_add_u32 {sT0}, {sT0}, {WS_OP}""")
        for i in range(4): e(f"buffer_store_dwordx4 {s.q(vSn)}, v{vL16}, {s.sWS}, {sT0} offen offset:{i*1024} sc1")
        e(f"s_cmp_ge_u32 {sFb}, 8\ns_cbranch_scc1 L_B_nc\ns_add_u32 {sT0}, {sT0}, {64*4096}")
        for i in range(4): e(f"buffer_store_dwordx4 {s.q(vSn)}, v{vL16}, {s.sWS}, {sT0} offen offset:{i*1024} sc1")
        e("L_B_nc:")
        if s.s1:
            e(f"s_lshl_b32 {sT0}, {sX8}, 18\ns_lshl_b32 {sT1}, {sY}, 10\ns_add_u32 {sT0}, {sT0}, {sT1}\ns_add_u32 {sT0}, {sT0}, {WS_BP1}\ns_mov_b32 {sT1}, 32\nL_B_cl:")
            e(f"buffer_store_dwordx4 {s.q(vSn)}, v{vL16}, {s.sWS}, {sT0} offen\ns_add_u32 {sT0}, {sT0}, 8192\ns_sub_u32 {sT1}, {sT1}, 1\ns_cmp_lg_u32 {sT1}, 0\ns_cbranch_scc1 L_B_cl")
        e(f"""s_lshl_b32 {sT0}, {sHalf}, 15
        s_lshl_b32 {sT1}, {sH}, 10
        s_add_u32 {sT0}, {sT0}, {sT1}
        s_add_u32 {sT0}, {sT0}, {WS_QABS}
        buffer_store_dwordx4 {s.q(vSn)}, v{vL16}, {s.sWS}, {sT0} offen sc1
        s_lshl_b32 {sT1}, {sFb}, 7
        s_add_u32 {sT1}, {sT1}, {WS_F1}""")
        e(f"""s_getreg_b32 s43, hwreg(HW_REG_XCC_ID, 0, 4)
        s_waitcnt lgkmcnt(0)
        s_mul_i32 s64, s64, 0x9e3779b1
        s_add_u32 s64, s64, 0x7f4a7c15
        v_mov_b32 v{vTag}, s64
        v_mov_b32 v{vTag+1}, s43
        s_waitcnt vmcnt(0)
        s_mov_b64 exec, 1
        buffer_store_dwordx2 {s.q(vTag,2)}, v{vZ}, {s.sWS}, {sT1} offen sc1
        s_mov_b64 exec, -1""")
        s.st(1)
        e(f"s_lshl_b32 {sT2}, {s.sW}, 13")
        tile_ld(sCb, sT2, None, None)
        e(f"s_add_u32 {sT0}, {sCb}, 65536\ns_add_u32 {sT2}, {sT2}, {R1}")
        tile_ld(sT0, sT2, None, None)
        e(f"v_lshlrev_b32 v{vt}, 7, v1\ns_mov_b32 {sT1}, {WS_F1}\nbuffer_load_dwordx2 {s.q(vS,2)}, v{vt}, {s.sWS}, {sT1} offen sc1")
        e(f"s_add_u32 {sT0}, {sCb}, {2*65536}")
        tile_ld(sT0, None, vUV, None)
        if not s.t3s:
            e(f"s_add_u32 {sT0}, {sCb}, {3*65536}")
            tile_ld(sT0, None, vT3, None)
        s.spin_init()
        e(f"s_waitcnt vmcnt({8 if s.t3s else 16})\ns_branch L_B_vc\nL_B_vf:\nbuffer_load_dwordx2 {s.q(vS,2)}, v{vt}, {s.sWS}, {sT1} offen sc1\ns_waitcnt vmcnt(0)\nL_B_vc:\nv_cmp_ne_u32 vcc, v{vS}, v{vTag}")
        s.spin_retry("L_B_vf")
        e(f"""v_cmp_ne_u32 vcc, v{vS+1}, v{vTag+1}
        s_lshl_b32 {sT0}, {sX8}, 3
        s_lshr_b64 s[54:55], vcc, {sT0}
        s_and_b32 s54, s54, 0xff
        s_cselect_b32 s54, {1 if "nodep" in s.dbg else 0}, 1
        v_mov_b32 v{vTag+1}, s54""")
        s.st(3)
        e("s_setprio 0\nL_B_bv:")
        s.st(4)
        e("s_barrier")
        e(f"""s_lshl_b32 {sT0}, {sAb}, 15
        s_lshl_b32 {sT1}, {s.sW}, 12
        s_add_u32 {sT0}, {sT0}, {sT1}
        s_add_u32 {sT0}, {sT0}, {WS_QABS}
        s_lshl_b32 {sT2}, {s.sW}, 6
        s_and_b32 {sT2}, {sT2}, 0xff
        v_xor_b32 v{vt}, {sT2}, v{vL16}
        s_add_u32 {sT1}, {sT1}, {X}
        v_add_u32 v{vt}, {sT1}, v{vt}""")
        s.spin_init()
        e("L_B_qp:")
        for q_ in range(4): e(f"buffer_load_dwordx4 {s.q(vCa+4*q_)}, v{vL16}, {s.sWS}, {sT0} offen offset:{q_*1024} sc1")
        e("s_waitcnt vmcnt(0)")
        s.sentinel_check(range(vCa, vCa+16), vu)
        s.spin_retry("L_B_qp", s.qsl)
        for q_ in range(4):
            if q_: e(f"v_xor_b32 v{vu}, {q_<<4}, v{vt}")
            e(f"ds_write_b128 v{vu if q_ else vt}, {s.q(vCa+4*q_)} offset:{q_*1024}")
        e(f"""s_lshr_b32 {sT0}, {s.sW}, 2
        s_and_b32 {sT1}, {s.sW}, 3
        v_xor_b32 v{vt}, v2, v3
        v_lshlrev_b32 v{vt}, 4, v{vt}
        v_lshl_or_b32 v{vt}, v3, 10, v{vt}
        s_lshl_b32 {sT2}, {sT0}, 14
        s_add_u32 {sT2}, {sT2}, {X}
        v_add_u32 v{vTr}, {sT2}, v{vt}
        v_xor_b32 v{vTr+1}, 64, v{vTr}
        v_xor_b32 v{vTr+2}, 0x80, v{vTr}
        v_xor_b32 v{vTr+3}, 0xc0, v{vTr}
        s_waitcnt lgkmcnt(0)""")
        s.st(6)
        e("s_barrier")
        for kk in range(16): e(f"ds_read_b128 {s.q(vQ+4*kk)}, v{vTr+(kk&3)} offset:{(kk>>2)*256}")
        e(f"""s_mov_b32 {sT3}, 0x78
        v_lshrrev_b32 v{vt}, 2, v3
        v_lshlrev_b32 v{vt}, 1, v{vt}
        v_bfe_u32 v{vt}, {sT3}, v{vt}, 2
        v_and_b32 v{vu}, 3, v3
        v_lshl_or_b32 v{vt}, v{vu}, 2, v{vt}
        v_xor_b32 v{vt}, v{vt}, v2
        v_lshlrev_b32 v{vt}, 4, v{vt}
        v_lshl_or_b32 v{vt}, v3, 10, v{vt}
        s_lshl_b32 {sT2}, {sT1}, 14
        v_add_u32 v{vCrd}, {sT2}, v{vt}
        v_xor_b32 v{vCrd+1}, 64, v{vCrd}
        v_xor_b32 v{vCrd+2}, 0x80, v{vCrd}
        v_xor_b32 v{vCrd+3}, 0xc0, v{vCrd}
        s_lshl_b32 {sT2}, {sT0}, 4
        v_add_u32 v{vt}, {sT2}, v3
        v_mul_u32_u24 v{vPw}, 272, v{vt}
        v_lshl_add_u32 v{vPw}, v2, 3, v{vPw}
        s_lshl_b32 {sT2}, {sT1}, 5
        s_add_u32 {sT2}, {sT2}, {L_PB}
        v_add_u32 v{vPw}, {sT2}, v{vPw}
        v_lshlrev_b32 v{vXq}, 4, v{vt}
        v_add_u32 v{vXq}, {L_MX}, v{vXq}
        s_lshl_b32 {sT2}, {sT1}, 2
        v_add_u32 v{vXw}, {sT2}, v{vXq}
        v_and_b32 v{vt}, 31, v1
        v_lshlrev_b32 v{vXp}, 4, v{vt}
        v_add_u32 v{vXp}, {L_MX}, v{vXp}
        v_mul_u32_u24 v{vPr}, 272, v{vt}
        v_lshrrev_b32 v{vu}, 5, v1
        v_lshl_add_u32 v{vPr}, v{vu}, 4, v{vPr}
        v_add_u32 v{vPr}, {L_PB}, v{vPr}
        s_waitcnt lgkmcnt(0)
        v_bfe_u32 v{vt}, v1, 2, 2
        v_lshl_add_u32 v{vTr+1}, v{vu}, 3, v{vt}
        v_lshlrev_b32 v{vTr+1}, 10, v{vTr+1}
        v_lshlrev_b32 v{vt}, 2, v{vt}
        v_mad_u32_u24 v{vt}, v{vu}, 3, v{vt}
        v_bfe_u32 v{vu}, v1, 4, 1
        v_lshlrev_b32 v{vu}, 1, v{vu}
        v_bfe_u32 v{vTr+2}, v1, 1, 1
        v_add_u32 v{vu}, v{vu}, v{vTr+2}
        s_lshl_b32 {sT2}, {s.sW}, 3
        v_add_u32 v{vu}, {sT2}, v{vu}
        v_xor_b32 v{vu}, v{vu}, v{vt}
        v_lshl_or_b32 v{vTr}, v{vu}, 4, v{vTr+1}
        v_and_b32 v{vu}, 1, v1
        v_lshl_or_b32 v{vTr}, v{vu}, 3, v{vTr}
        v_xor_b32 v{vTr+1}, 64, v{vTr}
        v_xor_b32 v{vTr+2}, 32, v{vTr}
        v_xor_b32 v{vTr+3}, 0x60, v{vTr}""")
        def w_dma(srd, ldsbase, a, b):
            for j in range(a, b):
                if j % 4 == 0 or j == a: e(f"s_add_u32 m0, s66, {ldsbase + (j>>2)*4096}\ns_add_u32 s68, s65, {(j>>2)*4096}")
                if s.swz:
                    e(f"v_add_u32 v{vAq}, {8*j*7282}, v{vMq}\nv_bfe_u32 v{vAq}, v{vAq}, 17, 2\nv_lshlrev_b32 v{vAq}, 5, v{vAq}\nv_xor_b32 v{vAq}, v{vAq}, v{vL16}")
                e(f"buffer_load_dwordx4 v{vAq if s.swz else vL16}, {srd}, s68 offen offset:{(j&3)*1024} nt lds")
        def tog(r):
            for k in range(4): e(f"v_xor_b32 v{r+k}, 0x10000, v{r+k}")
        def stile(tl):
            if s.bdet: s.st2(5*tl)
            e("s_barrier")
            if s.bdet: s.st2(5*tl+1)
            uv = (lambda n: uv_load(n) if uvn[0] < s.uvs else None) if tl == 1 else (lambda n: t3_load(n)) if s.t3s else (lambda n: None)
            if tl == 0:
                l = s.lab("L_gt")
                e(f"""s_cmp_lt_u32 {s.sW}, 6
                s_cbranch_scc1 {l}
                s_cmp_eq_u32 {s.sW}, 6
                s_cbranch_scc1 {l}a
                v_mov_b32 v{vt}, {L_GT+8}
                ds_write_b64 v{vt}, {s.q(vTag,2)}
                s_branch {l}
                {l}a:
                v_lshrrev_b32 v{vt}, 5, v1
                v_lshlrev_b32 v{vt}, 2, v{vt}
                v_add_u32 v{vt}, {L_GT}, v{vt}
                ds_write_b32 v{vt}, v{vG0}
                {l}:""")
            def crd(n):
                if n == 16: tog(vCrd)
                kk = n & 15
                e(f"ds_read_b128 {s.q(vCa+4*(n&7))}, v{vCrd+(kk&3)} offset:{(kk>>2)*256}")
                if n == 31: tog(vCrd)
            for n in range(8): crd(n)
            uv(1)
            for h4 in range(8):
                e(f"s_waitcnt lgkmcnt({4 if h4 < 7 else 0})")
                for n in range(4*h4, 4*h4+4):
                    d = vS + 4*(n >> 4)
                    c = "0" if (n & 15) == 0 else s.q(d)
                    e(f"v_mfma_f32_16x16x32_bf16 {s.q(d)}, {s.q(vCa+4*(n&7))}, {s.q(vQ+4*(n&15))}, {c}")
                if h4 < 6:
                    for n in range(4*h4+8, 4*h4+12): crd(n)
                if h4 in (1, 3, 5): uv(1)
            e(f"v_max3_f32 v{vt}, v{vS}, v{vS+1}, v{vS+2}\nv_max3_f32 v{vt}, v{vt}, v{vS+3}, v{vS+4}\nv_max3_f32 v{vt}, v{vt}, v{vS+5}, v{vS+6}\nv_max_f32 v{vt}, v{vt}, v{vS+7}")
            s.xreduce("v_max_f32", vt, vu)
            e(f"ds_write_b32 v{vXw}, v{vt}\ns_waitcnt lgkmcnt(0)\ns_barrier")
            if s.bdet: s.st2(5*tl+2)
            if tl == 0: e(f"v_mov_b32 v{vt}, {L_GT}\nds_read_b128 {s.q(vG0)}, v{vt}")
            e(f"ds_read_b128 {s.q(vT0)}, v{vXq}\nds_read_b128 {s.q(vT1)}, v{vXp}")
            uv(1)
            e("s_waitcnt lgkmcnt(1)")
            e(f"v_max3_f32 v{vt}, v{vT0}, v{vT0+1}, v{vT0+2}")
            if tl == 0: e(f"v_max_f32 v{vMq}, v{vt}, v{vT0+3}\nv_readfirstlane_b32 {sLoc}, v{vTag+1}\nv_mul_f32 v{vNm}, {s.sC}, v{vMq}")
            else:
                e(f"""v_max3_f32 v{vt}, v{vt}, v{vT0+3}, v{vMq}
                v_mul_f32 v{vNm}, {s.sC}, v{vt}
                v_fma_f32 v{vAq}, v{vMq}, {s.sC}, -v{vNm}
                v_exp_f32 v{vAq}, v{vAq}""")
            for k in range(8): e(f"v_fma_f32 v{vS+k}, v{vS+k}, {s.sC}, -v{vNm}")
            for k in range(8): e(f"v_exp_f32 v{vS+k}, v{vS+k}")
            for k in range(4): e(f"v_cvt_pk_bf16_f32 v{vT0+k}, v{vS+2*k}, v{vS+2*k+1}")
            e(f"ds_write_b64 v{vPw}, {s.q(vT0,2)}\nds_write_b64 v{vPw}, {s.q(vT0+2,2)} offset:128")
            for k in range(4): e(f"v_add_f32 v{vS+k}, v{vS+k}, v{vS+4+k}")
            e(f"v_add_f32 v{vS}, v{vS}, v{vS+1}\nv_add_f32 v{vS+2}, v{vS+2}, v{vS+3}")
            e(f"s_waitcnt lgkmcnt(2)\nv_max3_f32 v{vt}, v{vT1}, v{vT1+1}, v{vT1+2}")
            if tl == 0:
                e(f"v_add_f32 v{vLq}, v{vS}, v{vS+2}\nv_max_f32 v{vMp}, v{vt}, v{vT1+3}")
            else:
                e(f"""v_add_f32 v{vS}, v{vS}, v{vS+2}
                v_max3_f32 v{vt}, v{vt}, v{vT1+3}, v{vMp}
                v_fma_f32 v{vLq}, v{vLq}, v{vAq}, v{vS}
                v_sub_f32 v{vAp}, v{vMp}, v{vt}
                v_mul_f32 v{vAp}, {s.sC}, v{vAp}
                v_exp_f32 v{vAp}, v{vAp}
                v_mov_b32 v{vMp}, v{vt}""")
                s.xreduce("v_add_f32", vLq, vu)
                e(f"ds_write_b32 v{vXw}, v{vLq} offset:512")
                for k in range(32): e(f"v_mul_f32 v{vO+k}, v{vAp}, v{vO+k}")
            e("s_waitcnt lgkmcnt(0)\ns_barrier")
            if s.bdet: s.st2(5*tl+3)
            def prd(ks):
                if ks == 4: tog(vTr)
                e(f"ds_read_b128 {s.q(vP+4*(ks&3))}, v{vPr} offset:{ks*32}")
                for mb in range(2):
                    for t in range(2):
                        e(f"ds_read_b64_tr_b16 {s.q(vCa+8*(ks&3)+4*mb+2*t,2)}, v{vTr+2*t+mb} offset:{(ks&3)*16384+t*4096}")
                if ks == 7: tog(vTr)
            for ks in range(4): prd(ks)
            uv(1)
            for ks in range(8):
                e(f"s_waitcnt lgkmcnt({min(15, 5*(7-ks))})")
                for mb in range(2):
                    c = "0" if (tl == 0 and ks == 0) else s.q(vO+16*mb,16)
                    e(f"v_mfma_f32_32x32x16_bf16 {s.q(vO+16*mb,16)}, {s.q(vCa+8*(ks&3)+4*mb)}, {s.q(vP+4*(ks&3))}, {c}")
                if ks < 4: prd(ks+4)
                if ks in (1, 3): uv(1)
            e("s_barrier")
            if s.bdet: s.st2(5*tl+4)
        stile(0)
        e(f"s_lshl_b32 {sT2}, {s.sW}, 13\nv_add_u32 v{vt}, {sT2}, v{vL16}\nv_add_u32 v{vNm}, {R1}, v{vt}")
        for j in range(8): e(f"ds_write_b128 v{vt}, {s.q(vUV+4*j)} offset:{j*1024}")
        for j in range(8):
            if s.t3s: e(f"s_waitcnt vmcnt({7-j})")
            e(f"ds_write_b128 v{vNm}, {s.q(vT3+4*j)} offset:{j*1024}")
        e(f"""v_lshrrev_b32 v{vUo}, 3, v1
        v_lshlrev_b32 v{vUo}, 16, v{vUo}
        v_and_b32 v{vu}, 7, v1
        v_lshl_add_u32 v{vUo}, v{vu}, 4, v{vUo}
        s_lshl_b32 {sTl}, {s.sW}, 19
        s_add_u32 {sTl}, {sTl}, {sHo}
        s_lshl_b32 {sT3}, {sHalf}, 7
        s_add_u32 {sTl}, {sTl}, {sT3}
        s_waitcnt lgkmcnt(0)""")
        stile(1)
        s.st(7); s.sd(1)
        e(f"""ds_read_b128 {s.q(vT0)}, v{vXp} offset:512
        v_and_b32 v{vt}, 31, v1
        v_mul_u32_u24 v{vt}, 1040, v{vt}
        v_lshrrev_b32 v{vu}, 5, v1
        v_lshl_add_u32 v{vt}, v{vu}, 3, v{vt}
        s_lshl_b32 {sT2}, {s.sW}, 7
        s_add_u32 {sT2}, {sT2}, {L_OS}
        v_add_u32 v{vt}, {sT2}, v{vt}
        s_waitcnt lgkmcnt(0)
        v_add_f32 v{vT0}, v{vT0}, v{vT0+1}
        v_add_f32 v{vT0+2}, v{vT0+2}, v{vT0+3}
        v_add_f32 v{vT0}, v{vT0}, v{vT0+2}
        v_rcp_f32 v{vAp}, v{vT0}
        v_log_f32 v{vT0}, v{vT0}
        v_mov_b32 v{vT0+1}, v{vTag}
        v_fma_f32 v{vT0}, v{vMp}, {s.sC}, v{vT0}""")
        for k in range(32): e(f"v_mul_f32 v{vO+k}, v{vAp}, v{vO+k}")
        for k in range(16): e(f"v_cvt_pk_bf16_f32 v{vCa+k}, v{vO+2*k}, v{vO+2*k+1}")
        for mb in range(2):
            for q4 in range(4): e(f"ds_write_b64 v{vt}, {s.q(vCa+8*mb+2*q4,2)} offset:{mb*64+q4*16}")
        e(f"""s_mul_i32 {sT2}, {s.sW}, 4160
        s_add_u32 {sT2}, {sT2}, {L_OS}
        v_add_u32 v{vt}, {sT2}, v{vL16}
        s_lshl_b32 {sT0}, {sX8}, 18
        s_lshl_b32 {sT1}, {s.sW}, 15
        s_add_u32 {sT0}, {sT0}, {sT1}
        s_lshl_b32 {sT1}, {sY}, 10
        s_add_u32 {sT0}, {sT0}, {sT1}
        s_add_u32 {sT0}, {sT0}, {WS_BP1}
        s_mul_i32 s65, {sJ}, 73728
        s_mul_i32 s66, {s.sW}, 9216
        s_add_u32 s65, s65, s66
        s_mul_i32 {sCh}, {s.sW}, 72
        v_lshrrev_b32 v{vMq}, 3, v1
        v_add_u32 v{vMq}, {sCh}, v{vMq}
        v_mul_u32_u24 v{vMq}, 7282, v{vMq}
        s_waitcnt lgkmcnt(0)
        s_barrier""")
        for q_ in range(4): e(f"ds_read_b128 {s.q(vCa+4*q_)}, v{vt} offset:{q_*1040}")
        e(f"""v_and_b32 v{vu}, 31, v1
        v_lshlrev_b32 v{vt}, 6, v{vu}
        v_lshlrev_b32 v{vXw}, 3, v{vu}
        s_lshl_b32 s53, {sX8}, 11
        s_add_u32 s53, s53, {WS_BS1}
        s_lshl_b32 {sT1}, {sY}, 3
        s_add_u32 {sT1}, {sT1}, s53
        s_lshl_b32 {sT2}, {sY}, 8
        s_add_u32 s53, s53, {sT2}
        s_waitcnt lgkmcnt(0)""")
        rows = lambda f: "\n".join(f"buffer_store_dwordx4 {s.q(vCa+4*q_)}, v{vL16}, {s.sWS}, {sT0} offen {f}" + (f"\ns_add_u32 {sT0}, {sT0}, 8192" if q_ < 3 else "") for q_ in range(4))
        stat = lambda f, l: f"s_cmp_lg_u32 {s.sW}, 7\ns_cbranch_scc1 {l}\nbuffer_store_dwordx2 {s.q(vT0,2)}, v{vt}, {s.sWS}, {sT1} offen {f}\n{l}:"
        fast = s.s1 and s.force != "sc1"
        if fast:
            e(f"s_cmp_eq_u32 {sLoc}, 0\ns_cbranch_scc1 L_B_far")
            e(stat("", "L_B_n0")); e(rows("")); e("s_barrier\ns_branch L_B_n1\nL_B_far:")
            e(rows("sc1")); e("s_waitcnt vmcnt(0)\ns_barrier"); e(stat("sc1", "L_B_n1"))
        else:
            s.fl(sLoc, rows("@")); e("s_waitcnt vmcnt(0)\ns_barrier")
            l = s.lab("L_n"); e(f"s_cmp_lg_u32 {s.sW}, 7\ns_cbranch_scc1 {l}")
            s.fl(sLoc, f"buffer_store_dwordx2 {s.q(vT0,2)}, v{vt}, {s.sWS}, {sT1} offen @"); e(f"{l}:")
        s.sd(2)
        uv_load(8 - uvn[0])
        s.st(8)
        e(f"""v_lshrrev_b32 v{vu}, 5, v1
        v_and_b32 v{vt}, 31, v1
        v_lshlrev_b32 v{vt}, 4, v{vt}
        v_lshl_add_u32 v{vXq}, v{vu}, 10, v{vt}
        v_lshl_add_u32 v{vXp}, v{vu}, 3, v{vt}
        s_lshr_b32 {sT1}, {s.sW}, 1
        s_lshl_b32 {sT2}, {sY}, 2
        s_add_u32 {sT2}, {sT2}, {sT1}
        s_lshl_b32 {sT0}, {sX8}, 5
        s_add_u32 {sT0}, {sT0}, {sT2}
        s_lshl_b32 {sT0}, {sT0}, 13
        s_and_b32 {sT3}, {s.sW}, 1
        s_lshl_b32 {sT3}, {sT3}, 9
        s_add_u32 {sT0}, {sT0}, {sT3}
        s_add_u32 {sT0}, {sT0}, {WS_BP1}
        s_add_u32 s56, {sT0}, 4096
        s_mov_b32 s42, {sLoc if fast else 0}""")
        s.spin_init()
        w_dma(sWO2, 0, 0, 9)
        s.sd(3)
        e(f"L_B_p1:\nbuffer_load_dwordx2 {s.q(vS,2)}, v{vXw}, {s.sWS}, s53 offen sc1\ns_waitcnt vmcnt(0)\nv_cmp_ne_u32 vcc, v{vS+1}, v{vTag}")
        s.spin_retry("L_B_p1", 0)
        s.sd(4)
        for t in range(4): e(f"buffer_load_dwordx4 {s.q(vCa+4*t)}, v{vXq}, {s.sWS}, {sT0 if t < 2 else 's56'} offen offset:{(t&1)*2048} sc1")
        w_dma(sWO, L_WO, 0, s.c1)
        e(f"""s_lshl_b32 {sT2}, {sT2}, 3
        s_lshl_b32 {sT0}, {sAb}, 2
        s_add_u32 {sT2}, {sT2}, {sT0}
        s_add_u32 {sT2}, {sT2}, {sXq}
        s_lshl_b32 {sT2}, {sT2}, 10
        s_add_u32 {sT2}, {sT2}, {sT3}
        s_add_u32 {sT2}, {sT2}, {WS_BP2}
        s_lshl_b32 {sT1}, {sT1}, 5
        v_lshl_add_u32 v{vu}, v{vu}, 2, {sT1}""")
        s.red8("v_max_f32", vt, vS)
        e(f"v_sub_f32 v{vS}, v{vS}, v{vt}\nv_exp_f32 v{vS}, v{vS}")
        s.red8("v_add_f32", vT0, vS)
        e(f"v_rcp_f32 v{vAp}, v{vT0}\nv_log_f32 v{vT0}, v{vT0}\nv_mul_f32 v{vS}, v{vS}, v{vAp}\nv_add_f32 v{vT0}, v{vT0}, v{vt}")
        for t in range(4): e(f"ds_bpermute_b32 v{vP+t}, v{vu}, v{vS} offset:{8*t}")
        e(f"s_waitcnt vmcnt({s.c1}) lgkmcnt(0)")
        def wsum(rows, ws, acc):
            for t, (r, w_) in enumerate(zip(rows, ws)):
                for k in range(4):
                    e(f"v_lshlrev_b32 v{vT1}, 16, v{r+k}\nv_and_b32 v{vT1+1}, 0xffff0000, v{r+k}")
                    if t == 0: e(f"v_mul_f32 v{acc+2*k}, v{w_}, v{vT1}\nv_mul_f32 v{acc+2*k+1}, v{w_}, v{vT1+1}")
                    else: e(f"v_fmac_f32 v{acc+2*k}, v{w_}, v{vT1}\nv_fmac_f32 v{acc+2*k+1}, v{w_}, v{vT1+1}")
            for k in range(4): e(f"v_permlane32_swap_b32 v{acc+k}, v{acc+4+k}")
            for k in range(4): e(f"v_add_f32 v{acc+k}, v{acc+k}, v{acc+4+k}")
        s.sd(5)
        wsum([vCa+4*t for t in range(4)], [vP+t for t in range(4)], vO)
        e(f"""v_cvt_pk_bf16_f32 v{vO}, v{vO}, v{vO+1}
        v_cvt_pk_bf16_f32 v{vO+1}, v{vO+2}, v{vO+3}
        buffer_store_dwordx2 {s.q(vO,2)}, v{vXp}, {s.sWS}, {sT2} offen sc1""")
        w_dma(sWO, L_WO, s.c1, s.c1 + 2)
        e(f"""s_waitcnt vmcnt(2)
        v_lshlrev_b32 v{vt}, 3, v1
        s_lshl_b32 {sT0}, {sY}, 5
        s_lshl_b32 {sT1}, {sAb}, 2
        s_add_u32 {sT0}, {sT0}, {sT1}
        s_add_u32 {sT0}, {sT0}, {sXq}
        s_lshl_b32 {sT0}, {sT0}, 3
        s_add_u32 {sT0}, {sT0}, {WS_BS2}
        s_barrier
        s_cmp_lg_u32 {s.sW}, 7
        s_cbranch_scc1 L_B_n2
        s_mov_b64 exec, 0x01010101
        buffer_store_dwordx2 {s.q(vT0,2)}, v{vt}, {s.sWS}, {sT0} offen sc1
        s_mov_b64 exec, -1
        L_B_n2:""")
        s.st(5); s.sd(6)
        w_dma(sWO, L_WO, s.c1 + 2, 9)
        s.sd(7)
        e(f"""v_and_b32 v{vXw}, 7, v1
        v_lshlrev_b32 v{vXw}, 3, v{vXw}
        s_lshl_b32 {sT0}, {sH}, 6
        s_add_u32 {sT0}, {sT0}, {WS_BS2}
        v_min_u32 v{vXq}, 11, v1
        v_lshlrev_b32 v{vXq}, 7, v{vXq}
        s_lshr_b32 {sT1}, {sFb}, 2
        s_mul_i32 {sT1}, {sT1}, {12*128}
        s_add_u32 {sT1}, {sT1}, {WS_F2}""")
        s.spin_init()
        e(f"""L_B_p2:
        buffer_load_dwordx2 {s.q(vS,2)}, v{vXw}, {s.sWS}, {sT0} offen sc1
        buffer_load_dword v{vu}, v{vXq}, {s.sWS}, {sT1} offen sc1
        s_waitcnt vmcnt(0)
        v_cmp_ne_u32 vcc, v{vS+1}, v{vTag}
        v_cmp_ne_u32 s[54:55], v{vu}, v{vTag}
        s_or_b64 vcc, vcc, s[54:55]""")
        s.spin_retry("L_B_p2", 1)
        s.sd(8)
        e(f"""v_lshlrev_b32 v{vu}, 4, v3
        v_lshl_or_b32 v{vt}, v2, 10, v{vu}
        s_lshr_b32 {sT1}, {s.sW}, 2
        s_lshl_b32 {sT0}, {sH}, 1
        s_add_u32 {sT0}, {sT0}, {sT1}
        s_lshl_b32 {sT0}, {sT0}, 12
        s_and_b32 {sT2}, {s.sW}, 3
        s_lshl_b32 {sT2}, {sT2}, 8
        s_add_u32 {sT0}, {sT0}, {sT2}
        s_add_u32 {sT0}, {sT0}, {WS_BP2}
        buffer_load_dwordx4 {s.q(vCa)}, v{vt}, {s.sWS}, {sT0} offen sc1
        s_lshl_b32 {sT0}, {sT1}, 10
        s_add_u32 {sT0}, {sT0}, {sT2}
        s_add_u32 {sT0}, {sT0}, {L_OCB}
        v_lshl_add_u32 v{vXp}, v2, 2, v{vu}
        v_add_u32 v{vXp}, {sT0}, v{vXp}
        s_lshl_b32 {sT1}, {sT1}, 4
        v_lshl_add_u32 v{vu}, v2, 2, {sT1}""")
        s.red4("v_max_f32", vt, vS)
        e(f"v_sub_f32 v{vS}, v{vS}, v{vt}\nv_exp_f32 v{vS}, v{vS}")
        s.red4("v_add_f32", vt, vS)
        e(f"v_rcp_f32 v{vt}, v{vt}\nv_mul_f32 v{vS}, v{vS}, v{vt}\nds_bpermute_b32 v{vP}, v{vu}, v{vS}\ns_waitcnt vmcnt(0) lgkmcnt(0)")
        s.sd(9)
        wsum([vCa], [vP], vO)
        e(f"""v_permlane16_swap_b32 v{vO}, v{vO+2}
        v_permlane16_swap_b32 v{vO+1}, v{vO+3}
        v_add_f32 v{vO}, v{vO}, v{vO+2}
        v_add_f32 v{vO+1}, v{vO+1}, v{vO+3}
        v_cvt_pk_bf16_f32 v{vO}, v{vO}, v{vO+1}
        ds_write_b32 v{vXp}, v{vO}""")
        e(f"""v_bfe_u32 v{vt}, v1, 2, 1
        v_lshlrev_b32 v{vt}, 10, v{vt}
        v_lshl_add_u32 v{vt}, v2, 5, v{vt}
        v_bfe_u32 v{vu}, v1, 3, 1
        v_lshl_add_u32 v{vt}, v{vu}, 4, v{vt}
        s_lshl_b32 {sT0}, {s.sW}, 7
        s_add_u32 {sT0}, {sT0}, {L_OCB}
        v_add_u32 v{vt}, {sT0}, v{vt}
        v_lshrrev_b32 v{vXq}, 5, v1
        v_cmp_eq_u32 vcc, v{vXq}, v{vu}
        v_lshlrev_b32 v{vXq}, 8, v2
        v_and_b32 v{vu}, 7, v1
        v_lshl_add_u32 v{vXq}, v{vu}, 5, v{vXq}
        s_lshl_b32 {sT0}, {s.sW}, 10
        v_add_u32 v{vXq}, {sT0}, v{vXq}
        v_mov_b32 v{vu}, 8192
        v_cndmask_b32 v{vXq}, v{vu}, v{vXq}, vcc
        v_add_u32 v{vXq}, {L_CP}, v{vXq}
        s_waitcnt lgkmcnt(0)
        s_barrier
        ds_read_b128 {s.q(vP)}, v{vt}
        s_waitcnt lgkmcnt(0)""")
        s.vlike(vO, vP, [vUV+4*j for j in range(8)], (vT0, vT1), True)
        s.gather0(vO, vP)
        e(f"ds_write_b128 v{vXq}, {s.q(vP)}\nds_write_b128 v{vXq}, {s.q(vP+4)} offset:16\ns_waitcnt lgkmcnt(0)\ns_barrier")
        e(f"""s_cmp_lg_u32 {s.sW}, 0
        s_cbranch_scc1 L_B_nx
        v_lshrrev_b32 v{vu}, 5, v1
        v_and_b32 v{vt}, 31, v1
        v_lshlrev_b32 v{vt}, 4, v{vt}
        v_lshl_add_u32 v{vt}, v{vu}, 12, v{vt}
        v_add_u32 v{vt}, {L_CP}, v{vt}""")
        for p in range(8): e(f"ds_read_b128 {s.q(vCa+4*p)}, v{vt} offset:{p*512}")
        e(f"""v_bfe_u32 v{vu}, v1, 4, 1
        v_cmp_eq_u32 vcc, 0, v{vu}
        v_cndmask_b32 v{vS}, v{vG1}, v{vG0}, vcc
        v_sub_f32 v{vS}, 1.0, v{vS}
        v_cmp_gt_u32 vcc, 32, v1
        v_lshlrev_b32 v{vt}, 3, v1
        v_add_u32 v{vt}, {L_CTX}, v{vt}
        s_waitcnt lgkmcnt(0)""")
        for k in range(4):
            for p in range(4): e(f"v_add_f32 v{vCa+8*p+k}, v{vCa+8*p+k}, v{vCa+8*p+4+k}")
            e(f"v_add_f32 v{vCa+k}, v{vCa+k}, v{vCa+8+k}\nv_add_f32 v{vCa+16+k}, v{vCa+16+k}, v{vCa+24+k}\nv_add_f32 v{vCa+k}, v{vCa+k}, v{vCa+16+k}")
        for k in range(4): s.xreduce("v_add_f32", vCa+k, vu, (32,))
        for k in range(4): e(f"v_mul_f32 v{vCa+k}, v{vS}, v{vCa+k}")
        e(f"""v_cvt_pk_bf16_f32 v{vCa}, v{vCa}, v{vCa+1}
        v_cvt_pk_bf16_f32 v{vCa+1}, v{vCa+2}, v{vCa+3}
        v_cndmask_b32 v{vCa}, 0, v{vCa}, vcc
        v_cndmask_b32 v{vCa+1}, 0, v{vCa+1}, vcc
        ds_write_b64 v{vt}, {s.q(vCa,2)}
        L_B_nx:
        s_waitcnt lgkmcnt(0)
        s_barrier""")
        s.st(9); s.sd(10)
        e(f"s_cmp_ge_u32 {s.sW}, 6\ns_cbranch_scc1 L_B_red")
        vD6, vWb, vA8, vPl = vO, vQ, vP, vCa
        e(f"""v_min_u32 v{vt}, 2, v3
        v_lshlrev_b32 v{vt}, 7, v{vt}
        v_lshl_add_u32 v{vt}, v2, 3, v{vt}
        v_add_u32 v{vt}, {L_CTX}, v{vt}
        v_lshrrev_b32 v{vu}, 2, v1
        v_mul_u32_u24 v{vu}, 1152, v{vu}
        v_and_b32 v{vXq}, 3, v1
        v_lshl_add_u32 v{vu}, v{vXq}, 3, v{vu}
        s_mul_i32 {sT0}, {s.sW}, 192
        v_bfe_u32 v{vXq}, v1, 3, 2
        v_lshlrev_b32 v{vXq}, 5, v{vXq}""")
        vWa = vCrd
        for ti in range(6):
            if s.swz: e(f"v_xor_b32 v{vWa+ti}, {sT0}, v{vXq}\nv_add_u32 v{vWa+ti}, v{vWa+ti}, v{vu}")
            else: e(f"v_add_u32 v{vWa+ti}, {sT0}, v{vu}")
            if ti < 5: e(f"s_add_u32 {sT0}, {sT0}, 32")
        for q_ in range(4): e(f"ds_read_b64 {s.q(vA8+2*q_,2)}, v{vt} offset:{q_*32}")
        def wtr():
            for ti in range(6):
                for q_ in range(4): e(f"ds_read_b64_tr_b16 {s.q(vWb+8*ti+2*q_,2)}, v{vWa+ti} offset:{q_*18432}")
        def wmf(init):
            for ks in range(2):
                for ti in range(6):
                    c = "0" if (init and ks == 0) else s.q(vD6+4*ti)
                    e(f"v_mfma_f32_16x16x32_bf16 {s.q(vD6+4*ti)}, {s.q(vA8+4*ks)}, {s.q(vWb+8*ti+4*ks)}, {c}")
        wtr()
        for ti in range(6): e(f"v_add_u32 v{vWa+ti}, {L_WO}, v{vWa+ti}")
        e("s_waitcnt lgkmcnt(0)")
        wmf(True)
        wtr()
        vPo, vPs, vGs, vOo = vXq, vXp, vXw, vPw
        e(f"""v_lshlrev_b32 v{vPo}, 8, v3
        v_lshl_add_u32 v{vPo}, v2, 4, v{vPo}
        v_lshlrev_b32 v{vPs}, 2, v3
        v_mov_b32 v{vt}, {OOB}
        v_cmp_gt_u32 s[54:55], 12, v3
        v_cndmask_b32 v{vPo}, v{vt}, v{vPo}, s[54:55]
        v_cndmask_b32 v{vPs}, v{vt}, v{vPs}, s[54:55]
        v_and_b32 v{vt}, 1, v1
        v_cmp_eq_u32 vcc, 0, v{vt}
        v_cndmask_b32 v{vGs}, v{vG1}, v{vG0}, vcc
        v_and_b32 v{vt}, 1, v2
        v_mul_u32_u24 v{vt}, 36, v{vt}
        v_lshrrev_b32 v{vu}, 1, v2
        v_add_u32 v{vt}, v{vt}, v{vu}
        v_lshlrev_b32 v{vt}, 12, v{vt}
        v_lshl_add_u32 v{vOo}, v3, 2, v{vt}
        v_mov_b32 v{vNm}, 0xff800000
        s_lshl_b32 {sT0}, {sJ}, 12
        s_add_u32 {sT0}, {sT0}, {WS_AP}
        s_mul_i32 {sT1}, {s.sW}, {6*4096}
        s_lshl_b32 {sT2}, {sFb}, 6
        s_add_u32 {sT1}, {sT1}, {sT2}
        s_add_u32 {sT1}, {sT1}, {WS_OP}
        s_add_u32 {sT2}, {sT1}, 8192
        s_add_u32 {sT3}, {sT1}, 16384
        s_waitcnt lgkmcnt(0)""")
        s.sd(11)
        s.spin_init()
        if s.hop1 == "two":
            e(f"L_B_h0:\nbuffer_load_dword v{vS}, v{vPs}, {s.sWS}, {sT0} offen offset:3072 sc1\ns_waitcnt vmcnt(0)\nv_cmp_eq_u32 vcc, -1, v{vS}")
            s.spin_retry("L_B_h0", 2)
        e("L_B_h1:")
        e(f"buffer_load_dword v{vS}, v{vPs}, {s.sWS}, {sT0} offen offset:3072 sc1")
        for q_ in range(4): e(f"buffer_load_dwordx4 {s.q(vPl+4*q_)}, v{vPo}, {s.sWS}, {sT0} offen offset:{q_*64} sc1")
        e("s_waitcnt vmcnt(0)")
        s.sentinel_check([vS] + list(range(vPl, vPl+16)), vu)
        s.spin_retry("L_B_h1", 0)
        s.st(10)
        e(f"v_cndmask_b32 v{vS}, v{vNm}, v{vS}, s[54:55]")
        e(f"v_max_f32_dpp v{vt}, v{vS}, v{vS} row_ror:2 {DM}")
        s.dppreduce("v_max_f32", vt, (4, 8))
        e(f"v_sub_f32 v{vS}, v{vS}, v{vt}\nv_exp_f32 v{vS}, v{vS}")
        e(f"v_add_f32_dpp v{vt}, v{vS}, v{vS} row_ror:2 {DM}")
        s.dppreduce("v_add_f32", vt, (4, 8))
        e(f"v_rcp_f32 v{vt}, v{vt}\nv_mul_f32 v{vS}, v{vS}, v{vGs}\nv_mul_f32 v{vS}, v{vS}, v{vt}")
        for k in range(16): e(f"v_mul_f32 v{vPl+k}, v{vS}, v{vPl+k}")
        for k in range(8): e(f"v_cvt_pk_bf16_f32 v{vA8+k}, v{vPl+2*k}, v{vPl+2*k+1}")
        wmf(False)
        for ti in range(6): e(f"v_add_f32 v{vD6+4*ti}, v{vD6+4*ti}, v{vD6+4*ti+2}\nv_add_f32 v{vD6+4*ti+1}, v{vD6+4*ti+1}, v{vD6+4*ti+3}")
        for u in range(3): e(f"v_permlane32_swap_b32 v{vD6+8*u}, v{vD6+8*u+4}\nv_permlane32_swap_b32 v{vD6+8*u+1}, v{vD6+8*u+5}")
        for u in range(3): e(f"v_add_f32 v{vD6+8*u}, v{vD6+8*u}, v{vD6+8*u+4}\nv_add_f32 v{vD6+8*u+1}, v{vD6+8*u+1}, v{vD6+8*u+5}")
        for u in range(3): e(f"v_permlane16_swap_b32 v{vD6+8*u}, v{vD6+8*u+1}")
        for u in range(3):
            a = vD6 + 8*u
            e(f"v_add_f32 v{a}, v{a}, v{a+1}\nv_min_u32 v{a}, -2, v{a}")
            e(f"buffer_store_dword v{a}, v{vOo}, {s.sWS}, {[sT1,sT2,sT3][u]} offen sc1")
        e("s_branch L_B_done")
        e(f"""L_B_red:
        s_sub_u32 {sT0}, {s.sW}, 6
        s_lshl_b32 {sT0}, {sT0}, 6
        s_add_u32 {sT0}, {sT0}, {sFb}
        s_cmp_ge_u32 {sT0}, 72
        s_cbranch_scc1 L_B_done
        s_lshl_b32 {sT1}, {sT0}, 12
        s_add_u32 {sT1}, {sT1}, {WS_OP}
        s_lshl_b32 {sT2}, {sT0}, 5
        v_and_b32 v{vt}, 3, v1
        v_lshlrev_b32 v{vt}, 2, v{vt}
        v_and_b32 v{vu}, 1, v2
        v_lshl_add_u32 v{vt}, v{vu}, 1, v{vt}
        v_lshrrev_b32 v{vu}, 1, v2
        v_add_lshl_u32 v{vXq}, v{vt}, v{vu}, 1""")
        s.spin_init()
        e("L_B_h2:")
        for q_ in range(4): e(f"buffer_load_dwordx4 {s.q(vCa+4*q_)}, v{vL16}, {s.sWS}, {sT1} offen offset:{q_*1024} sc1")
        e("s_waitcnt vmcnt(0)")
        s.sentinel_check(range(vCa, vCa+16), vu)
        s.spin_retry("L_B_h2", 0)
        s.st(10)
        for k in range(4): e(f"v_add_f32 v{vCa+k}, v{vCa+k}, v{vCa+4+k}\nv_add_f32 v{vCa+8+k}, v{vCa+8+k}, v{vCa+12+k}")
        for k in range(4): e(f"v_add_f32 v{vCa+k}, v{vCa+k}, v{vCa+8+k}")
        e(f"""v_permlane32_swap_b32 v{vCa}, v{vCa+1}
        v_permlane32_swap_b32 v{vCa+2}, v{vCa+3}
        v_add_f32 v{vCa}, v{vCa}, v{vCa+1}
        v_add_f32 v{vCa+2}, v{vCa+2}, v{vCa+3}
        v_permlane16_swap_b32 v{vCa}, v{vCa+2}
        v_add_f32 v{vCa}, v{vCa}, v{vCa+2}""")
        s.dppreduce("v_add_f32", vCa, (4, 8))
        e(f"""v_cvt_pk_bf16_f32 v{vCa}, v{vCa}, v{vCa}
        buffer_store_short v{vCa}, v{vXq}, {sOUT}, {sT2} offen
        s_cmp_lg_u32 {sT0}, 0
        s_cbranch_scc1 L_B_done
        v_mov_b32 v{vt}, 0
        s_mov_b64 exec, 1
        buffer_store_dword v{vTag}, v{vt}, {s.sWS}, 0 offen sc1
        s_mov_b64 exec, -1""")
        e("L_B_done:")
        s.st(11)
        s.stamps_out(12)
        e("L_end:\ns_endpgm")

def make(path, **kw):
    g = G4(**kw)
    body = g.text()
    src = wrap(body, 256, 512, LDS_BYTES, vgpr=256, sgpr=102, accum=256, header=HEADER)
    src = src.replace("  .amdhsa_system_sgpr_workgroup_id_x 1\n", "  .amdhsa_system_sgpr_workgroup_id_x 1\n  .amdhsa_float_denorm_mode_32 3\n")
    open(path, "w").write(src)
    return build(path)

if __name__ == "__main__":
    kw = json.loads(sys.argv[2]) if len(sys.argv) > 2 else {}
    co = make(sys.argv[1], **kw)
    import subprocess
    r = subprocess.run(["llvm-readelf", "-S", co], capture_output=True, text=True).stdout
    print([l for l in r.splitlines() if ".text" in l])
```

```python
import sys, json, math
from asmlib import *
from hazard import fix
import gen as base
from gen import f2u, OOB, X, R1, LDS_BYTES, HEADER

WS_E, WS_F1, WS_FQ, WS_F2, WS_QAB, WS_QABS, WS_BS1, WS_BS2, WS_AP, WS_OP, WS_BP2, WS_BP1, WS_STAMP = \
    0x0, 0x1000, 0x10000, 0x18000, 0x20000, 0x80000, 0x90000, 0x94000, 0xA0000, 0xE0000, 0x140000, 0x200000, 0x400000
L_PQ, L_QOP, L_QBOP, L_CNT, L_QS = X, X + 12288, X + 12800, X + 13312, X + 13824
L_OC, L_MS = X + 16384, X + 24576
L_PB = X + 16384; L_MX = L_PB + 8704; L_GT = L_MX + 1024
L_OS = 98304
L_OCB = X + 16384; L_CP = L_OCB + 2048; L_CTX = L_CP + 8448
L_WO = 73728
L_AOP = L_CTX + 512
WS_AST = WS_F2
DM = "row_mask:0xf bank_mask:0xf"

class G4(base.G):
    def __init__(s, hmap=0, force=None, pp=True, g7=4, s1=False, c1=3, bd2=False, swz=True, thru='', half=None, allpoll=False, W5=None, **kw):
        super().__init__(**kw); s.hmap = hmap; s.force = force; s.pp = pp; s.g7 = g7; s.s1 = s1; s.c1 = c1; s.bd2 = bd2; s.swz = swz; s.thru = thru.split(','); s.half = half; s.allpoll = allpoll; s.W5 = W5
    def st(s, k):
        if s.bd2 and s.inB and k != 0: return
        super().st(k)
    def sd(s, k):
        if s.bd2: s.st2(k)
    def fl(s, sLoc, lines, name=None):
        import re as _re
        lines = _re.sub(r"@(?![A-Z])", "#", lines)
        if s.force == "sc1" or name in s.thru: s.e(lines.replace("#", "sc1")); return
        l = s.lab("L_fl")
        s.e(f"s_cmp_lg_u32 {sLoc}, 0\ns_cbranch_scc1 {l}")
        s.e(lines.replace("#", "sc1")); s.e(f"s_branch {l}d\n{l}:"); s.e(lines.replace("#", "")); s.e(f"{l}d:")
    def intag(s, regs, vTag, sFF):
        for r in regs: s.e(f"v_bfi_b32 v{r}, {sFF}, v{vTag}, v{r}")
    def incheck(s, regs, acc, t, vT2, sSel):
        regs = list(regs)
        for r in regs: s.e(f"v_xor_b32 v{r}, v{vT2}, v{r}")
        s.e(f"v_or3_b32 v{acc}, v{regs[0]}, v{regs[1]}, v{regs[2]}"); regs = regs[3:]
        if len(regs) >= 7:
            s.e(f"v_or3_b32 v{t}, v{regs[0]}, v{regs[1]}, v{regs[2]}"); regs = regs[3:]
            k = 0
            while len(regs) >= 2:
                d = (acc, t)[k & 1]; k += 1
                s.e(f"v_or3_b32 v{d}, v{d}, v{regs[0]}, v{regs[1]}"); regs = regs[2:]
            regs = regs + [t]
        while len(regs) >= 2: s.e(f"v_or3_b32 v{acc}, v{acc}, v{regs[0]}, v{regs[1]}"); regs = regs[2:]
        if regs: s.e(f"v_or_b32 v{acc}, v{acc}, v{regs[0]}")
        s.e(f"v_and_b32 v{acc}, 0xff, v{acc}\nv_cmp_ne_u32 vcc, 0, v{acc}")
    def tagcalc(s, vE, vTag, st):
        s.e(f"s_mov_b32 {st}, 0x9e3779b1\ns_getreg_b32 s43, hwreg(HW_REG_XCC_ID, 0, 4)\ns_waitcnt vmcnt(0)")
        s.e(f"v_mul_lo_u32 v{vTag}, v{vE}, {st}\nv_add_u32 v{vTag}, 0x7f4a7c15, v{vTag}\nv_mov_b32 v{vTag+1}, s43")
    def red8(s, op, d, a):
        s.e(f"{op}_dpp v{d}, v{a}, v{a} quad_perm:[1,0,3,2] {DM}\n{op}_dpp v{d}, v{d}, v{d} quad_perm:[2,3,0,1] {DM}\n{op}_dpp v{d}, v{d}, v{d} row_half_mirror {DM}")
    def red4(s, op, d, a):
        s.e(f"{op}_dpp v{d}, v{a}, v{a} quad_perm:[1,0,3,2] {DM}\n{op}_dpp v{d}, v{d}, v{d} quad_perm:[2,3,0,1] {DM}")

    def roleA(s):
        e = s.e; W = s.W
        sWQ, sK, sV = "s[12:15]", "s[16:19]", "s[20:23]"
        s.post = list(s.common_post)
        s.srd(24, 7, 4718592); s.srd(12, 3, 4718592); s.srd(16, 1, 0x4000000); s.srd(28, 8, 4194304); s.srd(20, 2, 0x4000000)
        for p in s.post: e(p)
        s.lane_common(); s.consts()
        sGi, sB, sS, sMM, sKb, sLb, sH6, sT0, sT1, sT2, sHd, sDn = "s57","s58","s59","s60","s61","s62","s63","s49","s50","s51","s52","s42"
        e(f"""s_sub_u32 {sT0}, s2, 64
        s_and_b32 {sHd}, {sT0}, 7
        s_lshr_b32 {sMM}, {sT0}, 3
        s_cmp_ge_u32 {sMM}, 12
        s_cselect_b32 {sT1}, 1, 0
        s_cselect_b32 {sT2}, 12, 0
        s_sub_u32 {sMM}, {sMM}, {sT2}
        s_lshl_b32 {sGi}, {sHd}, 1
        s_add_u32 {sGi}, {sGi}, {sT1}""")
        if s.hmap == 0: e(f"s_mov_b32 {sHd}, {sGi}")
        else: e(f"s_lshl_b32 {sT1}, {sT1}, 3\ns_add_u32 {sHd}, {sHd}, {sT1}")
        e(f"""s_cmp_ge_u32 {sMM}, 6
        s_cselect_b32 {sB}, 1, 0
        s_cselect_b32 {sT2}, 6, 0
        s_sub_u32 {sS}, {sMM}, {sT2}
        s_lshl_b32 {sKb}, {sB}, 4
        s_add_u32 {sKb}, {sKb}, {sHd}
        s_lshl_b32 {sKb}, {sKb}, 21
        s_lshl_b32 {sHd}, {sHd}, 1
        s_add_u32 {sHd}, {sHd}, {sB}""")
        vKoff, vVoff, vKrd = 4, 8, 12
        vM, vL, vAl, vNm, vA2, vt, vu = 9, 10, 11, 16, 17, 18, 19
        vQ, vS, vP, vT0, vT1 = 20, 36, 44, 48, 52
        vKa, vAcc, vV = 56, 88, 120
        vWoff, vXoff, vXa, vQ2 = 16, 17, 44, 184
        vUK, vQB, vUa, vFa = 216, 232, 240, 248
        e(f"""v_lshlrev_b32 v{vWoff}, 4, v3
        v_lshl_or_b32 v{vWoff}, v2, 15, v{vWoff}
        v_bfe_u32 v{vXoff}, v1, 2, 1
        v_mul_u32_u24 v{vXoff}, 1152, v{vXoff}
        v_lshl_add_u32 v{vXoff}, v2, 3, v{vXoff}
        v_lshlrev_b32 v{vVoff}, 4, v1
        v_mov_b32 v{vFa}, {L_CNT}
        v_mov_b32 v{vKa+1}, 0""")
        def late_setup():
            e(f"""s_mul_i32 {sT0}, {sS}, 42
            s_cmp_eq_u32 {sS}, 5
            s_cselect_b32 {sT1}, 2, 0
            s_add_u32 {sT0}, {sT0}, {sT1}
            s_add_u32 {sT0}, {sT0}, {s.sW}
            s_lshl_b32 {sT0}, {sT0}, 13
            s_add_u32 {sKb}, {sKb}, {sT0}
            s_cmp_lt_u32 {sS}, 4
            s_cselect_b32 {sT0}, {2 + (5 - s.g7)}, {4 + (5 - s.g7)}
            s_cmp_lt_u32 {s.sW}, {sT0}
            s_cselect_b32 {sH6}, 6, 5
            s_cmp_eq_u32 {s.sW}, 7
            s_cselect_b32 {sH6}, {s.g7}, {sH6}""")
            if s.half:
                tab = sum(s.half.index(w) << (4*w) for w in range(8))
                e(f"""s_lshl_b32 {sT1}, {s.sW}, 2
                s_lshr_b32 {sT1}, {hex(tab)}, {sT1}
                s_and_b32 {sT1}, {sT1}, 7
                s_cmp_lt_u32 {sS}, 4
                s_cselect_b32 {sT0}, 4, 8
                s_cmp_lt_u32 {sT1}, {sT0}
                s_cselect_b32 {sH6}, 6, 5
                s_lshl_b32 {sT1}, {sT1}, 12
                s_lshl_b32 {sT0}, {s.sW}, 13
                s_sub_u32 {sT1}, {sT1}, {sT0}
                s_add_u32 s39, {sKb}, {sT1}""")
            e(f"""
            s_lshl_b32 {sLb}, {s.sW}, 14
            s_mov_b32 {sDn}, 0
            v_lshlrev_b32 v{vt}, 2, v2
            v_xor_b32 v{vt}, v{vt}, v3
            v_lshlrev_b32 v{vt}, 4, v{vt}
            v_lshl_or_b32 v{vKoff}, v2, 8, v{vt}
            v_xor_b32 v{vKoff+1}, 16, v{vKoff}
            v_xor_b32 v{vKoff+2}, 32, v{vKoff}
            v_xor_b32 v{vKoff+3}, 48, v{vKoff}""")
        goff = lambda i: i*65536 - (8192*(5 - s.g7) if i == 5 else 0)
        def kload(i, j, w=None, force=False):
            if j % 4 == 0 or force:
                e(f"s_add_u32 {sT0}, {'s39' if (i == 5 and s.half) else sKb}, {goff(i) + (j>>2)*4096}\ns_add_u32 m0, {sLb}, {(i&1)*8192 + (j>>2)*4096}")
            if w is not None: e(f"s_waitcnt vmcnt({w-1})")
            e(f"buffer_load_dwordx4 v{vKoff+(j&3)}, {sK}, {sT0} offen offset:{(j&3)*1024} nt lds")
        def vload(i, j, w=None, force=False):
            if j % 4 == 0 or force: e(f"s_add_u32 {sT1}, {'s39' if (i == 5 and s.half) else sKb}, {goff(i) + (j>>2)*4096}")
            if w is not None: e(f"s_waitcnt vmcnt({w-1})")
            e(f"buffer_load_dwordx4 {s.q(vV+(i&1)*32+4*j)}, v{vVoff}, {sV}, {sT1} offen offset:{(j&3)*1024} nt")
        NPRE, NB = s.NPRE, s.NB
        seq = [(kload,0,j) for j in range(8)] + [(vload,0,j) for j in range(8)] + [(kload,1,j) for j in range(8)] + [(vload,1,j) for j in range(8)]
        def issue(a, b, wf, ck):
            for n_ in range(a, b):
                fn, i, j = seq[n_]
                fn(i, j, wf(n_, i), n_ == a)
                if ck and n_ >= 7 and (n_ - 7) % s.CK == 0 and n_ < 31:
                    l = s.lab("L_ck")
                    e(f"s_cmp_lg_u32 {sDn}, 0\ns_cbranch_scc1 {l}\ns_call_b64 s[40:41], L_A_chk\n{l}:")
        def ukload():
            e(f"""s_lshl_b32 {sT2}, {sS}, 3
            s_add_u32 {sT2}, {sT2}, {s.sW}
            s_lshl_b32 {sT2}, {sT2}, 17
            s_lshl_b32 {sT1}, {sHd}, 8
            s_add_u32 {sT2}, {sT2}, {sT1}""")
            for j in range(4):
                e(f"buffer_load_dwordx4 {s.q(vUK+4*j)}, v{vWoff}, s[28:31], {sT2} offen nt")
                if j < 3: e(f"s_add_u32 {sT2}, {sT2}, 8192")
        e(f"s_cmp_ge_u32 {s.sW}, 6\ns_cbranch_scc1 L_A_w67")
        e(f"""s_mul_i32 {sT0}, {sS}, 96
        s_lshl_b32 {sT1}, {s.sW}, 4
        s_add_u32 {sT0}, {sT0}, {sT1}
        s_lshl_b32 {sT1}, {sT0}, 1
        s_lshl_b32 {sT0}, {sT0}, 13
        s_lshl_b32 {sT2}, {sHd}, 8
        s_add_u32 {sT2}, {sT2}, {sT0}
        s_setprio 3
        s_waitcnt lgkmcnt(0)""")
        e(f"buffer_load_dwordx2 {s.q(vXa,2)}, v{vXoff}, {s.sX}, {sT1} offen")
        for jj in range(4):
            e(f"buffer_load_dwordx4 {s.q(vKa+4*jj)}, v{vWoff}, s[24:27], {sT2} offen nt")
            e(f"s_add_u32 {sT2}, {sT2}, {8192 if jj < 3 else (-3*8192) & 0xffffffff}")
        e("s_setprio 1")
        for jj in range(4):
            e(f"buffer_load_dwordx4 {s.q(vKa+16+4*jj)}, v{vWoff}, {sWQ}, {sT2} offen nt")
            if jj < 3: e(f"s_add_u32 {sT2}, {sT2}, 8192")
        e("s_setprio 0")
        late_setup()
        e("s_barrier")
        s.st(1)
        e(f"v_bfe_u32 v{vt}, v1, 4, 1\nv_lshlrev_b32 v{vt}, 9, v{vt}\nv_lshl_add_u32 v{vt}, v3, 5, v{vt}")
        e(f"s_lshl_b32 {sT2}, {s.sW}, 10\ns_add_u32 {sT2}, {sT2}, {L_PQ}\nv_add_u32 v{vt}, {sT2}, v{vt}\nv_mov_b32 v{vu}, 1")
        e("s_waitcnt vmcnt(4)")
        s.vlike(vAcc, vXa, [vKa+4*j for j in range(4)], (vT0, vT1), True)
        s.gather0(vAcc, vS)
        e(f"ds_write_b128 v{vt}, {s.q(vS)} offset:6144\nds_write_b128 v{vt}, {s.q(vS+4)} offset:6160\ns_waitcnt lgkmcnt(0)")
        e(f"s_mov_b64 exec, 1\nds_add_u32 v{vFa}, v{vu}\ns_mov_b64 exec, -1")
        s.st(3)
        ukload(); issue(0, NPRE, lambda n, i: None, False)
        e(f"s_waitcnt vmcnt({4+NPRE})")
        s.vlike(vAcc, vXa, [vKa+16+4*j for j in range(4)], (vT0, vT1), True)
        s.gather0(vAcc, vS)
        e(f"ds_write_b128 v{vt}, {s.q(vS)}\nds_write_b128 v{vt}, {s.q(vS+4)} offset:16\ns_waitcnt lgkmcnt(0)")
        e(f"s_mov_b64 exec, 1\nds_add_u32 v{vFa}, v{vu} offset:12\ns_mov_b64 exec, -1\ns_branch L_A_b1")
        e("L_A_w67:")
        late_setup()
        e(f"s_waitcnt lgkmcnt(0)\ns_cmp_eq_u32 {s.sW}, 7\ns_cbranch_scc1 L_A_svc\ns_barrier")
        s.code_prefetch(vt, vKa)
        ukload(); issue(0, NPRE, lambda n, i: None, False)
        e("L_A_b1:")
        s.st(2)
        issue(NPRE, 32, lambda n, i: s.W0 if n < NB else W[i], True)
        s.st(5)
        s.spin_init()
        e(f"""L_A_wq:
        s_cmp_lg_u32 {sDn}, 0
        s_cbranch_scc1 L_A_wq2
        s_call_b64 s[40:41], L_A_chk
        s_sub_u32 {s.sCnt}, {s.sCnt}, 1
        s_cbranch_scc1 L_end
        s_branch L_A_wq
        L_A_wq2:
        ds_read_b32 v{vt}, v{vFa} offset:16
        s_waitcnt lgkmcnt(0)
        v_cmp_eq_u32 vcc, 0, v{vt}""")
        s.spin_retry("L_A_wq2", 1)
        e(f"v_readfirstlane_b32 {sDn}, v{vt}\ns_branch L_A_main")
        vZ, vTag, vSn, vR = vKa+1, vKa+2, vKa+4, vAcc
        sA, sQS, sLoc, sTag, sQ = "s65", "s66", "s67", "s64", "s56"
        def sretry(label):
            ok = s.lab("L_ok")
            if "nodep" in s.dbg: return
            e(f"s_cbranch_scc0 {ok}\ns_sub_u32 {s.sCnt}, {s.sCnt}, 1\ns_cbranch_scc1 L_end\ns_branch {label}\n{ok}:")
        def ldswait(label, off, n):
            e(f"{label}:\nds_read_b32 v{vu}, v{vFa} offset:{off}\ns_waitcnt lgkmcnt(0)\nv_cmp_ne_u32 vcc, {n}, v{vu}")
            s.spin_retry(label, 0)
        vPb, vPa, vG, vT2 = 184, 188, vV, vKa+8
        sFF, sSel = "s53", "s69"
        def sumpub(dst, ldsoff):
            for t in range(6): e(f"ds_read_b128 {s.q(vR+4*t)}, v{vL} offset:{ldsoff+t*1024}")
            e("s_waitcnt lgkmcnt(0)")
            s.sum6(vR)
            for k in range(4): e(f"v_add_u32 v{vR+k}, 0x80, v{vR+k}\nv_bfi_b32 v{dst+k}, {sFF}, v{vTag}, v{vR+k}")
        def pub(src, off, flag):
            return f"buffer_store_dwordx4 {s.q(src)}, v{vVoff}, {s.sWS}, {sQ} offen offset:{off} {flag} ;@Q"
        def gather(voff, so, off0):
            e(f"s_mov_b32 {sT1}, {so}")
            for t in range(6):
                e(f"buffer_load_dwordx4 {s.q(vG+4*t)}, v{voff}, {s.sWS}, {sT1} offen offset:{off0 + (t&1)*2048} sc1")
                if t & 1 and t < 5: e(f"s_add_u32 {sT1}, {sT1}, 4096")
        def tagcheck(): s.incheck(range(vG, vG+24), vu, vT0, vT2, sSel)
        def gsum(off):
            s.sum6(vG)
            e(f"v_cvt_pk_bf16_f32 v{vG}, v{vG}, v{vG+1}\nv_cvt_pk_bf16_f32 v{vG+1}, v{vG+2}, v{vG+3}\nds_write_b64 v{vAl}, {s.q(vG,2)} offset:{off}")
        e(f"""L_A_svc:
        ds_write2_b32 v{vFa}, v{vZ}, v{vZ} offset0:0 offset1:1
        ds_write2_b32 v{vFa}, v{vZ}, v{vZ} offset0:2 offset1:3
        ds_write_b32 v{vFa}, v{vZ} offset:16
        s_setprio 3
        s_waitcnt lgkmcnt(0)
        s_load_dword {sTag}, s[8:9], 0
        s_barrier
        s_mul_i32 {sT0}, {sGi}, 12
        s_add_u32 {sA}, {sT0}, {sMM}
        s_lshl_b32 {sT1}, {sA}, 7
        s_add_u32 {sT1}, {sT1}, {WS_F1 + 64*128}
        s_getreg_b32 s43, hwreg(HW_REG_XCC_ID, 0, 4)
        s_waitcnt lgkmcnt(0)
        s_mul_i32 {sTag}, {sTag}, 0x9e3779b1
        s_add_u32 {sTag}, {sTag}, 0x7f4a7c15
        v_mov_b32 v{vTag}, {sTag}
        v_mov_b32 v{vTag+1}, s43
        s_mov_b64 exec, 1
        buffer_store_dwordx2 {s.q(vTag,2)}, v{vZ}, {s.sWS}, {sT1} offen sc1
        s_mov_b64 exec, -1
        s_mov_b32 {sFF}, 0xff
        v_and_b32 v{vT2}, 0xff, v{vTag}
        s_lshl_b32 {sQ}, {sA}, 11
        s_add_u32 {sQ}, {sQ}, {WS_QAB}
        v_bfe_u32 v{vM}, v1, 4, 1
        v_lshlrev_b32 v{vM}, 15, v{vM}
        v_lshl_add_u32 v{vM}, v3, 4, v{vM}
        v_add_u32 v{vL}, {L_PQ}, v{vVoff}
        s_lshl_b32 {sQS}, {sHd}, 2
        s_add_u32 {sQS}, {sQS}, {sS}
        s_lshl_b32 {sQS}, {sQS}, 8
        s_add_u32 {sQS}, {sQS}, {WS_QABS}
        v_min_u32 v{vt}, 15, v1
        s_add_u32 {sT2}, {sT0}, 64
        v_add_u32 v{vu}, {sT2}, v{vt}
        s_lshl_b32 {sT2}, {sGi}, 2
        s_sub_u32 {sT2}, {sT2}, 12
        v_add_u32 v{vAl}, {sT2}, v{vt}
        v_cmp_gt_u32 vcc, 12, v{vt}
        v_cndmask_b32 v{vt}, v{vAl}, v{vu}, vcc
        v_lshlrev_b32 v{vQ}, 7, v{vt}
        s_mov_b32 s68, {WS_F1}
        s_lshl_b32 {sT0}, {sT0}, 11
        s_add_u32 {sT0}, {sT0}, {WS_QAB}
        s_mul_i32 s74, {sB}, {6*2048}
        s_add_u32 s74, s74, {sT0}
        s_lshl_b32 {sT2}, {sB}, 9
        s_add_u32 s75, {sT0}, {sT2}
        v_lshrrev_b32 v{vA2}, 5, v1
        v_mul_u32_u24 v{vA2}, {6*2048}, v{vA2}
        v_and_b32 v{vu}, 31, v1
        v_lshl_add_u32 v{vA2}, v{vu}, 4, v{vA2}
        v_lshlrev_b32 v{vAl}, 3, v1
        v_add_u32 v{vAl}, {L_QOP}, v{vAl}
        s_mov_b32 {sLoc}, 1""")
        s.st(1)
        ukload()
        s.spin_init()
        ldswait("L_A_wc", 0, 6)
        sumpub(vPb, 6144)
        e(pub(vPb, 1024, "sc1" if "qb" in s.thru else ""))
        s.st(2)
        def flagstep(after):
            if "nodep" in s.dbg: e(f"s_mov_b32 {sLoc}, 2"); return
            l = s.lab("L_fs")
            e(f"""s_cmp_lg_u32 {sLoc}, 1
            s_cbranch_scc1 {l}
            v_cmp_ne_u32 s[54:55], v{vS}, v{vTag}
            s_cmp_lg_u64 s[54:55], 0
            s_cbranch_scc1 {l}
            v_cmp_ne_u32 s[54:55], v{vS+1}, v{vTag+1}
            s_cmp_eq_u64 s[54:55], 0
            s_cselect_b32 {sLoc}, {2 if s.force != "sc1" else 0}, 0
            s_cmp_lg_u32 {sLoc}, 0
            s_cbranch_scc1 {l}""")
            e(after)
            e(f"{l}:")
        fload = f"buffer_load_dwordx2 {s.q(vS,2)}, v{vQ}, {s.sWS}, s68 offen sc1"
        e(f"L_A_bq:\n{fload}")
        gather(vVoff, "s74", 1024)
        e("s_waitcnt vmcnt(0)")
        flagstep(pub(vPb, 1024, "sc1"))
        tagcheck()
        s.spin_retry("L_A_bq", 0)
        s.st(4)
        gsum(512)
        e(f"v_mov_b32 v{vt}, 1\ns_waitcnt lgkmcnt(0)\nds_write_b32 v{vFa}, v{vt} offset:4")
        e("s_call_b64 s[40:41], L_A_qfn")
        ldswait("L_A_wc2", 12, 6)
        sumpub(vPa, 0)
        e(f"s_cmp_lg_u32 {sLoc}, 1\ns_cbranch_scc1 L_A_lk\nL_A_vf:\n{fload}\ns_waitcnt vmcnt(0)")
        flagstep(pub(vPb, 1024, "sc1"))
        e(f"s_cmp_eq_u32 {sLoc}, 1")
        sretry("L_A_vf")
        e("L_A_lk:")
        s.fl(sLoc, pub(vPa, 0, "@"), "qa")
        s.st(3)
        issue(0, 8, lambda n, i: None, False)
        e(f"s_cmp_ge_u32 {sS}, 4\ns_cbranch_scc1 L_A_nq2")
        e(f"L_A_ws:\nds_read_b32 v{vu}, v{vFa} offset:8\ns_waitcnt lgkmcnt(0)\nv_cmp_ne_u32 vcc, 8, v{vu}")
        s.spin_retry("L_A_ws", 0)
        e(f"v_add_u32 v{vt}, {L_QS}, v{vVoff}\ns_mov_b32 exec_hi, 0\nds_read_b128 {s.q(vQ2)}, v{vt}\ns_waitcnt lgkmcnt(0)")
        for k in range(4): e(f"v_min_u32 v{vQ2+k}, -2, v{vQ2+k}")
        e(f"buffer_store_dwordx4 {s.q(vQ2)}, v{vM}, {s.sWS}, {sQS} offen sc1\ns_mov_b64 exec, -1\nL_A_nq2:")
        s.st(5)
        e("L_A_aq:")
        gather(vA2, "s75", 0)
        e("s_waitcnt vmcnt(0)")
        tagcheck()
        s.spin_retry("L_A_aq", 0)
        gsum(0)
        e(f"ds_write_b32 v{vFa}, v{vTag} offset:20\ns_or_b32 {sDn}, {sLoc}, 1\nv_mov_b32 v{vt}, {sDn}\ns_waitcnt lgkmcnt(0)\nds_write_b32 v{vFa}, v{vt} offset:16\ns_setprio 0")
        issue(8, 32, lambda n, i: s.WS, False)
        e("s_branch L_A_main")
        e(f"""L_A_chk:
        ds_read_b32 v{vt}, v{vFa} offset:4
        s_waitcnt lgkmcnt(0)
        v_readfirstlane_b32 {sDn}, v{vt}
        s_cmp_lg_u32 {sDn}, 0
        s_cbranch_scc1 L_A_qfn
        s_setpc_b64 s[40:41]
        L_A_qfn:""")
        s.st(6)
        e(f"""s_cmp_ge_u32 {sS}, 4
        s_cbranch_scc1 L_A_nqa
        v_lshlrev_b32 v{vt}, 4, v3
        v_add_u32 v{vt}, {L_QBOP}, v{vt}
        ds_read_b128 {s.q(vQB)}, v{vt}
        ds_read_b128 {s.q(vQB+4)}, v{vt} offset:256
        v_and_b32 v{vu}, 1, v1
        v_cmp_eq_u32 vcc, 0, v{vu}
        v_lshlrev_b32 v{vu}, 8, v{vu}
        v_lshl_add_u32 v{vu}, v2, 3, v{vu}
        s_lshl_b32 {sT2}, {s.sW}, 5
        s_add_u32 {sT2}, {sT2}, {L_QS}
        v_add_u32 v{vu}, {sT2}, v{vu}
        v_mov_b32 v{vt}, 1
        s_waitcnt vmcnt(8) lgkmcnt(0)""")
        for k in range(4):
            for bb in range(2):
                for j in range(4):
                    c = "0" if k == 0 else f"v{vUa+4*bb+j}"
                    e(f"v_dot2_f32_bf16 v{vUa+4*bb+j}, v{vUK+4*j+k}, v{vQB+4*bb+k}, {c}")
        for r in (8, 4, 2, 1):
            for k in range(8): e(f"v_add_f32_dpp v{vUa+k}, v{vUa+k}, v{vUa+k} row_ror:{r} {DM}")
        for k in range(4): e(f"v_cvt_pk_bf16_f32 v{vQB+k}, v{vUa+2*k}, v{vUa+2*k+1}")
        e(f"""v_cndmask_b32 v{vQB}, v{vQB+2}, v{vQB}, vcc
        v_cndmask_b32 v{vQB+1}, v{vQB+3}, v{vQB+1}, vcc
        ds_write_b64 v{vu}, {s.q(vQB,2)}
        s_waitcnt lgkmcnt(0)
        s_mov_b64 exec, 1
        ds_add_u32 v{vFa}, v{vt} offset:8
        s_mov_b64 exec, -1
        L_A_nqa:""")
        s.st(11)
        e("s_setpc_b64 s[40:41]")
        e("L_A_main:")
        e(f"""v_xor_b32 v{vt}, v2, v3
        v_lshlrev_b32 v{vt}, 4, v{vt}
        v_and_b32 v{vu}, 3, v3
        v_lshl_or_b32 v{vt}, v{vu}, 10, v{vt}
        v_lshrrev_b32 v{vu}, 2, v3
        v_lshl_or_b32 v{vt}, v{vu}, 8, v{vt}
        v_add_u32 v{vKrd}, {sLb}, v{vt}
        v_xor_b32 v{vKrd+1}, 64, v{vKrd}
        v_xor_b32 v{vKrd+2}, 0x80, v{vKrd}
        v_xor_b32 v{vKrd+3}, 0xc0, v{vKrd}
        v_and_b32 v{vu}, 1, v{vu}
        v_lshlrev_b32 v{vu}, 8, v{vu}
        v_lshl_add_u32 v{vu}, v2, 4, v{vu}
        v_add_u32 v{vu}, {L_QOP}, v{vu}""")
        for kk in range(4): e(f"ds_read_b128 {s.q(vQ+4*kk)}, v{vu} offset:{kk*64}")
        vE0, vE1, vE2, vE3, vE4, vE5, vE6, vE7 = 184, 185, 186, 187, 188, 189, 190, 191
        e(f"""v_bfe_u32 v{vE0}, v1, 4, 1
        v_lshlrev_b32 v{vE0}, 9, v{vE0}
        v_lshl_add_u32 v{vE0}, v3, 5, v{vE0}
        s_lshl_b32 {sT2}, {s.sW}, 10
        s_add_u32 {sT2}, {sT2}, {L_OC}
        v_add_u32 v{vE0}, {sT2}, v{vE0}
        v_bfe_u32 v{vE1}, v1, 2, 1
        v_lshlrev_b32 v{vE1}, 5, v{vE1}
        s_lshl_b32 {sT2}, {s.sW}, 2
        s_add_u32 {sT2}, {sT2}, {L_MS}
        v_add_u32 v{vE1}, {sT2}, v{vE1}
        s_lshl_b32 {sT2}, {s.sW}, 8
        s_add_u32 {sT2}, {sT2}, {L_OC}
        v_lshl_add_u32 v{vE2}, v1, 2, {sT2}
        s_lshr_b32 {sT2}, {s.sW}, 1
        s_lshl_b32 {sT2}, {sT2}, 5
        s_add_u32 {sT2}, {sT2}, {L_MS}
        v_and_b32 v{vE3}, 7, v1
        v_lshl_add_u32 v{vE3}, v{vE3}, 2, {sT2}
        v_lshrrev_b32 v{vE4}, 2, v1
        v_lshlrev_b32 v{vE4}, 8, v{vE4}
        v_and_b32 v{vE5}, 3, v1
        v_lshl_add_u32 v{vE4}, v{vE5}, 2, v{vE4}
        s_lshr_b32 s53, {sHd}, 1
        s_lshl_b32 s53, s53, 2
        s_add_u32 s53, s53, {s.sW}
        s_lshl_b32 s54, s53, 7
        s_lshl_b32 s53, s53, 12
        s_lshl_b32 {sT2}, {sS}, 1
        s_add_u32 {sT2}, {sT2}, {sB}
        s_lshl_b32 s55, {sT2}, 3
        s_add_u32 s54, s54, s55
        s_add_u32 s54, s54, {WS_AST}
        s_lshl_b32 {sT2}, {sT2}, 4
        s_add_u32 s53, s53, {sT2}
        s_add_u32 s53, s53, {WS_AP}
        ds_read_b32 v{vE7}, v{vFa} offset:20
        s_and_b32 {sDn}, {sDn}, 2
        s_mov_b32 s55, 0xff""")
        def cond_wait(g, n):
            l = s.lab("L_cw")
            e(f"s_cmp_lg_u32 {sH6}, {g}\ns_cbranch_scc1 {l}\ns_waitcnt vmcnt({n})\n{l}:")
        def cond_issue(fn, i):
            if i > 5: return
            if i < s.g7:
                for j in range(8): fn(i, j, W[i])
                return
            l = s.lab("L_ci"); e(f"s_cmp_le_u32 {sH6}, {i}\ns_cbranch_scc1 {l}")
            for j in range(4 if (i == 5 and s.half) else 8): fn(i, j, W[i] if i < 5 else s.W5)
            e(f"{l}:")
        sC = s.sC
        for i in range(6):
            if i >= s.g7: e(f"s_cmp_le_u32 {sH6}, {i}\ns_cbranch_scc1 L_A_fin")
            n5 = 4 if s.half else 8
            hf = (i == 5 and s.half)
            e(f"s_waitcnt vmcnt({24 if i < 4 else 8 + 2*n5 if i == 4 else n5})")
            if s.g7 - 1 <= i < 5: cond_wait(i + 1, 8)
            for blk in range(1 if hf else 2):
                for kk in range(4):
                    e(f"ds_read_b128 {s.q(vKa+16*blk+4*kk)}, v{vKrd+kk} offset:{(i&1)*8192+blk*4096}")
            if hf:
                for k in range(4): e(f"v_mov_b32 v{vS+4+k}, 0xff800000")
            e("s_waitcnt lgkmcnt(0)")
            for kk in range(4):
                for blk in range(1 if hf else 2):
                    c = "0" if kk == 0 else s.q(vS+4*blk)
                    e(f"v_mfma_f32_16x16x32_bf16 {s.q(vS+4*blk)}, {s.q(vKa+16*blk+4*kk)}, {s.q(vQ+4*kk)}, {c}")
            cond_issue(kload, i + 2)
            e(f"v_max3_f32 v{vt}, v{vS}, v{vS+1}, v{vS+2}\nv_max3_f32 v{vt}, v{vt}, v{vS+3}, v{vS+4}\nv_max3_f32 v{vt}, v{vt}, v{vS+5}, v{vS+6}")
            if i == 0: e(f"v_max_f32 v{vt}, v{vt}, v{vS+7}")
            else: e(f"v_max3_f32 v{vt}, v{vt}, v{vS+7}, v{vM}")
            s.xreduce("v_max_f32", vt, vu)
            e(f"v_mul_f32 v{vNm}, {sC}, v{vt}")
            if i > 0: e(f"v_fma_f32 v{vAl}, v{vM}, {sC}, -v{vNm}\nv_exp_f32 v{vAl}, v{vAl}")
            e(f"v_mov_b32 v{vM}, v{vt}")
            for k in range(8): e(f"v_fma_f32 v{vS+k}, v{vS+k}, {sC}, -v{vNm}")
            if i > 0:
                e(f"v_mov_b32_dpp v{vA2}, v{vAl} row_newbcast:0 row_mask:0x5 bank_mask:0xf\nv_mov_b32_dpp v{vA2}, v{vAl} row_newbcast:4 row_mask:0xa bank_mask:0xf")
            for k in range(8): e(f"v_exp_f32 v{vS+k}, v{vS+k}")
            if i > 0:
                for k in range(8): e(f"v_mul_f32 v{vAcc+4*k}, v{vA2}, v{vAcc+4*k}")
            for k in range(4): e(f"v_cvt_pk_bf16_f32 v{vP+k}, v{vS+2*k}, v{vS+2*k+1}")
            e(f"v_add_f32 v{vS}, v{vS}, v{vS+1}\nv_add_f32 v{vS+2}, v{vS+2}, v{vS+3}\nv_add_f32 v{vS+4}, v{vS+4}, v{vS+5}\nv_add_f32 v{vS+6}, v{vS+6}, v{vS+7}")
            e(f"v_add_f32 v{vS}, v{vS}, v{vS+2}\nv_add_f32 v{vS+4}, v{vS+4}, v{vS+6}\nv_add_f32 v{vS}, v{vS}, v{vS+4}")
            if i == 0: e(f"v_mov_b32 v{vL}, v{vS}")
            else: e(f"v_fma_f32 v{vL}, v{vL}, v{vAl}, v{vS}")
            e(f"s_waitcnt vmcnt({0 if i == 5 else 2*n5 if i == 4 else 16 if i + 2 >= s.g7 else 24})")
            if s.g7 - 1 <= i < 5: cond_wait(i + 1, 0)
            s.vlike(vAcc, vP, [vV+(i&1)*32+4*j for j in range(8)], (vT0, vT1), i == 0)
            cond_issue(vload, i + 2)
            if i == 0: s.st(7)
        e("L_A_fin:")
        s.st(8)
        s.xreduce("v_add_f32", vL, vu)
        e(f"v_mul_f32 v{vM}, {sC}, v{vM}\nds_write2_b32 v{vE1}, v{vM}, v{vL} offset0:0 offset1:16")
        s.gather0(vAcc, vS)
        e(f"ds_write_b128 v{vE0}, {s.q(vS)}\nds_write_b128 v{vE0}, {s.q(vS+4)} offset:16\ns_waitcnt lgkmcnt(0)\ns_barrier")
        s.st(9)
        e(f"s_cmp_ge_u32 {s.sW}, 4\ns_cbranch_scc1 L_A_done")
        e(f"ds_read2_b32 {s.q(vP,2)}, v{vE3} offset0:0 offset1:16")
        for k in range(8): e(f"ds_read_b32 v{vS+k}, v{vE2} offset:{k*1024}")
        e("s_waitcnt lgkmcnt(8)")
        s.red8("v_max_f32", vM, vP)
        e(f"v_sub_f32 v{vP}, v{vP}, v{vM}\nv_exp_f32 v{vP}, v{vP}\nv_mul_f32 v{vL}, v{vP}, v{vP+1}")
        s.red8("v_add_f32", vL, vL)
        e(f"""v_rcp_f32 v{vAl}, v{vL}
        v_log_f32 v{vL}, v{vL}
        v_mul_f32 v{vP}, v{vP}, v{vAl}
        v_add_f32 v{vE6}, v{vL}, v{vM}
        s_waitcnt lgkmcnt(0)
        v_mul_f32_dpp v{vA2}, v{vP}, v{vS} row_newbcast:0 {DM}""")
        for k in range(1, 8): e(f"v_fmac_f32_dpp v{vA2}, v{vP}, v{vS+k} row_newbcast:{k} {DM}")
        s.intag([vA2], vE7, "s55")
        s.fl(sDn, f"""buffer_store_dword v{vA2}, v{vE4}, {s.sWS}, s53 offen # ;@AP
        s_mov_b64 exec, 1
        buffer_store_dwordx2 {s.q(vE6,2)}, v{vE4}, {s.sWS}, s54 offen # ;@AP
        s_mov_b64 exec, -1""", "ap")
        e("L_A_done:")
        s.st(10)
        s.stamps_out(11)
        e("s_endpgm")

    def roleB(s):
        e = s.e
        sCK, sUV, sWO2, sWO, sG, sOUT = "s[20:23]","s[24:27]","s[28:31]","s[32:35]","s[36:39]","s[40:43]"
        sOUT = "s[12:15]"
        e("L_B:"); s.inB = True
        if s.noB: e("s_endpgm")
        s.post = list(s.common_post)
        s.srd(20, 6, 16777216); s.srd(24, 9, 4194304)
        s.srd(28, 10, 4718592); s.srd(32, 4, 4718592); s.srd(36, 11, 1152); s.srd(12, 12, 2304)
        for p in s.post: e(p)
        s.lane_common(); s.consts()
        sH, sHalf, sJ, sAb, sXq, sCb, sHo, sTl, sX8, sY, sFb, sLoc = "s57","s58","s59","s60","s61","s62","s63","s64","s16","s17","s18","s19"
        sT0, sT1, sT2, sT3, sCh = "s49","s50","s51","s52","s67"
        e(f"""s_and_b32 {sX8}, s2, 7
        s_lshr_b32 {sY}, s2, 3
        s_and_b32 {sAb}, {sX8}, 1
        s_lshr_b32 {sXq}, {sX8}, 1
        s_lshl_b32 {sCb}, {sAb}, 23
        s_lshl_b32 {sT2}, {sXq}, 21
        s_add_u32 {sCb}, {sCb}, {sT2}
        s_lshl_b32 {sT2}, {sY}, 18
        s_add_u32 {sCb}, {sCb}, {sT2}
        s_lshl_b32 {sT2}, {s.sW}, 13
        s_add_u32 {sCb}, {sCb}, {sT2}
        s_lshl_b32 {sFb}, {sX8}, 3
        s_add_u32 {sFb}, {sFb}, {sY}
        s_and_b32 {sHalf}, {sY}, 1""")
        if s.hmap == 0: e(f"s_mov_b32 {sJ}, {sFb}")
        else: e(f"s_lshr_b32 {sT0}, {sY}, 2\ns_lshl_b32 {sT0}, {sT0}, 3\ns_add_u32 {sT0}, {sT0}, {sX8}\ns_lshl_b32 {sT0}, {sT0}, 2\ns_and_b32 {sJ}, {sY}, 3\ns_add_u32 {sJ}, {sJ}, {sT0}")
        e(f"s_lshr_b32 {sH}, {sJ}, 1\ns_lshl_b32 {sHo}, {sH}, 8")
        vL16, vt, vu, vD, vUo = 4, 5, 6, 7, 8
        vG0, vG1, vTag = 12, 13, 14
        vCrd, vTr = 16, 20
        vMq, vLq, vMp, vAq, vAp, vNm, vPw, vPr, vXw, vXq, vXp = 24,25,26,27,28,29,30,31,9,10,11
        vS, vT0, vT1, vT3 = 32, 40, 252, 220
        vP, vCa, vO, vUV, vQ = 44, 60, 92, 124, 156
        e(f"""v_lshlrev_b32 v{vL16}, 4, v1
        s_and_b32 {sT2}, {s.sW}, 1
        s_mul_i32 {sT2}, {sT2}, 48
        v_xor_b32 v{vD}, {sT2}, v{vL16}""")
        def tile_ld(soff, slot_s=None, dst=None, w=None):
            for j in range(8):
                if j == 0 and slot_s: e(f"s_mov_b32 m0, {slot_s}")
                if j == 4:
                    if slot_s: e(f"s_add_u32 m0, {slot_s}, 4096")
                    e(f"s_add_u32 {sT3}, {soff}, 4096")
                e(f"v_xor_b32 v{vu}, {(4*(j&3)+2*(j>>2))<<4}, v{vD}")
                if w: e(f"s_waitcnt vmcnt({w-1})")
                if slot_s: e(f"buffer_load_dwordx4 v{vu}, {sCK}, {soff if j<4 else sT3} offen offset:{(j&3)*1024} nt lds")
                else: e(f"buffer_load_dwordx4 {s.q(dst+4*j)}, v{vu}, {sCK}, {soff if j<4 else sT3} offen offset:{(j&3)*1024} nt")
        t3n = [0]
        def t3_load(n):
            for _ in range(n):
                j = t3n[0]; t3n[0] += 1
                if j % 4 == 0: e(f"s_add_u32 {sTl}, {sCb}, {3*65536 + (j>>2)*4096}")
                e(f"v_xor_b32 v{vUo}, {(4*(j&3)+2*(j>>2))<<4}, v{vD}")
                e(f"buffer_load_dwordx4 {s.q(vT3+4*j)}, v{vUo}, {sCK}, {sTl} offen offset:{(j&3)*1024} nt")
        uvn = [0]
        def uv_load(n):
            for _ in range(n):
                j = uvn[0]; uvn[0] += 1
                e(f"buffer_load_dwordx4 {s.q(vUV+4*j)}, v{vUo}, {sUV}, {sTl} offen nt")
                if j < 7: e(f"s_add_u32 {sTl}, {sTl}, 8192")
        def first_loads(bw, prio=True):
            e(f"s_lshl_b32 {sT2}, {s.sW}, 13")
            tile_ld(sCb, sT2, None, bw[0])
            e(f"s_add_u32 {sT0}, {sCb}, 65536\ns_add_u32 {sT2}, {sT2}, {R1}")
            tile_ld(sT0, sT2, None, bw[1])
            if prio: e("s_setprio 1")
            e(f"s_add_u32 {sT0}, {sCb}, {2*65536}")
            tile_ld(sT0, None, vUV, bw[2])
            if prio: e("s_setprio 0")
            if not s.t3s:
                e(f"s_add_u32 {sT0}, {sCb}, {3*65536}")
                tile_ld(sT0, None, vT3, bw[2])
        e(f"s_waitcnt lgkmcnt(0)\ns_cmp_eq_u32 {s.sW}, 7\ns_cbranch_scc1 L_B_svc")
        e(f"s_setprio 2\ns_cmp_lg_u32 {s.sW}, 6\ns_cbranch_scc1 L_B_w05")
        s.code_prefetch(vt, vCa)
        e(f"""v_and_b32 v{vt}, 31, v1
        v_mul_u32_u24 v{vt}, 36, v{vt}
        v_lshrrev_b32 v{vu}, 5, v1
        v_mul_u32_u24 v{vu}, 1152, v{vu}
        v_add_u32 v{vu}, v{vu}, v{vt}
        buffer_load_dwordx4 {s.q(vQ)}, v{vu}, {s.sX}, 0 offen
        buffer_load_dwordx4 {s.q(vQ+4)}, v{vu}, {s.sX}, 0 offen offset:16
        buffer_load_dword v{vQ+8}, v{vu}, {s.sX}, 0 offen offset:32
        buffer_load_dwordx4 {s.q(vQ+12)}, v{vt}, {sG}, 0 offen
        buffer_load_dwordx4 {s.q(vQ+16)}, v{vt}, {sG}, 0 offen offset:16
        buffer_load_dword v{vQ+20}, v{vt}, {sG}, 0 offen offset:32
        v_mov_b32 v{vS}, 0
        s_waitcnt vmcnt(0)""")
        for k in range(9): e(f"v_dot2c_f32_bf16 v{vS}, v{vQ+k}, v{vQ+12+k}")
        s.dppreduce("v_add_f32", vS, (8, 4, 2, 1))
        s.xreduce("v_add_f32", vS, vt, (16,))
        e(f"""v_mul_f32 v{vS}, {hex(f2u(-math.log2(math.e)))}, v{vS}
        v_exp_f32 v{vS}, v{vS}
        v_add_f32 v{vS}, 1.0, v{vS}
        v_rcp_f32 v{vG0}, v{vS}
        L_B_w05:""")
        first_loads(s.BW)
        s.st(1)
        e("s_branch L_B_bv")
        vE, vZ, vSn = vCa, vCa+1, vCa+4
        e(f"""L_B_svc:
        s_setprio 3
        v_mov_b32 v{vZ}, 0
        s_load_dword s64, s[8:9], 0
        v_mov_b32 v{vSn}, -1
        v_mov_b32 v{vSn+1}, -1
        v_mov_b32 v{vSn+2}, -1
        v_mov_b32 v{vSn+3}, -1""")
        e(f"""s_lshl_b32 {sT0}, {sHalf}, 15
        s_lshl_b32 {sT1}, {sH}, 10
        s_add_u32 {sT0}, {sT0}, {sT1}
        s_add_u32 {sT0}, {sT0}, {WS_QABS}
        buffer_store_dwordx4 {s.q(vSn)}, v{vL16}, {s.sWS}, {sT0} offen sc1
        s_lshl_b32 {sT1}, {sFb}, 7
        s_add_u32 {sT1}, {sT1}, {WS_F1}""")
        e(f"""s_getreg_b32 s43, hwreg(HW_REG_XCC_ID, 0, 4)
        s_waitcnt lgkmcnt(0)
        s_mul_i32 s64, s64, 0x9e3779b1
        s_add_u32 s64, s64, 0x7f4a7c15
        v_mov_b32 v{vTag}, s64
        v_mov_b32 v{vTag+1}, s43
        s_waitcnt vmcnt(0)
        s_mov_b64 exec, 1
        buffer_store_dwordx2 {s.q(vTag,2)}, v{vZ}, {s.sWS}, {sT1} offen sc1
        s_mov_b64 exec, -1""")
        s.st(1)
        e(f"s_lshl_b32 {sT2}, {s.sW}, 13")
        tile_ld(sCb, sT2, None, None)
        e(f"s_add_u32 {sT0}, {sCb}, 65536\ns_add_u32 {sT2}, {sT2}, {R1}")
        tile_ld(sT0, sT2, None, None)
        e(f"v_lshlrev_b32 v{vt}, 7, v1\ns_mov_b32 {sT1}, {WS_F1}\nbuffer_load_dwordx2 {s.q(vS,2)}, v{vt}, {s.sWS}, {sT1} offen sc1")
        e(f"s_add_u32 {sT0}, {sCb}, {2*65536}")
        tile_ld(sT0, None, vUV, None)
        if not s.t3s:
            e(f"s_add_u32 {sT0}, {sCb}, {3*65536}")
            tile_ld(sT0, None, vT3, None)
        s.spin_init()
        e(f"s_waitcnt vmcnt({8 if s.t3s else 16})\ns_branch L_B_vc\nL_B_vf:\nbuffer_load_dwordx2 {s.q(vS,2)}, v{vt}, {s.sWS}, {sT1} offen sc1\ns_waitcnt vmcnt(0)\nL_B_vc:\nv_cmp_ne_u32 vcc, v{vS}, v{vTag}")
        s.spin_retry("L_B_vf")
        e(f"""v_cmp_ne_u32 vcc, v{vS+1}, v{vTag+1}
        s_lshl_b32 {sT0}, {sX8}, 3
        s_lshr_b64 s[54:55], vcc, {sT0}
        s_and_b32 s54, s54, 0xff
        s_cselect_b32 s54, {1 if "nodep" in s.dbg else 0}, 1
        v_mov_b32 v{vTag+1}, s54""")
        s.st(3)
        e("s_setprio 0\nL_B_bv:")
        s.st(4)
        e("s_barrier")
        e(f"""s_lshl_b32 {sT0}, {sAb}, 15
        s_lshl_b32 {sT1}, {s.sW}, 12
        s_add_u32 {sT0}, {sT0}, {sT1}
        s_add_u32 {sT0}, {sT0}, {WS_QABS}
        s_lshl_b32 {sT2}, {s.sW}, 6
        s_and_b32 {sT2}, {sT2}, 0xff
        v_xor_b32 v{vt}, {sT2}, v{vL16}
        s_add_u32 {sT1}, {sT1}, {X}
        v_add_u32 v{vt}, {sT1}, v{vt}""")
        s.spin_init()
        e("L_B_qp:")
        for q_ in range(4): e(f"buffer_load_dwordx4 {s.q(vCa+4*q_)}, v{vL16}, {s.sWS}, {sT0} offen offset:{q_*1024} sc1")
        e("s_waitcnt vmcnt(0)")
        s.sentinel_check(range(vCa, vCa+16), vu)
        s.spin_retry("L_B_qp", s.qsl)
        for q_ in range(4):
            if q_: e(f"v_xor_b32 v{vu}, {q_<<4}, v{vt}")
            e(f"ds_write_b128 v{vu if q_ else vt}, {s.q(vCa+4*q_)} offset:{q_*1024}")
        e(f"""s_lshr_b32 {sT0}, {s.sW}, 2
        s_and_b32 {sT1}, {s.sW}, 3
        v_xor_b32 v{vt}, v2, v3
        v_lshlrev_b32 v{vt}, 4, v{vt}
        v_lshl_or_b32 v{vt}, v3, 10, v{vt}
        s_lshl_b32 {sT2}, {sT0}, 14
        s_add_u32 {sT2}, {sT2}, {X}
        v_add_u32 v{vTr}, {sT2}, v{vt}
        v_xor_b32 v{vTr+1}, 64, v{vTr}
        v_xor_b32 v{vTr+2}, 0x80, v{vTr}
        v_xor_b32 v{vTr+3}, 0xc0, v{vTr}
        s_waitcnt lgkmcnt(0)""")
        s.st(6)
        e("s_barrier")
        for kk in range(16): e(f"ds_read_b128 {s.q(vQ+4*kk)}, v{vTr+(kk&3)} offset:{(kk>>2)*256}")
        e(f"""s_mov_b32 {sT3}, 0x78
        v_lshrrev_b32 v{vt}, 2, v3
        v_lshlrev_b32 v{vt}, 1, v{vt}
        v_bfe_u32 v{vt}, {sT3}, v{vt}, 2
        v_and_b32 v{vu}, 3, v3
        v_lshl_or_b32 v{vt}, v{vu}, 2, v{vt}
        v_xor_b32 v{vt}, v{vt}, v2
        v_lshlrev_b32 v{vt}, 4, v{vt}
        v_lshl_or_b32 v{vt}, v3, 10, v{vt}
        s_lshl_b32 {sT2}, {sT1}, 14
        v_add_u32 v{vCrd}, {sT2}, v{vt}
        v_xor_b32 v{vCrd+1}, 64, v{vCrd}
        v_xor_b32 v{vCrd+2}, 0x80, v{vCrd}
        v_xor_b32 v{vCrd+3}, 0xc0, v{vCrd}
        s_lshl_b32 {sT2}, {sT0}, 4
        v_add_u32 v{vt}, {sT2}, v3
        v_mul_u32_u24 v{vPw}, 272, v{vt}
        v_lshl_add_u32 v{vPw}, v2, 3, v{vPw}
        s_lshl_b32 {sT2}, {sT1}, 5
        s_add_u32 {sT2}, {sT2}, {L_PB}
        v_add_u32 v{vPw}, {sT2}, v{vPw}
        v_lshlrev_b32 v{vXq}, 4, v{vt}
        v_add_u32 v{vXq}, {L_MX}, v{vXq}
        s_lshl_b32 {sT2}, {sT1}, 2
        v_add_u32 v{vXw}, {sT2}, v{vXq}
        v_and_b32 v{vt}, 31, v1
        v_lshlrev_b32 v{vXp}, 4, v{vt}
        v_add_u32 v{vXp}, {L_MX}, v{vXp}
        v_mul_u32_u24 v{vPr}, 272, v{vt}
        v_lshrrev_b32 v{vu}, 5, v1
        v_lshl_add_u32 v{vPr}, v{vu}, 4, v{vPr}
        v_add_u32 v{vPr}, {L_PB}, v{vPr}
        s_waitcnt lgkmcnt(0)
        v_bfe_u32 v{vt}, v1, 2, 2
        v_lshl_add_u32 v{vTr+1}, v{vu}, 3, v{vt}
        v_lshlrev_b32 v{vTr+1}, 10, v{vTr+1}
        v_lshlrev_b32 v{vt}, 2, v{vt}
        v_mad_u32_u24 v{vt}, v{vu}, 3, v{vt}
        v_bfe_u32 v{vu}, v1, 4, 1
        v_lshlrev_b32 v{vu}, 1, v{vu}
        v_bfe_u32 v{vTr+2}, v1, 1, 1
        v_add_u32 v{vu}, v{vu}, v{vTr+2}
        s_lshl_b32 {sT2}, {s.sW}, 3
        v_add_u32 v{vu}, {sT2}, v{vu}
        v_xor_b32 v{vu}, v{vu}, v{vt}
        v_lshl_or_b32 v{vTr}, v{vu}, 4, v{vTr+1}
        v_and_b32 v{vu}, 1, v1
        v_lshl_or_b32 v{vTr}, v{vu}, 3, v{vTr}
        v_xor_b32 v{vTr+1}, 64, v{vTr}
        v_xor_b32 v{vTr+2}, 32, v{vTr}
        v_xor_b32 v{vTr+3}, 0x60, v{vTr}""")
        def w_dma(srd, ldsbase, a, b):
            for j in range(a, b):
                if j % 4 == 0 or j == a: e(f"s_add_u32 m0, s66, {ldsbase + (j>>2)*4096}\ns_add_u32 s68, s65, {(j>>2)*4096}")
                if s.swz:
                    e(f"v_add_u32 v{vAq}, {8*j*7282}, v{vMq}\nv_bfe_u32 v{vAq}, v{vAq}, 17, 2\nv_lshlrev_b32 v{vAq}, 5, v{vAq}\nv_xor_b32 v{vAq}, v{vAq}, v{vL16}")
                e(f"buffer_load_dwordx4 v{vAq if s.swz else vL16}, {srd}, s68 offen offset:{(j&3)*1024} nt lds")
        def tog(r):
            for k in range(4): e(f"v_xor_b32 v{r+k}, 0x10000, v{r+k}")
        def stile(tl):
            if s.bdet: s.st2(5*tl)
            e("s_barrier")
            if s.bdet: s.st2(5*tl+1)
            uv = (lambda n: uv_load(n) if uvn[0] < s.uvs else None) if tl == 1 else (lambda n: t3_load(n)) if s.t3s else (lambda n: None)
            if tl == 0:
                l = s.lab("L_gt")
                e(f"""s_cmp_lt_u32 {s.sW}, 6
                s_cbranch_scc1 {l}
                s_cmp_eq_u32 {s.sW}, 6
                s_cbranch_scc1 {l}a
                v_mov_b32 v{vt}, {L_GT+8}
                ds_write_b64 v{vt}, {s.q(vTag,2)}
                s_branch {l}
                {l}a:
                v_lshrrev_b32 v{vt}, 5, v1
                v_lshlrev_b32 v{vt}, 2, v{vt}
                v_add_u32 v{vt}, {L_GT}, v{vt}
                ds_write_b32 v{vt}, v{vG0}
                {l}:""")
            def crd(n):
                if n == 16: tog(vCrd)
                kk = n & 15
                e(f"ds_read_b128 {s.q(vCa+4*(n&7))}, v{vCrd+(kk&3)} offset:{(kk>>2)*256}")
                if n == 31: tog(vCrd)
            for n in range(8): crd(n)
            uv(1)
            for h4 in range(8):
                e(f"s_waitcnt lgkmcnt({4 if h4 < 7 else 0})")
                for n in range(4*h4, 4*h4+4):
                    d = vS + 4*(n >> 4)
                    c = "0" if (n & 15) == 0 else s.q(d)
                    e(f"v_mfma_f32_16x16x32_bf16 {s.q(d)}, {s.q(vCa+4*(n&7))}, {s.q(vQ+4*(n&15))}, {c}")
                if h4 < 6:
                    for n in range(4*h4+8, 4*h4+12): crd(n)
                if h4 in (1, 3, 5): uv(1)
            e(f"v_max3_f32 v{vt}, v{vS}, v{vS+1}, v{vS+2}\nv_max3_f32 v{vt}, v{vt}, v{vS+3}, v{vS+4}\nv_max3_f32 v{vt}, v{vt}, v{vS+5}, v{vS+6}\nv_max_f32 v{vt}, v{vt}, v{vS+7}")
            s.xreduce("v_max_f32", vt, vu)
            e(f"ds_write_b32 v{vXw}, v{vt}\ns_waitcnt lgkmcnt(0)\ns_barrier")
            if s.bdet: s.st2(5*tl+2)
            if tl == 0: e(f"v_mov_b32 v{vt}, {L_GT}\nds_read_b128 {s.q(vG0)}, v{vt}")
            e(f"ds_read_b128 {s.q(vT0)}, v{vXq}\nds_read_b128 {s.q(vT1)}, v{vXp}")
            uv(1)
            e("s_waitcnt lgkmcnt(1)")
            e(f"v_max3_f32 v{vt}, v{vT0}, v{vT0+1}, v{vT0+2}")
            if tl == 0: e(f"v_max_f32 v{vMq}, v{vt}, v{vT0+3}\nv_readfirstlane_b32 {sLoc}, v{vTag+1}\nv_mul_f32 v{vNm}, {s.sC}, v{vMq}")
            else:
                e(f"""v_max3_f32 v{vt}, v{vt}, v{vT0+3}, v{vMq}
                v_mul_f32 v{vNm}, {s.sC}, v{vt}
                v_fma_f32 v{vAq}, v{vMq}, {s.sC}, -v{vNm}
                v_exp_f32 v{vAq}, v{vAq}""")
            for k in range(8): e(f"v_fma_f32 v{vS+k}, v{vS+k}, {s.sC}, -v{vNm}")
            for k in range(8): e(f"v_exp_f32 v{vS+k}, v{vS+k}")
            for k in range(4): e(f"v_cvt_pk_bf16_f32 v{vT0+k}, v{vS+2*k}, v{vS+2*k+1}")
            e(f"ds_write_b64 v{vPw}, {s.q(vT0,2)}\nds_write_b64 v{vPw}, {s.q(vT0+2,2)} offset:128")
            for k in range(4): e(f"v_add_f32 v{vS+k}, v{vS+k}, v{vS+4+k}")
            e(f"v_add_f32 v{vS}, v{vS}, v{vS+1}\nv_add_f32 v{vS+2}, v{vS+2}, v{vS+3}")
            e(f"s_waitcnt lgkmcnt(2)\nv_max3_f32 v{vt}, v{vT1}, v{vT1+1}, v{vT1+2}")
            if tl == 0:
                e(f"v_add_f32 v{vLq}, v{vS}, v{vS+2}\nv_max_f32 v{vMp}, v{vt}, v{vT1+3}")
            else:
                e(f"""v_add_f32 v{vS}, v{vS}, v{vS+2}
                v_max3_f32 v{vt}, v{vt}, v{vT1+3}, v{vMp}
                v_fma_f32 v{vLq}, v{vLq}, v{vAq}, v{vS}
                v_sub_f32 v{vAp}, v{vMp}, v{vt}
                v_mul_f32 v{vAp}, {s.sC}, v{vAp}
                v_exp_f32 v{vAp}, v{vAp}
                v_mov_b32 v{vMp}, v{vt}""")
                s.xreduce("v_add_f32", vLq, vu)
                e(f"ds_write_b32 v{vXw}, v{vLq} offset:512")
                for k in range(32): e(f"v_mul_f32 v{vO+k}, v{vAp}, v{vO+k}")
            e("s_waitcnt lgkmcnt(0)\ns_barrier")
            if s.bdet: s.st2(5*tl+3)
            def prd(ks):
                if ks == 4: tog(vTr)
                e(f"ds_read_b128 {s.q(vP+4*(ks&3))}, v{vPr} offset:{ks*32}")
                for mb in range(2):
                    for t in range(2):
                        e(f"ds_read_b64_tr_b16 {s.q(vCa+8*(ks&3)+4*mb+2*t,2)}, v{vTr+2*t+mb} offset:{(ks&3)*16384+t*4096}")
                if ks == 7: tog(vTr)
            for ks in range(4): prd(ks)
            uv(1)
            for ks in range(8):
                e(f"s_waitcnt lgkmcnt({min(15, 5*(7-ks))})")
                for mb in range(2):
                    c = "0" if (tl == 0 and ks == 0) else s.q(vO+16*mb,16)
                    e(f"v_mfma_f32_32x32x16_bf16 {s.q(vO+16*mb,16)}, {s.q(vCa+8*(ks&3)+4*mb)}, {s.q(vP+4*(ks&3))}, {c}")
                if ks < 4: prd(ks+4)
                if ks in (1, 3): uv(1)
            e("s_barrier")
            if s.bdet: s.st2(5*tl+4)
        stile(0)
        e(f"s_lshl_b32 {sT2}, {s.sW}, 13\nv_add_u32 v{vt}, {sT2}, v{vL16}\nv_add_u32 v{vNm}, {R1}, v{vt}")
        for j in range(8): e(f"ds_write_b128 v{vt}, {s.q(vUV+4*j)} offset:{j*1024}")
        for j in range(8):
            if s.t3s: e(f"s_waitcnt vmcnt({7-j})")
            e(f"ds_write_b128 v{vNm}, {s.q(vT3+4*j)} offset:{j*1024}")
        e(f"""v_lshrrev_b32 v{vUo}, 3, v1
        v_lshlrev_b32 v{vUo}, 16, v{vUo}
        v_and_b32 v{vu}, 7, v1
        v_lshl_add_u32 v{vUo}, v{vu}, 4, v{vUo}
        s_lshl_b32 {sTl}, {s.sW}, 19
        s_add_u32 {sTl}, {sTl}, {sHo}
        s_lshl_b32 {sT3}, {sHalf}, 7
        s_add_u32 {sTl}, {sTl}, {sT3}
        s_waitcnt lgkmcnt(0)""")
        stile(1)
        s.st(7); s.sd(1)
        e(f"""ds_read_b128 {s.q(vT0)}, v{vXp} offset:512
        v_and_b32 v{vt}, 31, v1
        v_mul_u32_u24 v{vt}, 1040, v{vt}
        v_lshrrev_b32 v{vu}, 5, v1
        v_lshl_add_u32 v{vt}, v{vu}, 3, v{vt}
        s_lshl_b32 {sT2}, {s.sW}, 7
        s_add_u32 {sT2}, {sT2}, {L_OS}
        v_add_u32 v{vt}, {sT2}, v{vt}
        s_waitcnt lgkmcnt(0)
        v_add_f32 v{vT0}, v{vT0}, v{vT0+1}
        v_add_f32 v{vT0+2}, v{vT0+2}, v{vT0+3}
        v_add_f32 v{vT0}, v{vT0}, v{vT0+2}
        v_rcp_f32 v{vAp}, v{vT0}
        v_log_f32 v{vT0}, v{vT0}
        v_mov_b32 v{vT0+1}, v{vTag}
        v_fma_f32 v{vT0}, v{vMp}, {s.sC}, v{vT0}""")
        for k in range(32): e(f"v_mul_f32 v{vO+k}, v{vAp}, v{vO+k}")
        for k in range(16): e(f"v_cvt_pk_bf16_f32 v{vCa+k}, v{vO+2*k}, v{vO+2*k+1}")
        for mb in range(2):
            for q4 in range(4): e(f"ds_write_b64 v{vt}, {s.q(vCa+8*mb+2*q4,2)} offset:{mb*64+q4*16}")
        e(f"""s_mul_i32 {sT2}, {s.sW}, 4160
        s_add_u32 {sT2}, {sT2}, {L_OS}
        v_add_u32 v{vt}, {sT2}, v{vL16}
        s_lshl_b32 {sT0}, {sX8}, 18
        s_lshl_b32 {sT1}, {s.sW}, 15
        s_add_u32 {sT0}, {sT0}, {sT1}
        s_lshl_b32 {sT1}, {sY}, 10
        s_add_u32 {sT0}, {sT0}, {sT1}
        s_add_u32 {sT0}, {sT0}, {WS_BP1}
        s_mul_i32 s65, {sJ}, 73728
        s_mul_i32 s66, {s.sW}, 9216
        s_add_u32 s65, s65, s66
        s_mul_i32 {sCh}, {s.sW}, 72
        v_lshrrev_b32 v{vMq}, 3, v1
        v_add_u32 v{vMq}, {sCh}, v{vMq}
        v_mul_u32_u24 v{vMq}, 7282, v{vMq}
        s_waitcnt lgkmcnt(0)
        s_barrier""")
        for q_ in range(4): e(f"ds_read_b128 {s.q(vCa+4*q_)}, v{vt} offset:{q_*1040}")
        e(f"""v_and_b32 v{vu}, 31, v1
        v_lshlrev_b32 v{vt}, 6, v{vu}
        v_lshlrev_b32 v{vXw}, 3, v{vu}
        s_lshl_b32 s53, {sX8}, 11
        s_add_u32 s53, s53, {WS_BS1}
        s_lshl_b32 {sT1}, {sY}, 3
        s_add_u32 {sT1}, {sT1}, s53
        s_lshl_b32 {sT2}, {sY}, 8
        s_add_u32 s53, s53, {sT2}
        s_waitcnt lgkmcnt(0)""")
        rows = lambda f: "\n".join(f"buffer_store_dwordx4 {s.q(vCa+4*q_)}, v{vL16}, {s.sWS}, {sT0} offen {f} ;@BP1" + (f"\ns_add_u32 {sT0}, {sT0}, 8192" if q_ < 3 else "") for q_ in range(4))
        stat = lambda f, l: f"s_cmp_lg_u32 {s.sW}, 7\ns_cbranch_scc1 {l}\nbuffer_store_dwordx2 {s.q(vT0,2)}, v{vt}, {s.sWS}, {sT1} offen {f}\n{l}:"
        fast = s.s1 and s.force != "sc1"
        if fast:
            e(f"s_cmp_eq_u32 {sLoc}, 0\ns_cbranch_scc1 L_B_far")
            e(stat("", "L_B_n0")); e(rows("")); e("s_barrier\ns_branch L_B_n1\nL_B_far:")
            e(rows("sc1")); e("s_waitcnt vmcnt(0)\ns_barrier"); e(stat("sc1", "L_B_n1"))
        else:
            s.fl(sLoc, rows("@"), "bp"); e("s_waitcnt vmcnt(0)\ns_barrier")
            l = s.lab("L_n"); e(f"s_cmp_lg_u32 {s.sW}, 7\ns_cbranch_scc1 {l}")
            s.fl(sLoc, f"buffer_store_dwordx2 {s.q(vT0,2)}, v{vt}, {s.sWS}, {sT1} offen @", "bp"); e(f"{l}:")
        s.sd(2)
        uv_load(8 - uvn[0])
        s.st(8)
        e(f"""v_lshrrev_b32 v{vu}, 5, v1
        v_and_b32 v{vt}, 31, v1
        v_lshlrev_b32 v{vt}, 4, v{vt}
        v_lshl_add_u32 v{vXq}, v{vu}, 10, v{vt}
        v_lshl_add_u32 v{vXp}, v{vu}, 3, v{vt}
        s_lshr_b32 {sT1}, {s.sW}, 1
        s_lshl_b32 {sT2}, {sY}, 2
        s_add_u32 {sT2}, {sT2}, {sT1}
        s_lshl_b32 {sT0}, {sX8}, 5
        s_add_u32 {sT0}, {sT0}, {sT2}
        s_lshl_b32 {sT0}, {sT0}, 13
        s_and_b32 {sT3}, {s.sW}, 1
        s_lshl_b32 {sT3}, {sT3}, 9
        s_add_u32 {sT0}, {sT0}, {sT3}
        s_add_u32 {sT0}, {sT0}, {WS_BP1}
        s_add_u32 s56, {sT0}, 4096
        s_mov_b32 s42, {sLoc if fast else 0}""")
        s.spin_init()
        w_dma(sWO2, 0, 0, 9)
        s.sd(3)
        e(f"L_B_p1:\nbuffer_load_dwordx2 {s.q(vS,2)}, v{vXw}, {s.sWS}, s53 offen sc1\ns_waitcnt vmcnt(0)\nv_cmp_ne_u32 vcc, v{vS+1}, v{vTag}")
        s.spin_retry("L_B_p1", 0)
        s.sd(4)
        for t in range(4): e(f"buffer_load_dwordx4 {s.q(vCa+4*t)}, v{vXq}, {s.sWS}, {sT0 if t < 2 else 's56'} offen offset:{(t&1)*2048} sc1")
        w_dma(sWO, L_WO, 0, s.c1)
        e(f"""s_lshl_b32 {sT2}, {sT2}, 3
        s_lshl_b32 {sT0}, {sAb}, 2
        s_add_u32 {sT2}, {sT2}, {sT0}
        s_add_u32 {sT2}, {sT2}, {sXq}
        s_lshl_b32 {sT2}, {sT2}, 10
        s_add_u32 {sT2}, {sT2}, {sT3}
        s_add_u32 {sT2}, {sT2}, {WS_BP2}
        s_lshl_b32 {sT1}, {sT1}, 5
        v_lshl_add_u32 v{vu}, v{vu}, 2, {sT1}""")
        s.red8("v_max_f32", vt, vS)
        e(f"v_sub_f32 v{vS}, v{vS}, v{vt}\nv_exp_f32 v{vS}, v{vS}")
        s.red8("v_add_f32", vT0, vS)
        e(f"v_rcp_f32 v{vAp}, v{vT0}\nv_log_f32 v{vT0}, v{vT0}\nv_mul_f32 v{vS}, v{vS}, v{vAp}\nv_add_f32 v{vT0}, v{vT0}, v{vt}")
        for t in range(4): e(f"ds_bpermute_b32 v{vP+t}, v{vu}, v{vS} offset:{8*t}")
        e(f"s_waitcnt vmcnt({s.c1}) lgkmcnt(0)")
        def wsum(rows, ws, acc):
            for t, (r, w_) in enumerate(zip(rows, ws)):
                for k in range(4):
                    e(f"v_lshlrev_b32 v{vT1}, 16, v{r+k}\nv_and_b32 v{vT1+1}, 0xffff0000, v{r+k}")
                    if t == 0: e(f"v_mul_f32 v{acc+2*k}, v{w_}, v{vT1}\nv_mul_f32 v{acc+2*k+1}, v{w_}, v{vT1+1}")
                    else: e(f"v_fmac_f32 v{acc+2*k}, v{w_}, v{vT1}\nv_fmac_f32 v{acc+2*k+1}, v{w_}, v{vT1+1}")
            for k in range(4): e(f"v_permlane32_swap_b32 v{acc+k}, v{acc+4+k}")
            for k in range(4): e(f"v_add_f32 v{acc+k}, v{acc+k}, v{acc+4+k}")
        s.sd(5)
        wsum([vCa+4*t for t in range(4)], [vP+t for t in range(4)], vO)
        e(f"""v_cvt_pk_bf16_f32 v{vO}, v{vO}, v{vO+1}
        v_cvt_pk_bf16_f32 v{vO+1}, v{vO+2}, v{vO+3}
        buffer_store_dwordx2 {s.q(vO,2)}, v{vXp}, {s.sWS}, {sT2} offen sc1""")
        w_dma(sWO, L_WO, s.c1, s.c1 + 2)
        e(f"""s_waitcnt vmcnt(2)
        v_lshlrev_b32 v{vt}, 3, v1
        s_lshl_b32 {sT0}, {sY}, 5
        s_lshl_b32 {sT1}, {sAb}, 2
        s_add_u32 {sT0}, {sT0}, {sT1}
        s_add_u32 {sT0}, {sT0}, {sXq}
        s_lshl_b32 {sT0}, {sT0}, 3
        s_add_u32 {sT0}, {sT0}, {WS_BS2}
        s_barrier
        s_cmp_lg_u32 {s.sW}, 7
        s_cbranch_scc1 L_B_n2
        s_mov_b64 exec, 0x01010101
        buffer_store_dwordx2 {s.q(vT0,2)}, v{vt}, {s.sWS}, {sT0} offen sc1
        s_mov_b64 exec, -1
        L_B_n2:""")
        s.st(5); s.sd(6)
        w_dma(sWO, L_WO, s.c1 + 2, 9)
        s.sd(7)
        e(f"""v_and_b32 v{vXw}, 7, v1
        v_lshlrev_b32 v{vXw}, 3, v{vXw}
        s_lshl_b32 {sT0}, {sH}, 6
        s_add_u32 {sT0}, {sT0}, {WS_BS2}
""")
        s.spin_init()
        e(f"""L_B_p2:
        buffer_load_dwordx2 {s.q(vS,2)}, v{vXw}, {s.sWS}, {sT0} offen sc1
        s_waitcnt vmcnt(0)
        v_cmp_ne_u32 vcc, v{vS+1}, v{vTag}""")
        s.spin_retry("L_B_p2", 1)
        s.sd(8)
        e(f"""v_lshlrev_b32 v{vu}, 4, v3
        v_lshl_or_b32 v{vt}, v2, 10, v{vu}
        s_lshr_b32 {sT1}, {s.sW}, 2
        s_lshl_b32 {sT0}, {sH}, 1
        s_add_u32 {sT0}, {sT0}, {sT1}
        s_lshl_b32 {sT0}, {sT0}, 12
        s_and_b32 {sT2}, {s.sW}, 3
        s_lshl_b32 {sT2}, {sT2}, 8
        s_add_u32 {sT0}, {sT0}, {sT2}
        s_add_u32 {sT0}, {sT0}, {WS_BP2}
        buffer_load_dwordx4 {s.q(vCa)}, v{vt}, {s.sWS}, {sT0} offen sc1
        s_lshl_b32 {sT0}, {sT1}, 10
        s_add_u32 {sT0}, {sT0}, {sT2}
        s_add_u32 {sT0}, {sT0}, {L_OCB}
        v_lshl_add_u32 v{vXp}, v2, 2, v{vu}
        v_add_u32 v{vXp}, {sT0}, v{vXp}
        s_lshl_b32 {sT1}, {sT1}, 4
        v_lshl_add_u32 v{vu}, v2, 2, {sT1}""")
        s.red4("v_max_f32", vt, vS)
        e(f"v_sub_f32 v{vS}, v{vS}, v{vt}\nv_exp_f32 v{vS}, v{vS}")
        s.red4("v_add_f32", vt, vS)
        e(f"v_rcp_f32 v{vt}, v{vt}\nv_mul_f32 v{vS}, v{vS}, v{vt}\nds_bpermute_b32 v{vP}, v{vu}, v{vS}\ns_waitcnt vmcnt(0) lgkmcnt(0)")
        s.sd(9)
        wsum([vCa], [vP], vO)
        e(f"""v_permlane16_swap_b32 v{vO}, v{vO+2}
        v_permlane16_swap_b32 v{vO+1}, v{vO+3}
        v_add_f32 v{vO}, v{vO}, v{vO+2}
        v_add_f32 v{vO+1}, v{vO+1}, v{vO+3}
        v_cvt_pk_bf16_f32 v{vO}, v{vO}, v{vO+1}
        ds_write_b32 v{vXp}, v{vO}""")
        e(f"""v_bfe_u32 v{vt}, v1, 2, 1
        v_lshlrev_b32 v{vt}, 10, v{vt}
        v_lshl_add_u32 v{vt}, v2, 5, v{vt}
        v_bfe_u32 v{vu}, v1, 3, 1
        v_lshl_add_u32 v{vt}, v{vu}, 4, v{vt}
        s_lshl_b32 {sT0}, {s.sW}, 7
        s_add_u32 {sT0}, {sT0}, {L_OCB}
        v_add_u32 v{vt}, {sT0}, v{vt}
        v_lshrrev_b32 v{vXq}, 5, v1
        v_cmp_eq_u32 vcc, v{vXq}, v{vu}
        v_lshlrev_b32 v{vXq}, 8, v2
        v_and_b32 v{vu}, 7, v1
        v_lshl_add_u32 v{vXq}, v{vu}, 5, v{vXq}
        s_lshl_b32 {sT0}, {s.sW}, 10
        v_add_u32 v{vXq}, {sT0}, v{vXq}
        v_mov_b32 v{vu}, 8192
        v_cndmask_b32 v{vXq}, v{vu}, v{vXq}, vcc
        v_add_u32 v{vXq}, {L_CP}, v{vXq}
        s_waitcnt lgkmcnt(0)
        s_barrier
        ds_read_b128 {s.q(vP)}, v{vt}
        s_waitcnt lgkmcnt(0)""")
        s.vlike(vO, vP, [vUV+4*j for j in range(8)], (vT0, vT1), True)
        s.gather0(vO, vP)
        e(f"ds_write_b128 v{vXq}, {s.q(vP)}\nds_write_b128 v{vXq}, {s.q(vP+4)} offset:16\ns_waitcnt lgkmcnt(0)\ns_barrier")
        e(f"""s_cmp_lg_u32 {s.sW}, 0
        s_cbranch_scc1 L_B_nx
        v_lshrrev_b32 v{vu}, 5, v1
        v_and_b32 v{vt}, 31, v1
        v_lshlrev_b32 v{vt}, 4, v{vt}
        v_lshl_add_u32 v{vt}, v{vu}, 12, v{vt}
        v_add_u32 v{vt}, {L_CP}, v{vt}""")
        for p in range(8): e(f"ds_read_b128 {s.q(vCa+4*p)}, v{vt} offset:{p*512}")
        e(f"""v_bfe_u32 v{vu}, v1, 4, 1
        v_cmp_eq_u32 vcc, 0, v{vu}
        v_cndmask_b32 v{vS}, v{vG1}, v{vG0}, vcc
        v_sub_f32 v{vS}, 1.0, v{vS}
        v_cmp_gt_u32 vcc, 32, v1
        v_lshlrev_b32 v{vt}, 3, v1
        v_add_u32 v{vt}, {L_CTX}, v{vt}
        s_waitcnt lgkmcnt(0)""")
        for k in range(4):
            for p in range(4): e(f"v_add_f32 v{vCa+8*p+k}, v{vCa+8*p+k}, v{vCa+8*p+4+k}")
            e(f"v_add_f32 v{vCa+k}, v{vCa+k}, v{vCa+8+k}\nv_add_f32 v{vCa+16+k}, v{vCa+16+k}, v{vCa+24+k}\nv_add_f32 v{vCa+k}, v{vCa+k}, v{vCa+16+k}")
        for k in range(4): s.xreduce("v_add_f32", vCa+k, vu, (32,))
        for k in range(4): e(f"v_mul_f32 v{vCa+k}, v{vS}, v{vCa+k}")
        e(f"""v_cvt_pk_bf16_f32 v{vCa}, v{vCa}, v{vCa+1}
        v_cvt_pk_bf16_f32 v{vCa+1}, v{vCa+2}, v{vCa+3}
        v_cndmask_b32 v{vCa}, 0, v{vCa}, vcc
        v_cndmask_b32 v{vCa+1}, 0, v{vCa+1}, vcc
        ds_write_b64 v{vt}, {s.q(vCa,2)}
        L_B_nx:
        s_waitcnt lgkmcnt(0)
        s_barrier""")
        s.st(9); s.sd(10)
        e(f"s_cmp_ge_u32 {s.sW}, 6\ns_cbranch_scc1 L_B_red")
        vD6, vWb, vA8, vPl = vO, vQ, vP, vCa
        e(f"""v_min_u32 v{vt}, 2, v3
        v_lshlrev_b32 v{vt}, 7, v{vt}
        v_lshl_add_u32 v{vt}, v2, 3, v{vt}
        v_add_u32 v{vt}, {L_CTX}, v{vt}
        v_lshrrev_b32 v{vu}, 2, v1
        v_mul_u32_u24 v{vu}, 1152, v{vu}
        v_and_b32 v{vXq}, 3, v1
        v_lshl_add_u32 v{vu}, v{vXq}, 3, v{vu}
        s_mul_i32 {sT0}, {s.sW}, 192
        v_bfe_u32 v{vXq}, v1, 3, 2
        v_lshlrev_b32 v{vXq}, 5, v{vXq}""")
        vWa = vCrd
        for ti in range(6):
            if s.swz: e(f"v_xor_b32 v{vWa+ti}, {sT0}, v{vXq}\nv_add_u32 v{vWa+ti}, v{vWa+ti}, v{vu}")
            else: e(f"v_add_u32 v{vWa+ti}, {sT0}, v{vu}")
            if ti < 5: e(f"s_add_u32 {sT0}, {sT0}, 32")
        for q_ in range(4): e(f"ds_read_b64 {s.q(vA8+2*q_,2)}, v{vt} offset:{q_*32}")
        def wtr():
            for ti in range(6):
                for q_ in range(4): e(f"ds_read_b64_tr_b16 {s.q(vWb+8*ti+2*q_,2)}, v{vWa+ti} offset:{q_*18432}")
        def wmf(init):
            for ks in range(2):
                for ti in range(6):
                    c = "0" if (init and ks == 0) else s.q(vD6+4*ti)
                    e(f"v_mfma_f32_16x16x32_bf16 {s.q(vD6+4*ti)}, {s.q(vA8+4*ks)}, {s.q(vWb+8*ti+4*ks)}, {c}")
        wtr()
        for ti in range(6): e(f"v_add_u32 v{vWa+ti}, {L_WO}, v{vWa+ti}")
        e("s_waitcnt lgkmcnt(0)")
        wmf(True)
        wtr()
        vPo, vPs, vGs, vOo, vT2 = vXq, vXp, vXw, vPw, vPr
        e(f"""v_and_b32 v{vt}, 1, v2
        v_mul_u32_u24 v{vt}, 36, v{vt}
        v_lshrrev_b32 v{vu}, 1, v2
        v_add_u32 v{vt}, v{vt}, v{vu}
        v_lshlrev_b32 v{vt}, 12, v{vt}
        v_lshl_add_u32 v{vOo}, v3, 2, v{vt}
        s_mul_i32 {sT1}, {s.sW}, {6*4096}
        s_lshl_b32 {sT2}, {sFb}, 6
        s_add_u32 {sT1}, {sT1}, {sT2}
        s_add_u32 {sT1}, {sT1}, {WS_OP}
        s_add_u32 {sT2}, {sT1}, 8192
        s_add_u32 {sT3}, {sT1}, 16384
        s_mov_b32 s53, 0xff
        v_add_u32 v{vMp}, {L_AOP}, v{vL16}
        {"" if s.allpoll else f"s_cmp_lg_u32 {s.sW}, 0" + chr(10) + "s_cbranch_scc1 L_B_hw"}
        v_lshlrev_b32 v{vPs}, 3, v3
        v_mov_b32 v{vt}, {OOB}
        v_cmp_gt_u32 s[54:55], 12, v3
        v_cndmask_b32 v{vPo}, v{vt}, v{vL16}, s[54:55]
        v_cndmask_b32 v{vPs}, v{vt}, v{vPs}, s[54:55]
        v_and_b32 v{vt}, 1, v1
        v_cmp_eq_u32 vcc, 0, v{vt}
        v_cndmask_b32 v{vGs}, v{vG1}, v{vG0}, vcc
        v_mov_b32 v{vNm}, 0xff800000
        v_and_b32 v{vT2}, 0xff, v{vTag}
        v_cndmask_b32 v{vT2}, 0, v{vT2}, s[54:55]
        v_cndmask_b32 v{vAq}, 0, v{vTag}, s[54:55]
        s_lshl_b32 {sT0}, {sJ}, 12
        s_add_u32 {sT0}, {sT0}, {WS_AP}
        s_lshl_b32 s56, {sJ}, 7
        s_add_u32 s56, s56, {WS_AST}""")
        s.sd(11)
        s.spin_init()
        e("L_B_h1:")
        e(f"buffer_load_dwordx2 {s.q(vS,2)}, v{vPs}, {s.sWS}, s56 offen sc1")
        for q_ in range(4): e(f"buffer_load_dwordx4 {s.q(vPl+4*q_)}, v{vPo}, {s.sWS}, {sT0} offen offset:{q_*1024} sc1")
        e("s_waitcnt vmcnt(0)")
        e(f"v_cmp_ne_u32 s[70:71], v{vS+1}, v{vAq}")
        s.incheck(list(range(vPl, vPl+16)), vu, vT0, vT2, "s69")
        e("s_or_b64 vcc, vcc, s[70:71]")
        s.spin_retry("L_B_h1", 0)
        s.st(10)
        e(f"v_cndmask_b32 v{vS}, v{vNm}, v{vS}, s[54:55]")
        e(f"v_max_f32_dpp v{vt}, v{vS}, v{vS} row_ror:2 {DM}")
        s.dppreduce("v_max_f32", vt, (4, 8))
        e(f"v_sub_f32 v{vS}, v{vS}, v{vt}\nv_exp_f32 v{vS}, v{vS}")
        e(f"v_add_f32_dpp v{vt}, v{vS}, v{vS} row_ror:2 {DM}")
        s.dppreduce("v_add_f32", vt, (4, 8))
        e(f"v_rcp_f32 v{vt}, v{vt}\nv_mul_f32 v{vS}, v{vS}, v{vGs}\nv_mul_f32 v{vS}, v{vS}, v{vt}")
        for k in range(16): e(f"v_mul_f32 v{vPl+k}, v{vS}, v{vPl+k}")
        for k in range(8): e(f"v_cvt_pk_bf16_f32 v{vA8+k}, v{vPl+2*k}, v{vPl+2*k+1}")
        if s.allpoll: e("s_waitcnt lgkmcnt(0)")
        else: e(f"""ds_write_b128 v{vMp}, {s.q(vA8)}
        ds_write_b128 v{vMp}, {s.q(vA8+4)} offset:1024
        s_waitcnt lgkmcnt(0)
        s_barrier
        s_branch L_B_hx
        L_B_hw:
        s_waitcnt lgkmcnt(0)
        s_barrier
        ds_read_b128 {s.q(vA8)}, v{vMp}
        ds_read_b128 {s.q(vA8+4)}, v{vMp} offset:1024
        s_waitcnt lgkmcnt(0)
        L_B_hx:""")
        wmf(False)
        for ti in range(6): e(f"v_add_f32 v{vD6+4*ti}, v{vD6+4*ti}, v{vD6+4*ti+2}\nv_add_f32 v{vD6+4*ti+1}, v{vD6+4*ti+1}, v{vD6+4*ti+3}")
        for u in range(3): e(f"v_permlane32_swap_b32 v{vD6+8*u}, v{vD6+8*u+4}\nv_permlane32_swap_b32 v{vD6+8*u+1}, v{vD6+8*u+5}")
        for u in range(3): e(f"v_add_f32 v{vD6+8*u}, v{vD6+8*u}, v{vD6+8*u+4}\nv_add_f32 v{vD6+8*u+1}, v{vD6+8*u+1}, v{vD6+8*u+5}")
        for u in range(3): e(f"v_permlane16_swap_b32 v{vD6+8*u}, v{vD6+8*u+1}")
        for u in range(3):
            a = vD6 + 8*u
            e(f"v_add_f32 v{a}, v{a}, v{a+1}\nv_bfi_b32 v{a}, s53, v{vTag}, v{a}")
            e(f"buffer_store_dword v{a}, v{vOo}, {s.sWS}, {[sT1,sT2,sT3][u]} offen sc1")
        e("s_branch L_B_done")
        e(f"""L_B_red:
        s_sub_u32 {sT0}, {s.sW}, 6
        s_lshl_b32 {sT0}, {sT0}, 6
        s_add_u32 {sT0}, {sT0}, {sFb}
        s_cmp_ge_u32 {sT0}, 72
        s_cbranch_scc1 L_B_done
        s_lshl_b32 {sT1}, {sT0}, 12
        s_add_u32 {sT1}, {sT1}, {WS_OP}
        s_lshl_b32 {sT2}, {sT0}, 5
        v_and_b32 v{vt}, 3, v1
        v_lshlrev_b32 v{vt}, 2, v{vt}
        v_and_b32 v{vu}, 1, v2
        v_lshl_add_u32 v{vt}, v{vu}, 1, v{vt}
        v_lshrrev_b32 v{vu}, 1, v2
        v_add_lshl_u32 v{vXq}, v{vt}, v{vu}, 1
        v_and_b32 v{vPr}, 0xff, v{vTag}
        {"" if s.allpoll else "s_barrier"}""")
        s.spin_init()
        e("L_B_h2:")
        for q_ in range(4): e(f"buffer_load_dwordx4 {s.q(vCa+4*q_)}, v{vL16}, {s.sWS}, {sT1} offen offset:{q_*1024} sc1")
        e("s_waitcnt vmcnt(0)")
        s.incheck(range(vCa, vCa+16), vu, vT0, vPr, "s69")
        s.spin_retry("L_B_h2", 0)
        s.st(10)
        for k in range(4): e(f"v_add_f32 v{vCa+k}, v{vCa+k}, v{vCa+4+k}\nv_add_f32 v{vCa+8+k}, v{vCa+8+k}, v{vCa+12+k}")
        for k in range(4): e(f"v_add_f32 v{vCa+k}, v{vCa+k}, v{vCa+8+k}")
        e(f"""v_permlane32_swap_b32 v{vCa}, v{vCa+1}
        v_permlane32_swap_b32 v{vCa+2}, v{vCa+3}
        v_add_f32 v{vCa}, v{vCa}, v{vCa+1}
        v_add_f32 v{vCa+2}, v{vCa+2}, v{vCa+3}
        v_permlane16_swap_b32 v{vCa}, v{vCa+2}
        v_add_f32 v{vCa}, v{vCa}, v{vCa+2}""")
        s.dppreduce("v_add_f32", vCa, (4, 8))
        e(f"""v_cvt_pk_bf16_f32 v{vCa}, v{vCa}, v{vCa}
        buffer_store_short v{vCa}, v{vXq}, {sOUT}, {sT2} offen
        s_cmp_lg_u32 {sT0}, 0
        s_cbranch_scc1 L_B_done
        v_mov_b32 v{vt}, 0
        s_mov_b64 exec, 1
        buffer_store_dword v{vTag}, v{vt}, {s.sWS}, 0 offen sc1
        s_mov_b64 exec, -1""")
        e("L_B_done:")
        s.st(11)
        s.stamps_out(12)
        e("L_end:\ns_endpgm")

def make(path, **kw):
    g = G4(**kw)
    body = g.text()
    src = wrap(body, 256, 512, LDS_BYTES, vgpr=256, sgpr=102, accum=256, header=HEADER)
    src = src.replace("  .amdhsa_system_sgpr_workgroup_id_x 1\n", "  .amdhsa_system_sgpr_workgroup_id_x 1\n  .amdhsa_float_denorm_mode_32 3\n")
    open(path, "w").write(src)
    return build(path)

if __name__ == "__main__":
    kw = json.loads(sys.argv[2]) if len(sys.argv) > 2 else {}
    co = make(sys.argv[1], **kw)
    import subprocess
    r = subprocess.run(["llvm-readelf", "-S", co], capture_output=True, text=True).stdout
    print([l for l in r.splitlines() if ".text" in l])
```
